```python
import torch

def _softmax(x, axis=-1):
    return torch.softmax(x, dim=axis)
def _gelu(x):
    return torch.nn.functional.gelu(x, approximate="tanh")
def _silu(x):
    return torch.nn.functional.silu(x)
def _sigmoid(x):
    return torch.sigmoid(x)
def _layernorm(x, axis=-1, eps=1e-5):
    m = x.mean(dim=axis, keepdim=True)
    v = x.var(dim=axis, keepdim=True, unbiased=False)
    return (x - m) / torch.sqrt(v + eps)
def _scatter_add(tgt, idx, src, axis=0):
    return tgt.clone().index_add_(axis, idx, src)
def _segment_sum(src, seg, n):
    out = torch.zeros((n,) + src.shape[1:], dtype=src.dtype)
    return out.index_add_(0, seg, src)
def _pad(x, pw):
    flat = tuple(v for pair in reversed(pw) for v in pair)
    return torch.nn.functional.pad(x, flat)

kernel_name = 'interleave_layers__sliding_local_dilated__sliding_local_dilated__prompt'

def setup_inputs():

    _w = (lambda a: (lambda t: t.to(torch.bfloat16) if t.is_floating_point() else t)(torch.as_tensor(a)))
    def _A_setup():
        B, S, D = 1, 2048, 1024
        return {
            "x": _w((lambda *s: torch.randn(*s, dtype=torch.bfloat16) * 0.05)(B, S, D)),
            "wqkv": _w((lambda *s: torch.randn(*s, dtype=torch.bfloat16) * 0.05)(D, 3 * D)),
            "wo": _w((lambda *s: torch.randn(*s, dtype=torch.bfloat16) * 0.05)(D, D)),
        }
    _A_in = _A_setup()

    def _B_setup():
        B, S, D = 1, 2048, 1024
        return {
            "x": _w((lambda *s: torch.randn(*s, dtype=torch.bfloat16) * 0.05)(B, S, D)),
            "wqkv": _w((lambda *s: torch.randn(*s, dtype=torch.bfloat16) * 0.05)(D, 3 * D)),
            "wo": _w((lambda *s: torch.randn(*s, dtype=torch.bfloat16) * 0.05)(D, D)),
        }
    _B_in = _B_setup()

    return {
        "A_x": _A_in["x"],
        "A_wqkv": _A_in["wqkv"],
        "A_wo": _A_in["wo"],
        "B_x": _B_in["x"],
        "B_wqkv": _B_in["wqkv"],
        "B_wo": _B_in["wo"],
    }

def reference(A_x, A_wqkv, A_wo, B_x, B_wqkv, B_wo):
    def _A_ref(x, wqkv, wo):
        B, S, D = x.shape
        H = 32; Dh = D // H
        W, dil = 8, 2
        qkv = (lambda x, *d: x.permute(*d))((x @ wqkv).reshape(B, S, 3, H, Dh), 2, 0, 3, 1, 4)
        q, k, v = qkv[0], qkv[1], qkv[2]
        scale = Dh ** -0.5
        pos = torch.arange(S)
        off = torch.arange(W) * dil
        idx = pos[:, None] - off[None, :]
        mask = idx >= 0
        idx_c = torch.where(mask, idx, 0).reshape(-1)
        kg = k[:, :, idx_c, :].reshape(B, H, S, W, Dh)
        vg = v[:, :, idx_c, :].reshape(B, H, S, W, Dh)
        logits = torch.einsum("bhsd,bhswd->bhsw", q, kg) * scale
        logits = torch.where(mask[None, None, :, :], logits, -1e9)
        attn = _softmax(logits, axis=-1)
        o = torch.einsum("bhsw,bhswd->bhsd", attn, vg)
        return (lambda x, *d: x.permute(*d))(o, 0, 2, 1, 3).reshape(B, S, D) @ wo

    def _B_ref(x, wqkv, wo):
        B, S, D = x.shape
        H = 32; Dh = D // H
        W, dil = 8, 2
        qkv = (lambda x, *d: x.permute(*d))((x @ wqkv).reshape(B, S, 3, H, Dh), 2, 0, 3, 1, 4)
        q, k, v = qkv[0], qkv[1], qkv[2]
        scale = Dh ** -0.5
        pos = torch.arange(S)
        off = torch.arange(W) * dil
        idx = pos[:, None] - off[None, :]
        mask = idx >= 0
        idx_c = torch.where(mask, idx, 0).reshape(-1)
        kg = k[:, :, idx_c, :].reshape(B, H, S, W, Dh)
        vg = v[:, :, idx_c, :].reshape(B, H, S, W, Dh)
        logits = torch.einsum("bhsd,bhswd->bhsw", q, kg) * scale
        logits = torch.where(mask[None, None, :, :], logits, -1e9)
        attn = _softmax(logits, axis=-1)
        o = torch.einsum("bhsw,bhswd->bhsd", attn, vg)
        return (lambda x, *d: x.permute(*d))(o, 0, 2, 1, 3).reshape(B, S, D) @ wo

    x = A_x
    x = x + _A_ref(_layernorm(x, axis=-1), A_wqkv, A_wo)
    x = x + _B_ref(_layernorm(x, axis=-1), B_wqkv, B_wo)
    x = x + _A_ref(_layernorm(x, axis=-1), A_wqkv, A_wo)
    x = x + _B_ref(_layernorm(x, axis=-1), B_wqkv, B_wo)
    return x
```

```python
import re

TRANS = ('v_exp_f32', 'v_log_f32', 'v_rcp_f32', 'v_rsq_f32', 'v_sqrt_f32', 'v_sin_f32', 'v_cos_f32', 'v_rcp_iflag_f32')

def split_ops(s):
    out, depth, cur = [], 0, ''
    for ch in s:
        if ch == '[' or ch == '(': depth += 1
        if ch == ']' or ch == ')': depth -= 1
        if ch == ',' and depth == 0:
            out.append(cur.strip()); cur = ''
        else:
            cur += ch
    if cur.strip(): out.append(cur.strip())
    return out

def regs_of(tok):
    tok = tok.strip()
    tok = tok.lstrip('-')
    m = re.match(r'^abs\((.*)\)$', tok)
    if m: tok = m.group(1)
    tok = tok.strip('|')
    m = re.match(r'^([vsa])\[(\d+):(\d+)\]$', tok)
    if m: return {(m.group(1), i) for i in range(int(m.group(2)), int(m.group(3)) + 1)}
    m = re.match(r'^([vsa])(\d+)$', tok)
    if m: return {(m.group(1), int(m.group(2)))}
    if tok in ('vcc',): return {('s', 'vcc_lo'), ('s', 'vcc_hi')}
    if tok in ('vcc_lo', 'vcc_hi'): return {('s', tok)}
    if tok == 'exec': return {('s', 'exec_lo'), ('s', 'exec_hi')}
    if tok in ('exec_lo', 'exec_hi'): return {('s', tok)}
    if tok == 'm0': return {('s', 'm0')}
    return set()

class Ins:
    __slots__ = ('text', 'mn', 'ops', 'mods', 'kind', 'defs', 'uses', 'label', 'srcA', 'srcB', 'srcC', 'passes',
                 'target', 'storedata', 'isdpp', 'lds', 'comment', 'maskuse', 'laneuse')
    def __init__(self, text):
        self.text = text
        self.label = None
        self.kind = None
        self.defs = set(); self.uses = set()
        self.srcA = self.srcB = self.srcC = set()
        self.passes = 0; self.target = None; self.storedata = set(); self.isdpp = False; self.lds = False
        self.maskuse = set(); self.laneuse = set()
        t = text.split(';')[0].strip()
        if t.endswith(':'):
            self.label = t[:-1]; self.kind = 'label'; self.mn = None; return
        if not t or t.startswith('.'):
            self.kind = 'dir'; self.mn = None; return
        sp = t.split(None, 1)
        self.mn = sp[0]
        rest = sp[1] if len(sp) > 1 else ''
        ops = split_ops(rest)
        mods = []
        if ops:
            parts = ops[-1].split()
            ops[-1] = parts[0]; mods = parts[1:]
        self.ops = ops; self.mods = mods
        mn = self.mn
        R = regs_of
        base = re.sub(r'_(e32|e64|dpp|sdwa)$', '', mn)
        if mn.startswith('v_mfma'):
            self.kind = 'mfma'
            self.defs = R(ops[0]); self.srcA = R(ops[1]); self.srcB = R(ops[2]); self.srcC = R(ops[3])
            self.uses = self.srcA | self.srcB | self.srcC
            self.passes = 8 if '32x32x16' in mn else 4 if '16x16x32' in mn else None
            assert self.passes, mn
        elif mn.startswith('v_'):
            self.kind = 'valu'
            self.isdpp = mn.endswith('_dpp') or any(m.startswith(('row_', 'quad_perm', 'wave_')) for m in mods)
            if base.startswith('v_permlane') and 'swap' in base:
                self.defs = R(ops[0]) | R(ops[1]); self.uses = set(self.defs)
            elif base.startswith('v_cmp'):
                self.defs = R(ops[0])
                for o in ops[1:]: self.uses |= R(o)
            elif base in ('v_add_co_u32', 'v_sub_co_u32', 'v_subrev_co_u32'):
                self.defs = R(ops[0]) | R(ops[1])
                for o in ops[2:]: self.uses |= R(o)
            elif base in ('v_addc_co_u32', 'v_subb_co_u32'):
                self.defs = R(ops[0]) | R(ops[1])
                for o in ops[2:]: self.uses |= R(o)
                self.maskuse = R(ops[-1])
            else:
                self.defs = R(ops[0])
                for o in ops[1:]: self.uses |= R(o)
                if base in ('v_fmac_f32', 'v_writelane_b32', 'v_dot2c_f32_bf16', 'v_pk_fmac_f16') or self.isdpp:
                    self.uses |= R(ops[0])
                if base == 'v_cndmask_b32':
                    self.maskuse = R(ops[3]) if len(ops) > 3 else R('vcc')
                    self.uses |= self.maskuse
                if base in ('v_readlane_b32', 'v_writelane_b32'):
                    self.laneuse = R(ops[2])
        elif mn.startswith('ds_'):
            self.kind = 'ds'
            if mn.startswith(('ds_read', 'ds_bpermute', 'ds_permute', 'ds_swizzle')) or '_rtn' in mn:
                self.defs = R(ops[0])
                for o in ops[1:]: self.uses |= R(o)
            else:
                for o in ops: self.uses |= R(o)
        elif mn.startswith('buffer_'):
            self.kind = 'vmem'
            allm = mods + ops
            if mn in ('buffer_inv', 'buffer_wbl2'):
                pass
            elif 'lds' in mods:
                self.lds = True
                for o in ops: self.uses |= R(o)
                self.uses |= R('m0')
            elif mn.startswith('buffer_load'):
                self.defs = R(ops[0])
                for o in ops[1:]: self.uses |= R(o)
            else:
                for o in ops: self.uses |= R(o)
                if 'x3' in mn or 'x4' in mn: self.storedata = R(ops[0])
                if mn.startswith('buffer_atomic') and 'sc0' in mods: self.defs = R(ops[0])
        elif mn.startswith('global_'):
            self.kind = 'vmem'
            if mn.startswith('global_load_lds'):
                self.lds = True
                for o in ops: self.uses |= R(o)
                self.uses |= R('m0')
            elif mn.startswith('global_load'):
                self.defs = R(ops[0])
                for o in ops[1:]: self.uses |= R(o)
            elif mn.startswith('global_store'):
                for o in ops: self.uses |= R(o)
                if 'x3' in mn or 'x4' in mn: self.storedata = R(ops[1])
            elif mn.startswith('global_atomic'):
                if 'sc0' in mods:
                    self.defs = R(ops[0])
                    for o in ops[1:]: self.uses |= R(o)
                else:
                    for o in ops: self.uses |= R(o)
            else:
                raise ValueError(text)
        elif mn.startswith('s_'):
            self.kind = 'salu'
            if mn in ('s_branch',) or mn.startswith('s_cbranch'):
                self.kind = 'branch'; self.target = ops[0]
            elif mn == 's_endpgm':
                self.kind = 'end'
            elif mn == 's_nop':
                self.kind = 'nop'
            elif mn.startswith(('s_cmp', 's_waitcnt', 's_barrier', 's_setprio', 's_sleep', 's_bitcmp', 's_setreg', 's_sendmsg')):
                for o in ops: self.uses |= R(o)
            elif mn.startswith(('s_load', 's_buffer_load', 's_memtime', 's_memrealtime')):
                self.kind = 'smem'
                self.defs = R(ops[0])
                for o in ops[1:]: self.uses |= R(o)
            else:
                self.defs = R(ops[0])
                for o in ops[1:]: self.uses |= R(o)
                if 'saveexec' in mn: self.defs |= R('exec'); self.uses |= R('exec')
                if mn in ('s_addk_i32', 's_mulk_i32'): self.uses |= R(ops[0])
        else:
            raise ValueError('unknown instruction: ' + text)

    def states(self):
        if self.kind == 'nop': return int(self.ops[0], 0) + 1
        if self.kind in ('label', 'dir'): return 0
        return 1

def vonly(s): return {r for r in s if r[0] in 'va'}
def sonly(s): return {r for r in s if r[0] == 's'}

def required(p, c):
    need = 0
    pk, ck = p.kind, c.kind
    if pk == 'valu':
        pv = vonly(p.defs); ps = sonly(p.defs)
        if pv:
            if ck == 'mfma' and pv & c.uses: need = max(need, 2)
            if ck == 'valu':
                b = c.mn
                if b.startswith('v_permlane') and pv & c.uses: need = max(need, 2)
                if c.isdpp and pv & c.uses: need = max(need, 2)
                if b.startswith(('v_readlane', 'v_readfirstlane')) and pv & c.uses: need = max(need, 1)
                if p.mn.startswith(TRANS) and not b.startswith(TRANS) and pv & c.uses: need = max(need, 1)
            if p.mn.startswith(TRANS) and ck in ('ds', 'vmem') and pv & c.uses: need = max(need, 1)
        if ps:
            if ck == 'valu':
                if ps & c.laneuse: need = max(need, 4)
                if ps & sonly(c.uses): need = max(need, 2)
            if ck == 'mfma' and ps & c.uses: need = max(need, 2)
            if ck == 'vmem' and ps & c.uses: need = max(need, 5)
            if ck == 'smem' and ps & c.uses: need = max(need, 5)
            if ck in ('salu', 'branch') and ps & c.uses: need = max(need, 1)
    if pk == 'mfma':
        n = p.passes
        D = p.defs
        if ck == 'mfma':
            if D & (c.srcA | c.srcB): need = max(need, n + 4)
            if D & c.srcC:
                if not (D == c.srcC and c.passes == n): need = max(need, n + 2)
            if D & c.defs and not (D & c.srcC):
                if not (D == c.defs and c.passes == n): need = max(need, n + 2)
        elif ck == 'valu':
            if D & (c.uses | c.defs): need = max(need, n + 4)
            if p.srcC & c.defs: need = max(need, n - 1)
        elif ck in ('ds', 'vmem'):
            if D & (c.uses | c.defs): need = max(need, n + 4)
            if p.srcC & c.defs: need = max(need, n - 1)
    if pk == 'salu' and ('s', 'm0') in p.defs:
        if c.lds or (ck == 'ds' and 'addtid' in c.mn): need = max(need, 1)
    if pk == 'vmem' and p.storedata:
        if ck in ('valu', 'mfma') and p.storedata & c.defs: need = max(need, 2)
        elif ck in ('ds', 'vmem') and p.storedata & c.defs: need = max(need, 1)
    return need

MAXLOOK = 20

class Asm:
    def __init__(self):
        self.ins = []
        self._uniq = 0
    def __call__(self, text):
        for line in text.split('\n'):
            line = line.strip()
            if line: self.ins.append(Ins(line))
    def label(self, name): self.ins.append(Ins(name + ':'))
    def uniq(self, prefix):
        self._uniq += 1
        return f'{prefix}_{self._uniq}'
    def raw(self, text):
        i = Ins(''); i.text = text; i.kind = 'dir'; self.ins.append(i)
    def comment(self, text): self.raw('; ' + text)

    def pad_hazards(self, verbose=False):
        inserted = 0
        ins = self.ins
        def build():
            labels = {x.label: i for i, x in enumerate(ins) if x.label}
            preds = {}
            for i, x in enumerate(ins):
                if x.kind == 'branch' and x.target in labels:
                    preds.setdefault(labels[x.target], []).append(i)
            return preds
        def falls(i):
            x = ins[i]
            return not (x.kind == 'end' or (x.kind == 'branch' and x.mn == 's_branch'))
        for rnd in range(3):
            preds = build()
            ci = 0
            any_ins = False
            while ci < len(ins):
                c = ins[ci]
                if c.kind in ('label', 'dir', 'nop', 'end'):
                    ci += 1; continue
                short = 0
                stack = []
                def push_preds(idx, acc):
                    if idx > 0 and falls(idx - 1): stack.append((idx - 1, acc))
                    if ins[idx].label is not None:
                        for b in preds.get(idx, []): stack.append((b, acc))
                push_preds(ci, 0)
                seen = {}
                while stack:
                    idx, acc = stack.pop()
                    if acc >= MAXLOOK: continue
                    if seen.get(idx, 99) <= acc: continue
                    seen[idx] = acc
                    p = ins[idx]
                    if p.kind not in ('label', 'dir', 'nop'):
                        need = required(p, c)
                        if need > acc: short = max(short, need - acc)
                    push_preds(idx, acc + p.states())
                if short:
                    if verbose: print(f'pad {short} before: {c.text}')
                    n = short
                    while n > 0:
                        k = min(n, 16)
                        ins.insert(ci, Ins(f's_nop {k-1}')); ci += 1; n -= k
                    inserted += short
                    any_ins = True
                    preds = build()
                ci += 1
            if not any_ins: break
        return inserted

    def text(self):
        lines = []
        for x in self.ins:
            if x.kind == 'label': lines.append(x.text)
            elif x.kind == 'dir': lines.append(x.text)
            else: lines.append('    ' + x.text)
        return '\n'.join(lines) + '\n'

    def max_regs(self):
        mv = ms = -1
        for x in self.ins:
            for r in (x.defs | x.uses):
                if r[0] == 'v': mv = max(mv, r[1])
                if r[0] == 's' and isinstance(r[1], int): ms = max(ms, r[1])
        return mv, ms
```

```python
import sys
sys.path.insert(0, 'work')
from asmlib import Asm

MB4 = 4 * 1024 * 1024
WS_LN, WS_O, WS_X = 0, 4, 8
K_AX, K_AWQKV, K_AWO, K_BX, K_BWQKV, K_BWO, K_OUT, K_DBG, K_WS = 0, 8, 16, 24, 32, 40, 48, 56, 64
SRD3 = 0x00020000

class Regs:
    def __init__(self, start, limit): self.n = start; self.limit = limit
    def get(self, k=1, align=1):
        self.n = (self.n + align - 1) // align * align
        r = self.n; self.n += k
        assert self.n <= self.limit, 'out of registers'
        return r

def vr(b, n=1): return f'v{b}' if n == 1 else f'v[{b}:{b+n-1}]'
def sr(b, n=1): return f's{b}' if n == 1 else f's[{b}:{b+n-1}]'

def load_ptr(a, sdst, karg, add=0):
    a(f's_load_dwordx2 {sr(sdst,2)}, s[0:1], {karg}')

def add_ptr(a, sdst, add):
    if add:
        a(f's_add_u32 s{sdst}, s{sdst}, {add & 0xffffffff}')
        a(f's_addc_u32 s{sdst+1}, s{sdst+1}, 0')

def make_srd(a, srd, size):
    a(f's_and_b32 s{srd+1}, s{srd+1}, 0xffff')
    a(f's_mov_b32 s{srd+2}, {size}')
    a(f's_mov_b32 s{srd+3}, {SRD3}')

def kernel_head(a, name):
    a.raw(f'.globl {name}')
    a.raw('.p2align 8')
    a.raw(f'.type {name},@function')
    a.label(name)

def kernel_desc(name, vgpr, sgpr=102):
    acc = (vgpr + 3) // 4 * 4
    return f'''.amdhsa_kernel {name}
  .amdhsa_next_free_vgpr {vgpr}
  .amdhsa_next_free_sgpr {sgpr}
  .amdhsa_accum_offset {acc}
  .amdhsa_group_segment_fixed_size 0
  .amdhsa_kernarg_size 72
  .amdhsa_float_denorm_mode_32 3
  .amdhsa_user_sgpr_count 2
  .amdhsa_user_sgpr_kernarg_segment_ptr 1
  .amdhsa_system_sgpr_workgroup_id_x 1
.end_amdhsa_kernel
'''

def xsrc(L):
    return (K_AX, 0) if L == 0 else (K_WS, (WS_X + L - 1) * MB4)
def xdst(L):
    return (K_OUT, 0) if L == 3 else (K_WS, (WS_X + L) * MB4)

def allreduce_row(a, op, v, tmp):
    a(f'v_mov_b32 v{tmp}, v{v}')
    a(f'v_permlane16_swap_b32 v{v}, v{tmp}')
    a(f'{op} v{v}, v{v}, v{tmp}')
    a(f'v_mov_b32 v{tmp}, v{v}')
    a(f'v_permlane32_swap_b32 v{v}, v{tmp}')
    a(f'{op} v{v}, v{v}, v{tmp}')

def gen_ln(a, faithful=True):
    SRC, DST = 4, 8
    for L in range(4):
        kernel_head(a, f'ln{L}_kernel')
        k, add = xsrc(L)
        load_ptr(a, SRC, k); load_ptr(a, DST, K_WS)
        a('s_waitcnt lgkmcnt(0)')
        add_ptr(a, SRC, add); add_ptr(a, DST, (WS_LN + L) * MB4)
        a('s_branch ln_body')
    a.label('ln_body')
    a('s_cmp_ge_u32 s2, 256')
    a('s_cbranch_scc1 ln_done')
    make_srd(a, SRC, MB4); make_srd(a, DST, MB4)
    a('v_lshrrev_b32 v1, 6, v0')
    a('v_and_b32 v2, 63, v0')
    a('v_lshlrev_b32 v1, 12, v1')
    a('v_lshl_add_u32 v1, v2, 4, v1')
    a('s_lshl_b32 s3, s2, 14')
    a('v_add_u32 v1, s3, v1')
    for r in range(2):
        a(f'buffer_load_dwordx4 v[{4+8*r}:{7+8*r}], v1, s[4:7], 0 offen offset:{2048*r}')
        a(f'buffer_load_dwordx4 v[{8+8*r}:{11+8*r}], v1, s[4:7], 0 offen offset:{2048*r+1024}')
    a('s_mov_b32 s12, 0xffff0000')
    a('s_mov_b32 s13, 0x3a800000')
    a('s_mov_b32 s14, 0x3727c5ac')
    for r in range(2):
        a(f's_waitcnt vmcnt({2-2*r})')
        src = 4 + 8 * r
        X = 24
        for i in range(8):
            a(f'v_lshlrev_b32 v{X+2*i}, 16, v{src+i}')
            a(f'v_and_b32 v{X+2*i+1}, s12, v{src+i}')
        S, T = 40, 41
        a(f'v_add_f32 v{S}, v{X}, v{X+1}')
        for i in range(2, 16): a(f'v_add_f32 v{S}, v{S}, v{X+i}')
        def wave_sum(v):
            for sh in (8, 4, 2, 1):
                a(f'v_add_f32_dpp v{v}, v{v}, v{v} row_ror:{sh} row_mask:0xf bank_mask:0xf')
            allreduce_row(a, 'v_add_f32', v, T)
        wave_sum(S)
        a(f'v_mul_f32 v{S}, s13, v{S}')
        Q = 42
        D = 44
        a(f'v_sub_f32 v{D}, v{X}, v{S}')
        a(f'v_mul_f32 v{Q}, v{D}, v{D}')
        for i in range(1, 16):
            a(f'v_sub_f32 v{D}, v{X+i}, v{S}')
            a(f'v_fmac_f32 v{Q}, v{D}, v{D}')
        wave_sum(Q)
        a(f'v_mul_f32 v{Q}, s13, v{Q}')
        if faithful:
            a(f'v_cvt_pk_bf16_f32 v{T}, v{S}, v{Q}')
            a(f'v_lshlrev_b32 v{S}, 16, v{T}')
            a(f'v_and_b32 v{Q}, s12, v{T}')
            a(f'v_add_f32 v{Q}, s14, v{Q}')
            a(f'v_cvt_pk_bf16_f32 v{Q}, v{Q}, v{Q}')
            a(f'v_lshlrev_b32 v{Q}, 16, v{Q}')
            a(f'v_sqrt_f32 v{Q}, v{Q}')
            a(f'v_cvt_pk_bf16_f32 v{Q}, v{Q}, v{Q}')
            a(f'v_lshlrev_b32 v{Q}, 16, v{Q}')
            a(f'v_rcp_f32 v{Q}, v{Q}')
            for i in range(8):
                a(f'v_sub_f32 v{X+2*i}, v{X+2*i}, v{S}')
                a(f'v_sub_f32 v{X+2*i+1}, v{X+2*i+1}, v{S}')
                a(f'v_cvt_pk_bf16_f32 v{T}, v{X+2*i}, v{X+2*i+1}')
                a(f'v_lshlrev_b32 v{X+2*i}, 16, v{T}')
                a(f'v_and_b32 v{X+2*i+1}, s12, v{T}')
                a(f'v_mul_f32 v{X+2*i}, v{X+2*i}, v{Q}')
                a(f'v_mul_f32 v{X+2*i+1}, v{X+2*i+1}, v{Q}')
                a(f'v_cvt_pk_bf16_f32 v{src+i}, v{X+2*i}, v{X+2*i+1}')
        else:
            a(f'v_add_f32 v{Q}, s14, v{Q}')
            a(f'v_rsq_f32 v{Q}, v{Q}')
            for i in range(8):
                a(f'v_sub_f32 v{X+2*i}, v{X+2*i}, v{S}')
                a(f'v_sub_f32 v{X+2*i+1}, v{X+2*i+1}, v{S}')
                a(f'v_mul_f32 v{X+2*i}, v{X+2*i}, v{Q}')
                a(f'v_mul_f32 v{X+2*i+1}, v{X+2*i+1}, v{Q}')
                a(f'v_cvt_pk_bf16_f32 v{src+i}, v{X+2*i}, v{X+2*i+1}')
        a(f'buffer_store_dwordx4 v[{src}:{src+3}], v1, s[8:11], 0 offen offset:{2048*r}')
        a(f'buffer_store_dwordx4 v[{src+4}:{src+7}], v1, s[8:11], 0 offen offset:{2048*r+1024}')
    a.label('ln_done')
    a('s_endpgm')

def decode_wg(a, s_rb, s_g, tmp):
    a(f's_and_b32 s{tmp}, s2, 7')
    a(f's_lshr_b32 s{s_g}, s2, 3')
    a(f's_and_b32 s{s_rb}, s{tmp}, 1')
    a(f's_lshl_b32 s{s_rb}, s{s_rb}, 3')
    a(f's_and_b32 s{tmp+1}, s{s_g}, 7')
    a(f's_add_u32 s{s_rb}, s{s_rb}, s{tmp+1}')
    a(f's_lshr_b32 s{s_g}, s{s_g}, 3')
    a(f's_lshr_b32 s{tmp}, s{tmp}, 1')
    a(f's_lshl_b32 s{tmp}, s{tmp}, 2')
    a(f's_add_u32 s{s_g}, s{s_g}, s{tmp}')

A_SLOT = 18432
W_SLOT = 24576
W0 = 3 * A_SLOT
HALO0 = W0 + 3 * W_SLOT
A_LDS = HALO0 + 4096

S_LN, S_W, S_O = 4, 8, 12
S_RB, S_G, S_WAVE, S_T0 = 16, 17, 18, 19
S_SLOTA, S_SLOTW, S_CNT, S_KA, S_KW = 21, 22, 23, 24, 25
S_TMP = 26
S_H = 27
S_SEL, S_VAL, S_VAL0 = 28, 36, 44
S_C0 = 52
S_PB = 60

def a_producer(a, pw, tag):
    vA = [1, 2]; vW = [3, 4]
    a('v_and_b32 v5, 63, v0')
    a('v_lshrrev_b32 v6, 3, v5')
    a('v_and_b32 v7, 7, v5')
    a('v_lshrrev_b32 v8, 4, v5')
    for par in range(2):
        a(f'v_or_b32 v9, {4*par}, v8')
        a('v_xor_b32 v9, v9, v7')
        a('v_lshlrev_b32 v9, 4, v9')
        a(f'v_lshl_add_u32 v{vA[par]}, v6, 12, v9')
        a('v_and_b32 v9, 1, v8')
        a(f'v_or_b32 v9, {2*par}, v9')
        a('v_lshlrev_b32 v9, 1, v9')
        a('v_xor_b32 v9, v9, v7')
        a('v_lshlrev_b32 v9, 4, v9')
        a(f'v_mul_u32_u24 v10, 6144, v6')
        a(f'v_add_u32 v{vW[par]}, v9, v10')
    apieces = [[0,1,2,3,4],[5,6,7,8,9],[10,11,12,13],[14,15,16,17]][pw]
    wpieces = list(range(6*pw, 6*pw+6))
    pieces = [('A', p) for p in apieces] + [('W', q) for q in wpieces]
    N = len(pieces)
    a(f's_lshl_b32 s{S_T0}, s{S_RB}, 18')
    a(f's_lshl_b32 s{S_T0+1}, s{S_G}, 7')
    for n, (kind, p) in enumerate(pieces):
        sb = S_PB + n
        if kind == 'A':
            if p < 16:
                tau = p >> 1; par = tau >> 2; t = tau & 3
                rowoff = 32 * t + par + 16 * (p & 1)
                a(f's_add_u32 s{sb}, s{S_T0}, {rowoff * 2048}')
            else:
                a(f's_add_u32 s{sb}, s{S_T0}, {(p & 1) * 2048}')
                a(f's_cmp_eq_u32 s{S_RB}, 0')
                a(f's_cselect_b32 s{S_TMP}, 0, {16 * 2048}')
                a(f's_sub_u32 s{sb}, s{sb}, s{S_TMP}')
        else:
            u = p >> 3; pp = p & 7
            a(f's_add_u32 s{sb}, s{S_T0+1}, {pp * 8 * 6144 + u * 2048}')
    a(f's_mov_b32 s{S_KA}, 0'); a(f's_mov_b32 s{S_KW}, 0')
    a(f's_mov_b32 s{S_SLOTA}, 0'); a(f's_mov_b32 s{S_SLOTW}, {W0}')
    def issue_stage():
        for n, (kind, p) in enumerate(pieces):
            sb = S_PB + n
            if kind == 'A':
                a(f's_add_u32 m0, s{S_SLOTA}, {p * 1024}')
                a(f's_add_u32 s{S_TMP}, s{sb}, s{S_KA}')
                a(f'buffer_load_dwordx4 v{vA[p & 1]}, s[{S_LN}:{S_LN+3}], s{S_TMP} offen lds')
            else:
                u = p >> 3; pp = p & 7
                a(f's_add_u32 m0, s{S_SLOTW}, {u * 8192 + pp * 1024}')
                a(f's_add_u32 s{S_TMP}, s{sb}, s{S_KW}')
                a(f'buffer_load_dwordx4 v{vW[pp & 1]}, s[{S_W}:{S_W+3}], s{S_TMP} offen lds')
        a(f's_add_u32 s{S_KA}, s{S_KA}, 128')
        a(f's_add_u32 s{S_KW}, s{S_KW}, {64 * 6144}')
        a(f's_add_u32 s{S_SLOTA}, s{S_SLOTA}, {A_SLOT}')
        a(f's_add_u32 s{S_SLOTW}, s{S_SLOTW}, {W_SLOT}')
        a(f's_cmp_eq_u32 s{S_SLOTA}, {3 * A_SLOT}')
        a(f's_cselect_b32 s{S_SLOTA}, 0, s{S_SLOTA}')
        a(f's_cselect_b32 s{S_SLOTW}, {W0}, s{S_SLOTW}')
    for _ in range(3): issue_stage()
    a(f's_waitcnt vmcnt({2*N})')
    a('s_barrier')
    a(f's_mov_b32 s{S_CNT}, 0')
    lp = f'ap_loop_{tag}'
    a.label(lp)
    a(f's_waitcnt vmcnt({N})')
    a('s_barrier')
    issue_stage()
    a(f's_add_u32 s{S_CNT}, s{S_CNT}, 1')
    a(f's_cmp_lt_u32 s{S_CNT}, 13')
    a(f's_cbranch_scc1 {lp}')
    a(f's_waitcnt vmcnt({N})'); a('s_barrier')
    a('s_waitcnt vmcnt(0)'); a('s_barrier')
    a('s_barrier')
    a('s_endpgm')

def interleave(lists):
    out = []
    n = max(len(x) for x in lists)
    for i in range(n):
        for x in lists:
            if i < len(x): out.append(x[i])
    return out

def a_consumer(a, par, tag, opts):
    R = Regs(10, 256)
    acc = {}
    for u in range(3):
        for f in range(2):
            for t in range(4): acc[u, f, t] = R.get(4, 4)
    accH = [R.get(4, 4), R.get(4, 4)]
    buf = []
    for b in range(2):
        d = {}
        for u in range(3):
            for f in range(2): d['w', u, f] = R.get(4, 4)
        for t in range(5): d['t', t] = R.get(4, 4)
        buf.append(d)
    vA0b, vA1b, vW0b, vW1b, vA0, vA1, vW0, vW1 = 1, 2, 3, 4, 5, 6, 7, 8
    a('v_and_b32 v9, 63, v0')
    tA, tB, tC, tD = buf[0]['w', 0, 0], buf[0]['w', 0, 0] + 1, buf[0]['w', 0, 0] + 2, buf[0]['w', 0, 0] + 3
    a(f'v_and_b32 v{tA}, 15, v9')
    a(f'v_lshrrev_b32 v{tB}, 4, v9')
    a(f'v_lshrrev_b32 v{tC}, 1, v{tA}')
    a(f'v_xor_b32 v{tC}, v{tC}, v{tB}')
    a(f'v_lshlrev_b32 v{tC}, 4, v{tC}')
    a(f'v_lshl_add_u32 v{vA0b}, v{tA}, 7, v{tC}')
    a(f'v_xor_b32 v{vA1b}, 64, v{vA0b}')
    a(f'v_lshrrev_b32 v{tC}, 2, v{tA}')
    a(f'v_lshl_add_u32 v{tD}, v{tB}, 3, v{tC}')
    a(f'v_lshlrev_b32 v{vW0b}, 7, v{tD}')
    a(f'v_and_b32 v{tD}, 3, v{tA}')
    a(f'v_lshl_add_u32 v{vW0b}, v{tD}, 3, v{vW0b}')
    a(f'v_lshrrev_b32 v{tC}, 1, v{tC}')
    a(f'v_and_b32 v{tD}, 1, v{tB}')
    a(f'v_lshl_add_u32 v{tC}, v{tD}, 1, v{tC}')
    a(f's_lshl_b32 s{S_T0}, s{S_H}, 1')
    a(f'v_xor_b32 v{tC}, s{S_T0}, v{tC}')
    a(f'v_xor_b32 v{tD}, 1, v{tC}')
    a(f'v_lshl_add_u32 v{vW1b}, v{tD}, 5, v{vW0b}')
    a(f'v_lshl_add_u32 v{vW0b}, v{tC}, 5, v{vW0b}')
    for k, r in list(acc.items()) + [(0, accH[0]), (1, accH[1])]:
        for j in range(4): a(f'v_mov_b32 v{r+j}, 0')
    a(f's_mov_b32 s{S_SLOTA}, 0'); a(f's_mov_b32 s{S_SLOTW}, {W0}')
    def reads(b, ks):
        out = []
        d = buf[b]
        vAx = vA0 if ks == 0 else vA1
        for u in range(3):
            for f in range(2):
                vW = vW0 if f == 0 else vW1
                for j in range(2):
                    r = d['w', u, f] + 2 * j
                    out.append(f'ds_read_b64_tr_b16 v[{r}:{r+1}], v{vW} offset:{u*8192 + ks*4096 + j*512}')
        for t in range(5):
            tau = par * 4 + t if t < 4 else 8
            r = d['t', t]
            out.append(f'ds_read_b128 v[{r}:{r+3}], v{vAx} offset:{tau*2048}')
        wq = out[0:4]; wk = out[4:8]; wv = out[8:12]; tt = out[12:17]
        return wq[0:2] + tt[0:4] + wq[2:4] + wk + wv + tt[4:5]
    def mfmas(b):
        d = buf[b]; out = []
        for u in range(3):
            for f in range(2):
                for t in range(4):
                    c = acc[u, f, t]; w = d['w', u, f]; x = d['t', t]
                    A, B = (w, x) if u < 2 else (x, w)
                    out.append(f'v_mfma_f32_16x16x32_bf16 v[{c}:{c+3}], v[{A}:{A+3}], v[{B}:{B+3}], v[{c}:{c+3}]')
        for f in range(2):
            c = accH[f]; x = d['t', 4]
            if par == 0: A, B = d['w', 1, f], x
            else: A, B = x, d['w', 2, f]
            out.append(f'v_mfma_f32_16x16x32_bf16 v[{c}:{c+3}], v[{A}:{A+3}], v[{B}:{B+3}], v[{c}:{c+3}]')
        return out
    def step(b, ks_next):
        m = mfmas(b); r = reads(1 - b, ks_next)
        for i, x in enumerate(m):
            a(x)
            if i < len(r): a(r[i])
    a(f'v_add_u32 v{vA0}, s{S_SLOTA}, v{vA0b}')
    a(f'v_add_u32 v{vA1}, s{S_SLOTA}, v{vA1b}')
    a(f'v_add_u32 v{vW0}, s{S_SLOTW}, v{vW0b}')
    a(f'v_add_u32 v{vW1}, s{S_SLOTW}, v{vW1b}')
    a('s_barrier')
    for x in reads(0, 0): a(x)
    a(f's_mov_b32 s{S_CNT}, 0')
    lp = f'ac_loop_{tag}'
    a('s_waitcnt lgkmcnt(0)')
    a.label(lp)
    step(0, 1)
    a(f's_add_u32 s{S_SLOTA}, s{S_SLOTA}, {A_SLOT}')
    a(f's_add_u32 s{S_SLOTW}, s{S_SLOTW}, {W_SLOT}')
    a(f's_cmp_eq_u32 s{S_SLOTA}, {3 * A_SLOT}')
    a(f's_cselect_b32 s{S_SLOTA}, 0, s{S_SLOTA}')
    a(f's_cselect_b32 s{S_SLOTW}, {W0}, s{S_SLOTW}')
    a('s_waitcnt lgkmcnt(0)')
    a('s_barrier')
    a(f'v_add_u32 v{vA0}, s{S_SLOTA}, v{vA0b}')
    a(f'v_add_u32 v{vW0}, s{S_SLOTW}, v{vW0b}')
    a(f'v_add_u32 v{vW1}, s{S_SLOTW}, v{vW1b}')
    a(f'v_add_u32 v{vA1}, s{S_SLOTA}, v{vA1b}')
    step(1, 0)
    a(f's_add_u32 s{S_CNT}, s{S_CNT}, 1')
    a(f's_cmp_lt_u32 s{S_CNT}, 16')
    a('s_waitcnt lgkmcnt(0)')
    a(f's_cbranch_scc1 {lp}')

    R2 = Regs(buf[0]['w', 0, 0], 256)
    Qp = [R2.get(4, 4) for _ in range(4)]
    Kp = [R2.get(4, 4) for _ in range(5)]
    Vp = [R2.get(12, 4), R2.get(12, 4)]
    HW = R2.get(4, 4)
    def cvt(dst, s0, s1): return f'v_cvt_pk_bf16_f32 v{dst}, v{s0}, v{s1}'
    if par == 0:
        for f in range(2):
            a(cvt(HW + 2*f, accH[f], accH[f] + 1)); a(cvt(HW + 2*f + 1, accH[f] + 2, accH[f] + 3))
    else:
        for f in range(2):
            a(cvt(HW + 2*f, accH[f], accH[f] + 1)); a(cvt(HW + 2*f + 1, accH[f] + 2, accH[f] + 3))
    vH = vA0
    a(f'v_lshlrev_b32 v{vH}, 4, v9')
    a(f's_lshl_b32 s{S_T0}, s{S_H}, 11')
    a(f's_add_u32 s{S_T0}, s{S_T0}, {HALO0}')
    a(f'v_add_u32 v{vH}, s{S_T0}, v{vH}')
    a(f'ds_write_b128 v{vH}, v[{HW}:{HW+3}] offset:{0 if par == 0 else 1024}')
    for t in range(4):
        for f in range(2):
            c = acc[0, f, t]; a(cvt(Qp[t] + 2*f, c, c + 1)); a(cvt(Qp[t] + 2*f + 1, c + 2, c + 3))
            c = acc[1, f, t]; a(cvt(Kp[t+1] + 2*f, c, c + 1)); a(cvt(Kp[t+1] + 2*f + 1, c + 2, c + 3))
            c = acc[2, f, t]; a(cvt(Vp[f] + 2 + 2*t, c, c + 1)); a(cvt(Vp[f] + 3 + 2*t, c + 2, c + 3))
    a('s_waitcnt lgkmcnt(0)')
    a('s_barrier')
    if par == 0:
        a(f'v_xor_b32 v{vA1}, {8*16}, v{vH}')
        a(f'v_xor_b32 v{vW0}, {32*16}, v{vH}')
        vKH, vVH = vA1, vW0
    else:
        vKH = vVH = vH
    a(f'ds_read_b128 v[{Kp[0]}:{Kp[0]+3}], v{vKH}')
    a(f'ds_read_b64 v[{Vp[0]}:{Vp[0]+1}], v{vVH} offset:1024')
    a(f'ds_read_b64 v[{Vp[1]}:{Vp[1]+1}], v{vVH} offset:1032')
    vI, vK = vW1, vA0b
    a(f'v_and_b32 v{vI}, 15, v9')
    a(f'v_lshrrev_b32 v{vK}, 4, v9')
    a(f'v_lshlrev_b32 v{vK}, 2, v{vK}')
    M1 = [vA1b, vW0b]
    tmpv = vW1b
    for r in range(4):
        sel = S_SEL + 2*r; val = S_VAL + 2*r; val0 = S_VAL0 + 2*r
        a(f'v_add_u32 v{tmpv}, {r}, v{vK}')
        a(f'v_cmp_le_u32 s[{sel}:{sel+1}], v{tmpv}, v{vI}')
        a(f'v_sub_u32 v{tmpv}, v{vI}, v{tmpv}')
        a(f'v_and_b32 v{tmpv}, 15, v{tmpv}')
        a(f'v_cmp_gt_u32 s[{val}:{val+1}], 8, v{tmpv}')
        a(f's_and_b64 s[{val0}:{val0+1}], s[{val}:{val+1}], s[{sel}:{sel+1}]')
        a(f's_cmp_eq_u32 s{S_RB}, 0')
        a(f's_cselect_b64 s[{val0}:{val0+1}], s[{val0}:{val0+1}], s[{val}:{val+1}]')
    a(f's_mov_b32 s{S_C0}, 0xffff')
    a(f's_mov_b32 s{S_C0+1}, 0xffff0000')
    a(f's_mov_b32 s{S_C0+2}, 0x3e3504f3')
    a(f's_mov_b32 s{S_C0+3}, 0x3fb8aa3b')
    vNEG = HW
    a(f'v_mov_b32 v{vNEG}, 0xce6e6b28')
    vLO, vHI = HW + 1, HW + 2
    a(f'v_mov_b32 v{vLO}, s{S_C0}')
    a(f'v_mov_b32 v{vHI}, s{S_C0+1}')
    for j in range(2):
        s0 = S_SEL + 4*j; s1 = s0 + 2
        a(f'v_cndmask_b32 v{M1[j]}, 0, v{vLO}, s[{s0}:{s0+1}]')
        a(f'v_cndmask_b32 v{tmpv}, 0, v{vHI}, s[{s1}:{s1+1}]')
        a(f'v_or_b32 v{M1[j]}, v{M1[j]}, v{tmpv}')
    a('s_waitcnt lgkmcnt(0)')
    S0 = [acc[0, 0, t] for t in range(4)]; S1 = [acc[0, 1, t] for t in range(4)]
    for t in range(4):
        a(f'v_mfma_f32_16x16x32_bf16 v[{S0[t]}:{S0[t]+3}], v[{Kp[t]}:{Kp[t]+3}], v[{Qp[t]}:{Qp[t]+3}], 0')
        a(f'v_mfma_f32_16x16x32_bf16 v[{S1[t]}:{S1[t]+3}], v[{Kp[t+1]}:{Kp[t+1]+3}], v[{Qp[t]}:{Qp[t]+3}], 0')
    streams = []
    for t in range(4):
        s = []
        m = acc[1, 0, t]
        tp = acc[1, 1, t]
        Pop = acc[2, 0, t]
        Ob = [S0[t], S1[t]]
        val = (S_VAL0 if t == 0 else S_VAL)
        for r in range(4):
            s.append(f'v_cndmask_b32 v{m+r}, v{S0[t]+r}, v{S1[t]+r}, s[{S_SEL+2*r}:{S_SEL+2*r+1}]')
        if opts.get('round_logits', True):
            s.append(cvt(tp, m, m + 1)); s.append(cvt(tp + 1, m + 2, m + 3))
            for j in range(2):
                s.append(f'v_lshlrev_b32 v{m+2*j}, 16, v{tp+j}')
                s.append(f'v_and_b32 v{m+2*j+1}, s{S_C0+1}, v{tp+j}')
        for r in range(4): s.append(f'v_mul_f32 v{m+r}, s{S_C0+2}, v{m+r}')
        if opts.get('round_logits', True):
            s.append(cvt(tp, m, m + 1)); s.append(cvt(tp + 1, m + 2, m + 3))
            for j in range(2):
                s.append(f'v_lshlrev_b32 v{m+2*j}, 16, v{tp+j}')
                s.append(f'v_and_b32 v{m+2*j+1}, s{S_C0+1}, v{tp+j}')
        for r in range(4):
            s.append(f'v_cndmask_b32 v{m+r}, v{vNEG}, v{m+r}, s[{val+2*r}:{val+2*r+1}]')
        mx, t2 = tp, tp + 1
        s.append(f'v_max3_f32 v{mx}, v{m}, v{m+1}, v{m+2}')
        s.append(f'v_max_f32 v{mx}, v{mx}, v{m+3}')
        for sw in ('16', '32'):
            s.append(f'v_mov_b32 v{t2}, v{mx}')
            s.append(f'v_permlane{sw}_swap_b32 v{mx}, v{t2}')
            s.append(f'v_max_f32 v{mx}, v{mx}, v{t2}')
        for r in range(4): s.append(f'v_sub_f32 v{m+r}, v{m+r}, v{mx}')
        for r in range(4): s.append(f'v_mul_f32 v{m+r}, s{S_C0+3}, v{m+r}')
        for r in range(4): s.append(f'v_exp_f32 v{m+r}, v{m+r}')
        sm = tp
        s.append(f'v_add_f32 v{sm}, v{m}, v{m+1}')
        s.append(f'v_add_f32 v{t2}, v{m+2}, v{m+3}')
        s.append(f'v_add_f32 v{sm}, v{sm}, v{t2}')
        for sw in ('16', '32'):
            s.append(f'v_mov_b32 v{t2}, v{sm}')
            s.append(f'v_permlane{sw}_swap_b32 v{sm}, v{t2}')
            s.append(f'v_add_f32 v{sm}, v{sm}, v{t2}')
        s.append(f'v_rcp_f32 v{sm}, v{sm}')
        for r in range(4): s.append(f'v_mul_f32 v{m+r}, v{m+r}, v{sm}')
        s.append(cvt(tp + 2, m, m + 1)); s.append(cvt(tp + 3, m + 2, m + 3))
        for j in range(2):
            s.append(f'v_bfi_b32 v{Pop+j}, v{M1[j]}, 0, v{tp+2+j}')
            s.append(f'v_and_b32 v{Pop+2+j}, v{M1[j]}, v{tp+2+j}')
        for f in range(2):
            s.append(f'v_mfma_f32_16x16x32_bf16 v[{Ob[f]}:{Ob[f]+3}], v[{Vp[f]+2*t}:{Vp[f]+2*t+3}], v[{Pop}:{Pop+3}], 0')
        streams.append(s)
    for x in interleave(streams): a(x)
    vO = vA0
    a(f'v_lshrrev_b32 v{tmpv}, 4, v9')
    a(f'v_and_b32 v{vO}, 1, v{tmpv}')
    a(f'v_lshlrev_b32 v{vO}, 5, v{vO}')
    a(f'v_lshrrev_b32 v{tmpv}, 1, v{tmpv}')
    a(f'v_lshl_add_u32 v{vO}, v{tmpv}, 4, v{vO}')
    a(f'v_lshl_add_u32 v{vO}, v{vI}, 12, v{vO}')
    a(f's_lshl_b32 s{S_T0}, s{S_RB}, 18')
    a(f's_lshl_b32 s{S_T0+1}, s{S_G}, 7')
    a(f's_add_u32 s{S_T0}, s{S_T0}, s{S_T0+1}')
    a(f's_lshl_b32 s{S_T0+1}, s{S_H}, 6')
    a(f's_add_u32 s{S_T0}, s{S_T0}, s{S_T0+1}')
    a(f's_add_u32 s{S_T0}, s{S_T0}, {par * 2048}')
    streams = []
    for t in range(4):
        s = []
        o = acc[1, 0, t]
        s.append(cvt(o, S0[t], S0[t] + 1)); s.append(cvt(o + 1, S0[t] + 2, S0[t] + 3))
        s.append(cvt(o + 2, S1[t], S1[t] + 1)); s.append(cvt(o + 3, S1[t] + 2, S1[t] + 3))
        s.append(f'v_permlane16_swap_b32 v{o}, v{o+2}')
        s.append(f'v_permlane16_swap_b32 v{o+1}, v{o+3}')
        streams.append(s)
    for x in interleave(streams): a(x)
    for t in range(4):
        o = acc[1, 0, t]
        a(f'buffer_store_dwordx4 v[{o}:{o+3}], v{vO}, s[{S_O}:{S_O+3}], s{S_T0} offen')
        if t < 3: a(f's_add_u32 s{S_T0}, s{S_T0}, 65536')
    a('s_endpgm')

def gen_a(a, opts):
    for L in range(4):
        kernel_head(a, f'pa{L}_kernel')
        load_ptr(a, S_LN, K_WS); load_ptr(a, S_W, K_AWQKV if L % 2 == 0 else K_BWQKV); load_ptr(a, S_O, K_WS)
        a('s_waitcnt lgkmcnt(0)')
        add_ptr(a, S_LN, (WS_LN + L) * MB4); add_ptr(a, S_O, (WS_O + L) * MB4)
        a('s_branch pa_body')
    a.label('pa_body')
    a('s_cmp_ge_u32 s2, 256')
    a('s_cbranch_scc1 pa_done')
    make_srd(a, S_LN, MB4); make_srd(a, S_W, 1024 * 6144); make_srd(a, S_O, MB4)
    decode_wg(a, S_RB, S_G, S_T0)
    a('v_lshrrev_b32 v1, 6, v0')
    a(f'v_readfirstlane_b32 s{S_WAVE}, v1')
    a(f's_lshr_b32 s{S_H}, s{S_WAVE}, 1')
    a(f's_and_b32 s{S_H}, s{S_H}, 1')
    for w in range(4, 8):
        a(f's_cmp_eq_u32 s{S_WAVE}, {w}'); a(f's_cbranch_scc1 pa_prod{w-4}')
    a(f's_bitcmp1_b32 s{S_WAVE}, 0')
    a('s_cbranch_scc1 pa_cons1')
    a_consumer(a, 0, 'p0', opts)
    a.label('pa_cons1')
    a_consumer(a, 1, 'p1', opts)
    for pw in range(4):
        a.label(f'pa_prod{pw}')
        a_producer(a, pw, f'w{pw}')
    a.label('pa_done')
    a('s_endpgm')

S_OI, S_WO, S_XI, S_XO = 4, 8, 12, 28
B_LDS = 131072
DEPTH = 16

def b_producer(a):
    a('v_and_b32 v5, 63, v0')
    a('v_lshrrev_b32 v6, 3, v5'); a('v_and_b32 v7, 7, v5'); a('v_lshrrev_b32 v8, 4, v5')
    vW = [3, 4]
    for par in range(2):
        a('v_and_b32 v9, 1, v8')
        a(f'v_or_b32 v9, {2*par}, v9')
        a('v_lshlrev_b32 v9, 1, v9')
        a('v_xor_b32 v9, v9, v7')
        a('v_lshlrev_b32 v9, 4, v9')
        a(f'v_lshl_add_u32 v{vW[par]}, v6, 11, v9')
    a(f's_sub_u32 s{S_T0}, s{S_WAVE}, 4')
    a(f's_lshl_b32 s{S_T0}, s{S_T0}, 2')
    a(f's_lshl_b32 s{S_SLOTA}, s{S_T0}, 10')
    a(f's_lshl_b32 s{S_KA}, s{S_T0}, 14')
    a(f's_lshl_b32 s{S_T0+1}, s{S_G}, 7')
    a(f's_add_u32 s{S_KA}, s{S_KA}, s{S_T0+1}')
    for j in range(8):
        for n in range(4):
            a(f's_add_u32 m0, s{S_SLOTA}, {j*16384 + n*1024}')
            a(f's_add_u32 s{S_TMP}, s{S_KA}, {(j*16 + n) * 16384}')
            a(f'buffer_load_dwordx4 v{vW[n & 1]}, s[{S_WO}:{S_WO+3}], s{S_TMP} offen lds')
    for j in range(8):
        a(f's_waitcnt vmcnt({28 - 4*j})')
        a('s_barrier')
    a('s_endpgm')

def b_consumer(a, opts):
    R = Regs(12, 256)
    acc = {(f, t): R.get(4, 4) for f in range(4) for t in range(2)}
    wb = [[R.get(4, 4) for f in range(4)] for b in range(2)]
    ring = [[R.get(4, 4) for t in range(2)] for d in range(DEPTH)]
    xr = {(t, P): R.get(4, 4) for t in range(2) for P in range(2)}
    vT, vX = 1, 2
    vW = [3, 4, 5, 6]
    a('v_and_b32 v9, 63, v0')
    a('v_and_b32 v10, 15, v9')
    a('v_lshrrev_b32 v11, 4, v9')
    a(f's_lshl_b32 s{S_T0}, s{S_RB}, 2')
    a(f's_add_u32 s{S_T0}, s{S_T0}, s{S_WAVE}')
    a(f's_lshl_b32 s{S_KA}, s{S_T0}, 16')
    a(f's_add_u32 s{S_KW}, s{S_KA}, 32768')
    a(f'v_lshlrev_b32 v{vT}, 11, v10')
    a(f'v_lshl_add_u32 v{vT}, v11, 4, v{vT}')
    a('v_and_b32 v7, 1, v11'); a('v_lshlrev_b32 v7, 5, v7')
    a('v_lshrrev_b32 v8, 1, v11'); a('v_lshl_add_u32 v7, v8, 4, v7')
    a(f'v_lshl_add_u32 v{vX}, v10, 11, v7')
    a(f's_lshl_b32 s{S_T0+1}, s{S_G}, 7')
    a(f's_add_u32 s{S_SLOTA}, s{S_KA}, s{S_T0+1}')
    a(f's_add_u32 s{S_SLOTW}, s{S_SLOTA}, 32768')
    for t in range(2):
        for P in range(2):
            r = xr[t, P]
            a(f'buffer_load_dwordx4 v[{r}:{r+3}], v{vX}, s[{S_XI}:{S_XI+3}], s{S_SLOTA if t == 0 else S_SLOTW} offen offset:{64*P}')
    def tok_load(ks):
        for t in range(2):
            r = ring[ks % DEPTH][t]
            a(f'buffer_load_dwordx4 v[{r}:{r+3}], v{vT}, s[{S_OI}:{S_OI+3}], s{S_KA if t == 0 else S_KW} offen offset:{64*ks}')
    for ks in range(DEPTH): tok_load(ks)
    a('v_lshrrev_b32 v7, 2, v10')
    a('v_lshl_add_u32 v8, v11, 3, v7')
    a('v_lshlrev_b32 v8, 7, v8')
    a('v_and_b32 v10, 3, v10')
    a('v_lshl_add_u32 v8, v10, 3, v8')
    a('v_lshrrev_b32 v7, 1, v7')
    a('v_and_b32 v10, 1, v11')
    a('v_lshl_add_u32 v7, v10, 1, v7')
    for f in range(4):
        a(f'v_xor_b32 v10, {f}, v7')
        a(f'v_lshl_add_u32 v{vW[f]}, v10, 5, v8')
    for r in acc.values():
        for j in range(4): a(f'v_mov_b32 v{r+j}, 0')
    def wreads(ks):
        b = ks & 1; out = []
        for f in range(4):
            for j in range(2):
                r = wb[b][f] + 2*j
                out.append(f'ds_read_b64_tr_b16 v[{r}:{r+1}], v{vW[f]} offset:{(ks % 16)*4096 + j*512}')
        return out
    a('s_barrier')
    for x in wreads(0): a(x)
    tail = []
    for ks in range(32):
        b = ks & 1
        nxt = []
        if ks + 1 < 32:
            if (ks + 1) % 4 == 0: a('s_barrier')
            if ks + 1 == 16:
                for f in range(4): a(f'v_add_u32 v{vW[f]}, 0x10000, v{vW[f]}')
            nxt = wreads(ks + 1)
        later = min(ks + DEPTH - 1, 31) - ks
        a(f's_waitcnt vmcnt({2*later}) lgkmcnt(0)')
        ms = []
        for f in range(4):
            for t in range(2):
                c = acc[f, t]; w = wb[b][f]; x = ring[ks % DEPTH][t]
                ms.append(f'v_mfma_f32_16x16x32_bf16 v[{c}:{c+3}], v[{w}:{w+3}], v[{x}:{x+3}], v[{c}:{c+3}]')
        for i, m in enumerate(ms):
            a(m)
            if i < len(nxt): a(nxt[i])
        if ks + DEPTH < 32: tok_load(ks + DEPTH)
    a(f's_mov_b32 s{S_C0+1}, 0xffff0000')
    def cvt(dst, s0, s1): return f'v_cvt_pk_bf16_f32 v{dst}, v{s0}, v{s1}'
    streams = []
    tmpbase = ring[0][0]
    n = 0
    for t in range(2):
        for P in range(2):
            s = []
            y = tmpbase + 24 * n; n += 1
            c0 = acc[2*P, t]; c1 = acc[2*P + 1, t]
            if opts.get('round_y', True):
                s += [cvt(y, c0, c0+1), cvt(y+1, c0+2, c0+3), cvt(y+2, c1, c1+1), cvt(y+3, c1+2, c1+3)]
                s += [f'v_permlane16_swap_b32 v{y}, v{y+2}', f'v_permlane16_swap_b32 v{y+1}, v{y+3}']
                for j in range(4):
                    s.append(f'v_lshlrev_b32 v{y+4+2*j}, 16, v{y+j}')
                    s.append(f'v_and_b32 v{y+5+2*j}, s{S_C0+1}, v{y+j}')
            else:
                raise NotImplementedError
            x = xr[t, P]
            for j in range(4):
                s.append(f'v_lshlrev_b32 v{y+12+2*j}, 16, v{x+j}')
                s.append(f'v_and_b32 v{y+13+2*j}, s{S_C0+1}, v{x+j}')
            for j in range(8): s.append(f'v_add_f32 v{y+4+j}, v{y+4+j}, v{y+12+j}')
            for j in range(4): s.append(cvt(y+j, y+4+2*j, y+5+2*j))
            s.append(f'buffer_store_dwordx4 v[{y}:{y+3}], v{vX}, s[{S_XO}:{S_XO+3}], s{S_SLOTA if t == 0 else S_SLOTW} offen offset:{64*P}')
            streams.append(s)
    for x in interleave(streams): a(x)
    a('s_endpgm')

def gen_b(a, opts):
    for L in range(4):
        kernel_head(a, f'pb{L}_kernel')
        load_ptr(a, S_OI, K_WS); load_ptr(a, S_WO, K_AWO if L % 2 == 0 else K_BWO)
        k, add = xsrc(L); k2, add2 = xdst(L)
        load_ptr(a, S_XI, k); load_ptr(a, S_XO, k2)
        a('s_waitcnt lgkmcnt(0)')
        add_ptr(a, S_OI, (WS_O + L) * MB4); add_ptr(a, S_XI, add); add_ptr(a, S_XO, add2)
        a('s_branch pb_body')
    a.label('pb_body')
    a('s_cmp_ge_u32 s2, 256')
    a('s_cbranch_scc1 pb_done')
    make_srd(a, S_OI, MB4); make_srd(a, S_WO, 1024 * 2048); make_srd(a, S_XI, MB4); make_srd(a, S_XO, MB4)
    decode_wg(a, S_RB, S_G, S_T0)
    a('v_lshrrev_b32 v1, 6, v0')
    a(f'v_readfirstlane_b32 s{S_WAVE}, v1')
    a(f's_cmp_ge_u32 s{S_WAVE}, 4')
    a('s_cbranch_scc1 pb_prod')
    b_consumer(a, opts)
    a.label('pb_prod')
    b_producer(a)
    a.label('pb_done')
    a('s_endpgm')

def build(opts):
    a = Asm()
    gen_ln(a, opts.get('ln_faithful', True))
    gen_a(a, opts)
    gen_b(a, opts)
    n = a.pad_hazards()
    hdr = open('interleave_layers__sliding_local_dilated__sliding_local_dilated__prompt.s.ref').read().split('\n')
    lines = [l for l in hdr if l.startswith(';') and '@launch' not in l and 'Override launch' not in l and 'grid=ceil' not in l]
    lines = lines[:11]
    for L in range(opts.get('layers', 4)):
        lines.append(f'; @launch kernel=ln{L}_kernel grid=(256,1,1) block=(256,1,1) lds=0')
        lines.append(f'; @launch kernel=pa{L}_kernel grid=(256,1,1) block=(512,1,1) lds={A_LDS}')
        lines.append(f'; @launch kernel=pb{L}_kernel grid=(256,1,1) block=(512,1,1) lds={B_LDS}')
    out = '\n'.join(lines) + '\n.amdgcn_target "amdgcn-amd-amdhsa--gfx950"\n.text\n' + a.text()
    out += '.section .rodata,"a"\n.p2align 6\n'
    for L in range(4):
        out += kernel_desc(f'ln{L}_kernel', 48) + '.p2align 6\n'
        out += kernel_desc(f'pa{L}_kernel', 256) + '.p2align 6\n'
        out += kernel_desc(f'pb{L}_kernel', 256) + '.p2align 6\n'
    return out, n

if __name__ == '__main__':
    opts = {}
    for kv in sys.argv[2:]:
        k, v = kv.split('='); opts[k] = eval(v)
    out, n = build(opts)
    open(sys.argv[1], 'w').write(out)
    print('written', sys.argv[1], 'nops inserted:', n, 'bytes', len(out))
```

```python
import sys
sys.path.insert(0, 'work')
from asmlib import Asm

NAME = 'interleave_layers__sliding_local_dilated__sliding_local_dilated__prompt'
MB = 1 << 20
K_AX, K_AWQKV, K_AWO, K_BX, K_BWQKV, K_BWO, K_OUT, K_DBG, K_WS = 0, 8, 16, 24, 32, 40, 48, 56, 64
SRD3 = 0x00020000
X_OFF, O_OFF, LSTRIDE = 0, 16 * MB, 4 * MB
S_OFF, S_LSTRIDE = 32 * MB, 256 * 1024
CSP_OFF = 33 * MB
FX_OFF = 34 * MB
FO_OFF = FX_OFF + 8192
FC_OFF = FX_OFF + 16384
E_OFF = FX_OFF + 32768
WS_USED = 35 * MB
ST_OFF = 200 * MB
A_SLOT, W_SLOT = 18432, 24576
W0 = 3 * A_SLOT
HALO0 = 131072
NM0 = HALO0 + 4096
RS0 = NM0 + 1024
CS0 = RS0 + 1024
NONCE0 = CS0 + 2048
LDS_SIZE = NONCE0 + 256
S_WS, S_WQ, S_WO, S_AX, S_OUT, S_DBG = 4, 8, 12, 16, 20, 24
P_AWQ, P_BWQ, P_AWO, P_BWO = 28, 30, 32, 34
S_RBA, S_GA, S_RBB, S_GB, S_WAVE, S_H, S_L, S_NONCE, S_TAG = 36, 37, 38, 39, 40, 41, 42, 43, 44
T0, T1, T2, T3, T4, T5 = 45, 46, 47, 48, 49, 50
S_TMP = 51
S_C0 = 52
S_SLOTA, S_SLOTW, S_CNT, S_KA, S_KW, S_SPIN = 58, 59, 60, 61, 62, 63
S_SEL, S_VAL, S_VAL0 = 64, 72, 80
S_M1, S_M2, S_M3, S_DIAG = 88, 90, 92, 94
S_PB = 64
S_TB, S_HB, S_SB, S_SH = 70, 71, 72, 73
S_ST = 96
SPIN_MAX = 20000

OPT = {}

class Regs:
    def __init__(self, start, limit): self.n = start; self.limit = limit
    def get(self, k=1, align=1):
        self.n = (self.n + align - 1) // align * align
        r = self.n; self.n += k
        assert self.n <= self.limit, 'out of registers'
        return r

def cvt(dst, s0, s1): return f'v_cvt_pk_bf16_f32 v{dst}, v{s0}, v{s1}'
def mfma(d, A, B, c=None):
    cs = '0' if c is None else f'v[{c}:{c+3}]'
    return f'v_mfma_f32_16x16x32_bf16 v[{d}:{d+3}], v[{A}:{A+3}], v[{B}:{B+3}], {cs}'
def srd(r): return f's[{r}:{r+3}]'

def interleave(lists):
    out = []
    n = max(len(x) for x in lists)
    for i in range(n):
        for x in lists:
            if i < len(x): out.append(x[i])
    return out

def make_srd(a, r, size):
    a(f's_and_b32 s{r+1}, s{r+1}, 0xffff')
    a(f's_mov_b32 s{r+2}, {size}')
    a(f's_mov_b32 s{r+3}, {SRD3}')

V_ST = 8
class Stamps:
    n_per_layer = 12
    def put(self, a, idx, per_layer=True):
        if not OPT.get('stamps'): return
        a(f's_memrealtime s[{S_ST}:{S_ST+1}]')
        a('s_waitcnt lgkmcnt(0)')
        if per_layer:
            a(f's_mul_i32 s{S_ST+1}, s{S_L}, {self.n_per_layer}')
            a(f's_add_u32 s{S_ST+1}, s{S_ST+1}, {idx + 4}')
            a(f's_mov_b32 m0, s{S_ST+1}')
            a(f'v_writelane_b32 v{V_ST}, s{S_ST}, m0')
        else:
            a(f'v_writelane_b32 v{V_ST}, s{S_ST}, {idx}')
    def cyc(self, a, idx):
        if not OPT.get('stamps'): return
        a(f's_memtime s[{S_ST}:{S_ST+1}]')
        a('s_waitcnt lgkmcnt(0)')
        a(f'v_writelane_b32 v{V_ST}, s{S_ST}, {idx}')
    def flush(self, a):
        if not OPT.get('stamps'): return
        a(f's_lshl_b32 s{T0}, s2, 3')
        a(f's_add_u32 s{T0}, s{T0}, s{S_WAVE}')
        a(f's_lshl_b32 s{T0}, s{T0}, 8')
        a(f's_add_u32 s{T0}, s{T0}, {ST_OFF}')
        a('v_and_b32 v1, 63, v0')
        a('v_lshlrev_b32 v1, 2, v1')
        a(f'buffer_store_dword v{V_ST}, v1, {srd(S_WS)}, s{T0} offen')
        a('s_waitcnt vmcnt(0)')
ST = Stamps()

def poll(a, tag, loads, vt, code):
    lp = a.uniq('poll'); dn = a.uniq('polled')
    a(f's_mov_b32 s{S_SPIN}, 0')
    a.label(lp)
    for n, (va, so) in enumerate(loads):
        a(f'buffer_load_dword v{vt+n}, v{va}, {srd(S_WS)}, s{so} offen sc1')
    a('s_waitcnt vmcnt(0)')
    for n in range(len(loads)):
        a(f'v_subrev_u32 v{vt+n}, s{tag}, v{vt+n}')
    if len(loads) == 2:
        a(f'v_max_u32 v{vt}, v{vt}, v{vt+1}')
    a(f'v_cmp_gt_u32 vcc, 8, v{vt}')
    a('s_cmp_eq_u64 vcc, -1')
    a(f's_cbranch_scc1 {dn}')
    a(f's_add_u32 s{S_SPIN}, s{S_SPIN}, 1')
    a(f's_cmp_lt_u32 s{S_SPIN}, {SPIN_MAX}')
    a(f's_cbranch_scc1 {lp}')
    a(f'v_mov_b32 v{vt}, {code}')
    a(f's_mov_b32 s{S_SPIN}, 16')
    a(f'buffer_store_dword v{vt}, off, {srd(S_DBG)}, s{S_SPIN}')
    a.label(dn)

def flag_store(a, soff, tag, vt):
    a(f'v_mov_b32 v{vt}, s{tag}')
    a('s_mov_b64 exec, 1')
    a(f'buffer_store_dword v{vt}, off, {srd(S_WS)}, s{soff} sc1')
    a('s_mov_b64 exec, -1')

def set_layer_srds(a):
    a(f's_bitcmp1_b32 s{S_L}, 0')
    a(f's_cselect_b32 s{S_WQ}, s{P_BWQ}, s{P_AWQ}')
    a(f's_cselect_b32 s{S_WQ+1}, s{P_BWQ+1}, s{P_AWQ+1}')
    a(f's_cselect_b32 s{S_WO}, s{P_BWO}, s{P_AWO}')
    a(f's_cselect_b32 s{S_WO+1}, s{P_BWO+1}, s{P_AWO+1}')

class C: pass
def consumer_regs():
    c = C()
    R = Regs(10, 256)
    c.acc = {}
    for u in range(3):
        for f in range(2):
            for t in range(4): c.acc[u, f, t] = R.get(4, 4)
    c.accH = [R.get(4, 4), R.get(4, 4)]
    c.buf = []
    for b in range(2):
        d = {}
        for u in range(3):
            for f in range(2): d['w', u, f] = R.get(4, 4)
        for t in range(5): d['t', t] = R.get(4, 4)
        c.buf.append(d)
    c.buf0 = c.buf[0]['w', 0, 0]; c.buf1 = c.buf[1]['w', 0, 0]
    c.xr = {(tt, P): R.get(4, 4) for tt in range(2) for P in range(2)}
    c.M1 = [R.get(), R.get()]
    c.vXrow = R.get(); c.vFrag = R.get(); c.vStat = R.get()
    c.vWB = [R.get() for _ in range(4)]
    c.vI = R.get()
    c.Vp = [R.get(10, 2), R.get(10, 2)]
    c.vA, c.vW0, c.vW1, c.vAb, c.vW0b, c.vW1b, c.tmp, c.lane = 1, 2, 3, 4, 5, 6, 7, 9
    c.top = R.n
    return c

def stats_and_store(a, c, last_ok=True):
    tb = c.buf0
    ones = tb; D = [tb + 4, tb + 8, tb + 12, tb + 16]
    for j in range(4): a(f'v_mov_b32 v{ones+j}, 0x3f803f80')
    a(f's_add_u32 s{T1}, s{T0}, 8192')
    for tt in range(2):
        for P in range(2):
            r = c.xr[tt, P]
            a(f'buffer_store_dwordx4 v[{r}:{r+3}], v{c.vFrag}, {srd(S_WS)}, s{T0 if P == 0 else T1} offen offset:{1024*tt} sc1')
    for P in range(2):
        for tt in range(2):
            r = c.xr[tt, P]
            a(mfma(D[2*tt], ones, r, None if P == 0 else D[2*tt]))
            a(mfma(D[2*tt+1], r, r, None if P == 0 else D[2*tt+1]))
    for tt in range(2):
        s, g = D[2*tt], D[2*tt+1]
        a(f'v_cndmask_b32 v{s+1}, v{g}, v{g+1}, s[{S_M1}:{S_M1+1}]')
        a(f'v_cndmask_b32 v{s+1}, v{s+1}, v{g+2}, s[{S_M2}:{S_M2+1}]')
        a(f'v_cndmask_b32 v{s+1}, v{s+1}, v{g+3}, s[{S_M3}:{S_M3+1}]')
    a(f's_mov_b64 exec, s[{S_DIAG}:{S_DIAG+1}]')
    for tt in range(2):
        s = D[2*tt]
        a(f'buffer_store_dwordx2 v[{s}:{s+1}], v{c.vStat}, {srd(S_WS)}, s{T2} offen offset:{128*tt} sc1')
    a('s_mov_b64 exec, -1')

def swap_xr(a, c):
    for tt in range(2):
        for P in range(2):
            r = c.xr[tt, P]
            a(f'v_permlane16_swap_b32 v{r}, v{r+2}')
            a(f'v_permlane16_swap_b32 v{r+1}, v{r+3}')

def x_dst_offsets(a, Lreg_plus):
    a(f's_add_u32 s{T3}, s{S_L}, {Lreg_plus}')
    a(f's_lshl_b32 s{T0}, s{T3}, 22')
    a(f's_lshl_b32 s{T4}, s{S_RBB}, 18'); a(f's_add_u32 s{T0}, s{T0}, s{T4}')
    a(f's_lshl_b32 s{T4}, s{S_GB}, 14'); a(f's_add_u32 s{T0}, s{T0}, s{T4}')
    a(f's_lshl_b32 s{T4}, s{S_WAVE}, 11'); a(f's_add_u32 s{T0}, s{T0}, s{T4}')
    if X_OFF: a(f's_add_u32 s{T0}, s{T0}, {X_OFF}')
    a(f's_lshl_b32 s{T2}, s{T3}, 18')
    a(f's_lshl_b32 s{T4}, s{S_RBB}, 14'); a(f's_add_u32 s{T2}, s{T2}, s{T4}')
    a(f's_lshl_b32 s{T4}, s{S_GB}, 10'); a(f's_add_u32 s{T2}, s{T2}, s{T4}')
    a(f's_lshl_b32 s{T4}, s{S_WAVE}, 8'); a(f's_add_u32 s{T2}, s{T2}, s{T4}')
    a(f's_add_u32 s{T2}, s{T2}, {S_OFF}')

def xflag_off(a, dst):
    a(f's_lshl_b32 s{dst}, s{S_RBB}, 9')
    a(f's_lshl_b32 s{T4}, s{S_WAVE}, 7'); a(f's_add_u32 s{dst}, s{dst}, s{T4}')
    a(f's_lshl_b32 s{T4}, s{S_GB}, 2'); a(f's_add_u32 s{dst}, s{dst}, s{T4}')
    a(f's_add_u32 s{dst}, s{dst}, {FX_OFF}')

def row_offsets(a):
    a(f's_lshl_b32 s{T0}, s{S_RBB}, 7')
    a(f's_and_b32 s{T4}, s{S_WAVE}, 1'); a(f's_lshl_b32 s{T4}, s{T4}, 6'); a(f's_add_u32 s{T0}, s{T0}, s{T4}')
    a(f's_lshr_b32 s{T4}, s{S_WAVE}, 1'); a(f's_add_u32 s{T0}, s{T0}, s{T4}')
    a(f's_lshl_b32 s{T0}, s{T0}, 11')
    a(f's_lshl_b32 s{T4}, s{S_GB}, 7'); a(f's_add_u32 s{T0}, s{T0}, s{T4}')
    a(f's_add_u32 s{T1}, s{T0}, 65536')

def consumer_prologue(a, c):
    L = c.lane; tA, tB, tC, tD = c.buf0, c.buf0 + 1, c.buf0 + 2, c.buf0 + 3
    a(f'v_and_b32 v{L}, 63, v0')
    a(f'v_and_b32 v{c.vI}, 15, v{L}')
    a(f'v_lshrrev_b32 v{tB}, 4, v{L}')
    a(f'v_and_b32 v{tC}, 1, v{tB}'); a(f'v_lshlrev_b32 v{tC}, 1, v{tC}')
    a(f'v_lshrrev_b32 v{tD}, 1, v{tB}'); a(f'v_add_u32 v{tC}, v{tC}, v{tD}')
    a(f'v_lshlrev_b32 v{c.vXrow}, 4, v{tC}')
    a(f'v_lshl_add_u32 v{c.vXrow}, v{c.vI}, 12, v{c.vXrow}')
    a(f'v_lshlrev_b32 v{c.vFrag}, 8, v{tC}')
    a(f'v_lshl_add_u32 v{c.vFrag}, v{c.vI}, 4, v{c.vFrag}')
    a(f'v_lshlrev_b32 v{c.vStat}, 3, v{c.vI}')
    a(f'v_lshlrev_b32 v{c.vAb}, 4, v{L}')
    row_offsets(a)
    for tt in range(2):
        for P in range(2):
            r = c.xr[tt, P]
            a(f'buffer_load_dwordx4 v[{r}:{r+3}], v{c.vXrow}, {srd(S_AX)}, s{T0 if tt == 0 else T1} offen offset:{64*P}')
    a(f'v_lshrrev_b32 v{tC}, 2, v{c.vI}')
    a(f'v_lshl_add_u32 v{tD}, v{tB}, 3, v{tC}')
    a(f'v_lshlrev_b32 v{c.vW0b}, 7, v{tD}')
    a(f'v_and_b32 v{tD}, 3, v{c.vI}')
    a(f'v_lshl_add_u32 v{c.vW0b}, v{tD}, 3, v{c.vW0b}')
    a(f'v_lshrrev_b32 v{tC}, 1, v{tC}')
    a(f'v_and_b32 v{tD}, 1, v{tB}')
    a(f'v_lshl_add_u32 v{tC}, v{tD}, 1, v{tC}')
    for f in range(4):
        a(f'v_xor_b32 v{tD}, {f}, v{tC}')
        a(f'v_lshl_add_u32 v{c.vWB[f]}, v{tD}, 5, v{c.vW0b}')
    a(f's_lshl_b32 s{T0}, s{S_H}, 1')
    a(f'v_xor_b32 v{tC}, s{T0}, v{tC}')
    a(f'v_xor_b32 v{tD}, 1, v{tC}')
    a(f'v_lshl_add_u32 v{c.vW1b}, v{tD}, 5, v{c.vW0b}')
    a(f'v_lshl_add_u32 v{c.vW0b}, v{tC}, 5, v{c.vW0b}')
    vK, tmpv = tA, tD
    a(f'v_lshlrev_b32 v{vK}, 2, v{tB}')
    for r in range(4):
        sel = S_SEL + 2*r; val = S_VAL + 2*r; val0 = S_VAL0 + 2*r
        a(f'v_add_u32 v{tmpv}, {r}, v{vK}')
        a(f'v_cmp_le_u32 s[{sel}:{sel+1}], v{tmpv}, v{c.vI}')
        a(f'v_sub_u32 v{tmpv}, v{c.vI}, v{tmpv}')
        a(f'v_and_b32 v{tmpv}, 15, v{tmpv}')
        a(f'v_cmp_gt_u32 s[{val}:{val+1}], 8, v{tmpv}')
        a(f's_and_b64 s[{val0}:{val0+1}], s[{val}:{val+1}], s[{sel}:{sel+1}]')
        a(f's_cmp_eq_u32 s{S_RBA}, 0')
        a(f's_cselect_b64 s[{val0}:{val0+1}], s[{val0}:{val0+1}], s[{val}:{val+1}]')
    a(f'v_mov_b32 v{tC}, 0xffff'); a(f'v_mov_b32 v{tA}, 0xffff0000')
    for j in range(2):
        s0 = S_SEL + 4*j; s1 = s0 + 2
        a(f'v_cndmask_b32 v{c.M1[j]}, 0, v{tC}, s[{s0}:{s0+1}]')
        a(f'v_cndmask_b32 v{tmpv}, 0, v{tA}, s[{s1}:{s1+1}]')
        a(f'v_or_b32 v{c.M1[j]}, v{c.M1[j]}, v{tmpv}')
    a(f'v_and_b32 v{tC}, 3, v{c.vI}')
    a(f'v_cmp_eq_u32 s[{S_M1}:{S_M1+1}], 1, v{tC}')
    a(f'v_cmp_eq_u32 s[{S_M2}:{S_M2+1}], 2, v{tC}')
    a(f'v_cmp_eq_u32 s[{S_M3}:{S_M3+1}], 3, v{tC}')
    a(f'v_lshrrev_b32 v{tC}, 2, v{c.vI}')
    a(f'v_cmp_eq_u32 s[{S_DIAG}:{S_DIAG+1}], v{tC}, v{tB}')
    a(f's_mov_b32 s{S_C0+2}, 0x3e8293ee')
    a(f's_mov_b32 s{S_C0+1}, 0xffff0000')
    x_dst_offsets(a, 0)
    a('s_waitcnt vmcnt(0)')
    ST.put(a, 1, False)
    stats_and_store(a, c)
    swap_xr(a, c)
    xflag_off(a, T5)
    a('s_waitcnt vmcnt(0)')
    a('s_barrier')
    a(f'v_mov_b32 v{c.tmp}, {NONCE0}')
    a(f'ds_read_b32 v{c.tmp}, v{c.tmp}')
    a('s_waitcnt lgkmcnt(0)')
    a(f'v_readfirstlane_b32 s{S_NONCE}, v{c.tmp}')
    a(f's_add_u32 s{S_TAG}, s{S_NONCE}, 1')
    flag_store(a, T5, S_TAG, c.tmp)
    ST.put(a, 2, False)

def a_consumer(a, c, par):
    acc, accH, buf = c.acc, c.accH, c.buf
    vA, vW0, vW1 = c.vA, c.vW0, c.vW1
    tag = f'p{par}'
    a.label(f'a_cons_{tag}')
    for k, r in list(acc.items()) + [(0, accH[0]), (1, accH[1])]:
        for j in range(0, 4): a(f'v_mov_b32 v{r+j}, 0')
    a(f's_mov_b32 s{S_SLOTA}, 0'); a(f's_mov_b32 s{S_SLOTW}, {W0}')
    a(f'v_mov_b32 v{vA}, v{c.vAb}')
    a(f'v_add_u32 v{vW0}, s{S_SLOTW}, v{c.vW0b}')
    a(f'v_add_u32 v{vW1}, s{S_SLOTW}, v{c.vW1b}')
    def reads(b, ks):
        d = buf[b]; out = []
        for u in range(3):
            for f in range(2):
                vW = vW0 if f == 0 else vW1
                for j in range(2):
                    r = d['w', u, f] + 2 * j
                    out.append(f'ds_read_b64_tr_b16 v[{r}:{r+1}], v{vW} offset:{u*8192 + ks*4096 + j*512}')
        for t in range(5):
            tau = par * 4 + t if t < 4 else 8
            r = d['t', t]
            out.append(f'ds_read_b128 v[{r}:{r+3}], v{vA} offset:{ks*9216 + tau*1024}')
        wq = out[0:4]; wk = out[4:8]; wv = out[8:12]; tt = out[12:17]
        return wq[0:2] + tt[0:4] + wq[2:4] + wk + wv + tt[4:5]
    def mfmas(b, halo_first=False):
        d = buf[b]; out = []; h = []
        for u in range(3):
            for f in range(2):
                for t in range(4):
                    cc = acc[u, f, t]; w = d['w', u, f]; x = d['t', t]
                    A, B = (w, x) if u < 2 else (x, w)
                    out.append(mfma(cc, A, B, cc))
        for f in range(2):
            cc = accH[f]; x = d['t', 4]
            A, B = (d['w', 1, f], x) if par == 0 else (x, d['w', 2, f])
            h.append(mfma(cc, A, B, cc))
        return h + out if halo_first else out + h
    def step(ms, fill, late=()):
        fl = list(fill) + list(late)
        for i, x in enumerate(ms):
            a(x)
            if i < len(fl): a(fl[i])
        for x in fl[len(ms):]: a(x)
    adv = [f's_add_u32 s{S_SLOTA}, s{S_SLOTA}, {A_SLOT}',
           f's_add_u32 s{S_SLOTW}, s{S_SLOTW}, {W_SLOT}',
           f's_cmp_eq_u32 s{S_SLOTA}, {3 * A_SLOT}',
           f's_cselect_b32 s{S_SLOTA}, 0, s{S_SLOTA}',
           f's_cselect_b32 s{S_SLOTW}, {W0}, s{S_SLOTW}',
           f'v_add_u32 v{vA}, s{S_SLOTA}, v{c.vAb}',
           f'v_add_u32 v{vW0}, s{S_SLOTW}, v{c.vW0b}',
           f'v_add_u32 v{vW1}, s{S_SLOTW}, v{c.vW1b}']
    a(f's_mov_b32 s{S_CNT}, 0')
    a('s_barrier')
    ST.put(a, 0)
    a('s_barrier')
    ST.put(a, 1)
    for x in reads(0, 0): a(x)
    a('s_waitcnt lgkmcnt(0)')
    lp = f'ac_loop_{tag}'
    a.label(lp)
    step(mfmas(0), reads(1, 1), adv)
    a('s_waitcnt lgkmcnt(0)')
    a('s_barrier')
    step(mfmas(1), reads(0, 0), [f's_add_u32 s{S_CNT}, s{S_CNT}, 1', f's_cmp_lt_u32 s{S_CNT}, 15'])
    a('s_waitcnt lgkmcnt(0)')
    a(f's_cbranch_scc1 {lp}')
    step(mfmas(0), reads(1, 1))
    b0 = c.buf0
    colst = [b0 + 2*t for t in range(5)]
    csq = [b0 + 12, b0 + 16]; csk = [b0 + 20, b0 + 24]; csv = b0 + 10
    v4 = {0: (b0 + 28, b0 + 32), 1: (b0 + 36, b0 + 40)}
    b1 = c.buf1
    v4.update({2: (b1, b1 + 4), 3: (b1 + 8, b1 + 12), 4: (b1 + 16, b1 + 20)})
    vS, vS4, vC4, vC = vA, vW0, vW1, c.tmp
    pre = [f's_and_b32 s{T0}, s{S_L}, 1',
           f's_lshl_b32 s{T0}, s{T0}, 10',
           f's_lshl_b32 s{T1}, s{S_H}, 7',
           f's_add_u32 s{T0}, s{T0}, s{T1}',
           f's_add_u32 s{T0}, s{T0}, {CS0}',
           f'v_lshlrev_b32 v{vS}, 2, v{c.vI}',
           f'v_and_b32 v{vS4}, 0x30, v{c.lane}',
           f'v_add_u32 v{vC4}, s{T0}, v{vS4}',
           f'v_add_u32 v{vC}, s{T0}, v{vS}',
           f'v_add_u32 v{vS}, {NM0}, v{vS}',
           f'v_add_u32 v{vS4}, {NM0}, v{vS4}']
    for x in pre: a(x)
    a('s_waitcnt lgkmcnt(0)')
    a('s_barrier')
    def tile_of(t): return par * 4 + t if t < 4 else 8
    rd = []
    htile = 4
    if par == 0:
        rd += [f'ds_read_b32 v{colst[4]}, v{vS} offset:{8*64}', f'ds_read_b32 v{colst[4]+1}, v{vS} offset:{8*64 + 1024}']
    for f in range(2): rd.append(f'ds_read_b128 v[{csk[f]}:{csk[f]+3}], v{vC4} offset:{256 + 64*f}')
    for f in range(2): rd.append(f'ds_read_b32 v{csv+f}, v{vC} offset:{512 + 64*f}')
    v4order = [4, 0, 1, 2, 3] if par == 1 else [0, 1, 2, 3]
    slots = [v4[0], v4[1], v4[2], v4[3], v4[4]]
    v4m = {t: slots[n] for n, t in enumerate(v4order)}
    def v4read(t):
        return [f'ds_read_b128 v[{v4m[t][0]}:{v4m[t][0]+3}], v{vS4} offset:{tile_of(t)*64}',
                f'ds_read_b128 v[{v4m[t][1]}:{v4m[t][1]+3}], v{vS4} offset:{tile_of(t)*64 + 1024}']
    for t in v4order[:2]: rd += v4read(t)
    for t in range(4):
        rd += [f'ds_read_b32 v{colst[t]}, v{vS} offset:{tile_of(t)*64}', f'ds_read_b32 v{colst[t]+1}, v{vS} offset:{tile_of(t)*64 + 1024}']
    for f in range(2): rd.append(f'ds_read_b128 v[{csq[f]}:{csq[f]+3}], v{vC4} offset:{64*f}')
    step(mfmas(1, True), rd)
    for t in v4order[2:]:
        for x in v4read(t): a(x)
    ST.put(a, 2)
    def fix_col(r, cs, pair, scale):
        o = []
        for j in (0, 2):
            o.append(f'v_pk_fma_f32 v[{r+j}:{r+j+1}], v[{cs+j}:{cs+j+1}], v[{pair}:{pair+1}], v[{r+j}:{r+j+1}] op_sel_hi:[1,0,1]')
        if scale:
            for j in (0, 2):
                o.append(f'v_pk_mul_f32 v[{r+j}:{r+j+1}], v[{r+j}:{r+j+1}], v[{pair}:{pair+1}] op_sel:[0,1] op_sel_hi:[1,1]')
        return o
    def fix_row(r, f, t):
        nm, rs = v4m[t]; o = []
        for j in (0, 2):
            sel = 'op_sel_hi:[1,0,1]' if f == 0 else 'op_sel:[0,1,0] op_sel_hi:[1,1,1]'
            o.append(f'v_pk_fma_f32 v[{r+j}:{r+j+1}], v[{nm+j}:{nm+j+1}], v[{csv}:{csv+1}], v[{r+j}:{r+j+1}] {sel}')
        for j in (0, 2):
            o.append(f'v_pk_mul_f32 v[{r+j}:{r+j+1}], v[{r+j}:{r+j+1}], v[{rs+j}:{rs+j+1}]')
        return o
    a('s_waitcnt lgkmcnt(0)')
    H = accH[0]
    hs = []
    for f in range(2):
        s = fix_col(accH[f], csk[f], colst[4], True) if par == 0 else fix_row(accH[f], f, 4)
        hs.append(s)
    for x in interleave(hs): a(x)
    a(cvt(H, accH[0], accH[0] + 1)); a(cvt(H + 1, accH[0] + 2, accH[0] + 3))
    a(cvt(H + 2, accH[1], accH[1] + 1)); a(cvt(H + 3, accH[1] + 2, accH[1] + 3))
    vH = vA
    a(f'v_lshlrev_b32 v{vH}, 4, v{c.lane}')
    a(f's_lshl_b32 s{T0}, s{S_H}, 11')
    a(f's_add_u32 s{T0}, s{T0}, {HALO0}')
    a(f'v_add_u32 v{vH}, s{T0}, v{vH}')
    a(f'ds_write_b128 v{vH}, v[{H}:{H+3}] offset:{0 if par == 0 else 1024}')
    Qp = [acc[0, 0, t] for t in range(4)]
    Kp = [accH[1]] + [acc[1, 0, t] for t in range(4)]
    Vp = c.Vp
    streams = []
    for t in range(4):
        s = []
        for f in range(2): s += fix_col(acc[1, f, t], csk[f], colst[t], True)
        q = acc[1, 0, t]; q1 = acc[1, 1, t]
        s += [cvt(q, q, q + 1), cvt(q + 1, q + 2, q + 3), cvt(q + 2, q1, q1 + 1), cvt(q + 3, q1 + 2, q1 + 3)]
        for f in range(2): s += fix_col(acc[0, f, t], csq[f], colst[t], False)
        q = acc[0, 0, t]; q1 = acc[0, 1, t]
        s += [cvt(q, q, q + 1), cvt(q + 1, q + 2, q + 3), cvt(q + 2, q1, q1 + 1), cvt(q + 3, q1 + 2, q1 + 3)]
        s.append(f'v_mul_f32 v{colst[t]+1}, s{S_C0+2}, v{colst[t]+1}')
        streams.append(s)
    for x in interleave(streams): a(x)
    a('s_waitcnt lgkmcnt(0)')
    a('s_barrier')
    if par == 0:
        a(f'v_xor_b32 v{vW0}, {8*16}, v{vH}')
        a(f'v_xor_b32 v{vW1}, {32*16}, v{vH}')
        vKH, vVH = vW0, vW1
    else:
        vKH = vVH = vH
    a(f'ds_read_b128 v[{Kp[0]}:{Kp[0]+3}], v{vKH}')
    a(f'ds_read_b64 v[{Vp[0]}:{Vp[0]+1}], v{vVH} offset:1024')
    a(f'ds_read_b64 v[{Vp[1]}:{Vp[1]+1}], v{vVH} offset:1032')
    S0 = [acc[0, 1, t] for t in range(4)]; S1 = [acc[1, 1, t] for t in range(4)]
    smm = []
    for t in range(4): smm.append(mfma(S1[t], Kp[t+1], Qp[t]))
    for t in range(1, 4): smm.append(mfma(S0[t], Kp[t], Qp[t]))
    vfix = []
    for t in range(4):
        for f in range(2):
            r = acc[2, f, t]
            vfix.append(fix_row(r, f, t) + [cvt(Vp[f] + 2 + 2*t, r, r + 1), cvt(Vp[f] + 3 + 2*t, r + 2, r + 3)])
    vf = interleave(vfix[0:4]) + interleave(vfix[4:8])
    n = 0
    for x in smm:
        a(x)
        for y in vf[n:n+2]: a(y)
        n += 2
    for y in vf[n:]: a(y)
    a('s_waitcnt lgkmcnt(0)')
    a(mfma(S0[0], Kp[0], Qp[0]))
    vNEG = c.tmp
    a(f'v_mov_b32 v{vNEG}, 0xf149f2ca')
    streams = []
    for t in range(4):
        s = []
        m = S0[t]; tp = acc[1, 0, t]; Pop = acc[2, 0, t]; cq = colst[t] + 1
        Ob = [acc[0, 0, t], S1[t]]
        val = (S_VAL0 if t == 0 else S_VAL)
        for r in range(4):
            s.append(f'v_cndmask_b32 v{m+r}, v{S0[t]+r}, v{S1[t]+r}, s[{S_SEL+2*r}:{S_SEL+2*r+1}]')
        for r in range(4):
            s.append(f'v_cndmask_b32 v{m+r}, v{vNEG}, v{m+r}, s[{val+2*r}:{val+2*r+1}]')
        mx, t2 = tp, tp + 1
        s.append(f'v_max3_f32 v{mx}, v{m}, v{m+1}, v{m+2}')
        s.append(f'v_max_f32 v{mx}, v{mx}, v{m+3}')
        for sw in ('16', '32'):
            s.append(f'v_mov_b32 v{t2}, v{mx}')
            s.append(f'v_permlane{sw}_swap_b32 v{mx}, v{t2}')
            s.append(f'v_max_f32 v{mx}, v{mx}, v{t2}')
        s.append(f'v_mul_f32 v{mx}, v{mx}, v{cq}')
        for r in range(4): s.append(f'v_fma_f32 v{m+r}, v{m+r}, v{cq}, -v{mx}')
        for r in range(4): s.append(f'v_exp_f32 v{m+r}, v{m+r}')
        sm = tp
        s.append(f'v_add_f32 v{sm}, v{m}, v{m+1}')
        s.append(f'v_add_f32 v{t2}, v{m+2}, v{m+3}')
        s.append(f'v_add_f32 v{sm}, v{sm}, v{t2}')
        for sw in ('16', '32'):
            s.append(f'v_mov_b32 v{t2}, v{sm}')
            s.append(f'v_permlane{sw}_swap_b32 v{sm}, v{t2}')
            s.append(f'v_add_f32 v{sm}, v{sm}, v{t2}')
        s.append(f'v_rcp_f32 v{sm}, v{sm}')
        for r in range(4): s.append(f'v_mul_f32 v{m+r}, v{m+r}, v{sm}')
        s.append(cvt(tp + 2, m, m + 1)); s.append(cvt(tp + 3, m + 2, m + 3))
        for j in range(2):
            s.append(f'v_bfi_b32 v{Pop+j}, v{c.M1[j]}, 0, v{tp+2+j}')
            s.append(f'v_and_b32 v{Pop+2+j}, v{c.M1[j]}, v{tp+2+j}')
        for f in range(2):
            s.append(mfma(Ob[f], Vp[f] + 2*t, Pop))
        o = tp
        s.append(cvt(o, Ob[0], Ob[0] + 1)); s.append(cvt(o + 1, Ob[0] + 2, Ob[0] + 3))
        s.append(cvt(o + 2, Ob[1], Ob[1] + 1)); s.append(cvt(o + 3, Ob[1] + 2, Ob[1] + 3))
        s.append(f'v_permlane16_swap_b32 v{o}, v{o+2}')
        s.append(f'v_permlane16_swap_b32 v{o+1}, v{o+3}')
        s.append(f'buffer_store_dwordx4 v[{o}:{o+3}], v{c.vFrag}, {srd(S_WS)}, s{T0 + t} offen sc1')
        streams.append(s)
    a(f's_lshl_b32 s{T0}, s{S_L}, 22')
    a(f's_lshl_b32 s{T4}, s{S_RBA}, 18'); a(f's_add_u32 s{T0}, s{T0}, s{T4}')
    a(f's_lshl_b32 s{T4}, s{S_GA}, 11'); a(f's_add_u32 s{T0}, s{T0}, s{T4}')
    a(f's_lshl_b32 s{T4}, s{S_H}, 10'); a(f's_add_u32 s{T0}, s{T0}, s{T4}')
    a(f's_add_u32 s{T0}, s{T0}, {O_OFF + par * 4 * 32768}')
    for t in range(1, 4): a(f's_add_u32 s{T0+t}, s{T0}, {32768*t}')
    for x in interleave(streams): a(x)
    ST.put(a, 3)
    a(f's_lshl_b32 s{T5}, s{S_RBA}, 9')
    a(f's_lshl_b32 s{T4}, s{S_WAVE}, 7'); a(f's_add_u32 s{T5}, s{T5}, s{T4}')
    a(f's_lshl_b32 s{T4}, s{S_GA}, 2'); a(f's_add_u32 s{T5}, s{T5}, s{T4}')
    a(f's_add_u32 s{T5}, s{T5}, {FO_OFF}')
    a('s_waitcnt vmcnt(0)')
    flag_store(a, T5, S_TAG, c.tmp)
    ST.put(a, 4)
    a('s_branch b_cons')

DEPTH = 16
def b_consumer(a, c):
    R = Regs(10, 204)
    acc = {(f, t): R.get(4, 4) for f in range(4) for t in range(2)}
    wb = [[R.get(4, 4) for f in range(4)] for b in range(2)]
    ring = [[R.get(4, 4) for t in range(2)] for d in range(DEPTH)]
    vW = c.vWB
    a.label('b_cons')
    for tt in range(2):
        for f in range(4):
            x = c.xr[tt, f >> 1] + 2 * (f & 1); r = acc[f, tt]
            for j in range(2):
                a(f'v_lshlrev_b32 v{r+2*j}, 16, v{x+j}')
                a(f'v_and_b32 v{r+2*j+1}, s{S_C0+1}, v{x+j}')
    for f in range(4): a(f'v_and_b32 v{vW[f]}, 0xffff, v{vW[f]}')
    a(f's_lshl_b32 s{S_KA}, s{S_L}, 22')
    a(f's_lshl_b32 s{T4}, s{S_RBB}, 18'); a(f's_add_u32 s{S_KA}, s{S_KA}, s{T4}')
    a(f's_lshl_b32 s{T4}, s{S_WAVE}, 16'); a(f's_add_u32 s{S_KA}, s{S_KA}, s{T4}')
    a(f's_add_u32 s{S_KA}, s{S_KA}, {O_OFF}')
    a(f's_add_u32 s{S_KW}, s{S_KA}, 32768')
    def tok_load(ks):
        o = []
        for t in range(2):
            r = ring[ks % DEPTH][t]
            o.append(f'buffer_load_dwordx4 v[{r}:{r+3}], v{c.vAb}, {srd(S_WS)}, s{S_KA if t == 0 else S_KW} offen offset:{1024*(ks & 3)} sc1')
        if ks & 3 == 3:
            o += [f's_add_u32 s{S_KA}, s{S_KA}, 4096', f's_add_u32 s{S_KW}, s{S_KW}, 4096']
        return o
    def wreads(ks):
        b = ks & 1; out = []
        for f in range(4):
            for j in range(2):
                r = wb[b][f] + 2*j
                out.append(f'ds_read_b64_tr_b16 v[{r}:{r+1}], v{vW[f]} offset:{(ks % 16)*4096 + j*512}')
        return out
    a('s_barrier')
    ST.put(a, 5)
    for ks in range(DEPTH):
        for x in tok_load(ks): a(x)
    for x in wreads(0): a(x)
    for ks in range(32):
        b = ks & 1
        nxt = []
        if ks + 1 < 32:
            if ks + 1 == 16:
                for f in range(4): a(f'v_add_u32 v{vW[f]}, 0x10000, v{vW[f]}')
            nxt = wreads(ks + 1)
        later = min(ks + DEPTH - 1, 31) - ks
        a(f's_waitcnt vmcnt({2*later}) lgkmcnt(0)')
        if ks == 0: ST.put(a, 6)
        ms = []
        for f in range(4):
            for t in range(2):
                cc = acc[f, t]; w = wb[b][f]; x = ring[ks % DEPTH][t]
                ms.append(mfma(cc, w, x, cc))
        tl = tok_load(ks + DEPTH) if ks + DEPTH < 32 else []
        for i, m in enumerate(ms):
            a(m)
            if i < len(nxt): a(nxt[i])
        for x in tl: a(x)
    a('s_barrier')
    ST.put(a, 7)
    for tt in range(2):
        for f in range(4):
            x = c.xr[tt, f >> 1] + 2 * (f & 1); r = acc[f, tt]
            a(cvt(x, r, r + 1)); a(cvt(x + 1, r + 2, r + 3))
    swap_xr(a, c)
    a(f's_cmp_eq_u32 s{S_L}, 3')
    a('s_cbranch_scc1 b_final')
    x_dst_offsets(a, 1)
    stats_and_store(a, c)
    swap_xr(a, c)
    xflag_off(a, T5)
    a(f's_add_u32 s{S_L}, s{S_L}, 1')
    a(f's_add_u32 s{S_TAG}, s{S_TAG}, 1')
    ST.put(a, 8 - 12)
    a('s_waitcnt vmcnt(0)')
    flag_store(a, T5, S_TAG, c.tmp)
    ST.put(a, 9 - 12)
    a(f's_bitcmp1_b32 s{S_WAVE}, 0')
    a('s_cbranch_scc1 a_cons_p1')
    a('s_branch a_cons_p0')
    a.label('b_final')
    row_offsets(a)
    for tt in range(2):
        for P in range(2):
            r = c.xr[tt, P]
            a(f'buffer_store_dwordx4 v[{r}:{r+3}], v{c.vXrow}, {srd(S_OUT)}, s{T0 if tt == 0 else T1} offen offset:{64*P}')
    ST.put(a, 8)
    if OPT.get('stamps'): a('s_waitcnt vmcnt(0)')
    ST.put(a, 9)
    ST.cyc(a, 61)
    ST.flush(a)
    a('s_endpgm')

class VM:
    def __init__(self): self.q = []
    def add(self, name, n): self.q.append([name, n])
    def wait(self, a, name):
        if not any(nm == name for nm, n in self.q): return
        idx = max(i for i, (nm, n) in enumerate(self.q) if nm == name)
        later = sum(n for nm, n in self.q[idx+1:])
        assert later <= 63
        a(f's_waitcnt vmcnt({later})')
        self.q = self.q[idx+1:]
    def clear(self): self.q = []

def producer(a, pw):
    vT, vHalo, vPoll, vt0 = 1, 2, 5, 6
    vW = [3, 4]
    tagn = f'w{pw}'
    a.label(f'prod_{tagn}')
    a('v_and_b32 v9, 63, v0')
    a('v_lshrrev_b32 v10, 3, v9')
    a('v_and_b32 v11, 7, v9')
    a('v_lshrrev_b32 v12, 4, v9')
    a('v_and_b32 v13, 15, v9')
    a(f'v_lshlrev_b32 v{vT}, 4, v9')
    for par in range(2):
        a('v_and_b32 v14, 1, v12')
        a(f'v_or_b32 v14, {2*par}, v14')
        a('v_lshlrev_b32 v14, 1, v14')
        a('v_xor_b32 v14, v14, v11')
        a('v_lshlrev_b32 v14, 4, v14')
        a('v_mul_u32_u24 v15, 6144, v10')
        a(f'v_add_u32 v{vW[par]}, v14, v15')
    vWO = [16, 17]
    for par in range(2):
        a('v_and_b32 v14, 1, v12')
        a(f'v_or_b32 v14, {2*par}, v14')
        a('v_lshlrev_b32 v14, 1, v14')
        a('v_xor_b32 v14, v14, v11')
        a('v_lshlrev_b32 v14, 4, v14')
        a(f'v_lshl_add_u32 v{vWO[par]}, v10, 11, v14')
    a('v_lshlrev_b32 v14, 8, v12')
    a('v_or_b32 v15, 8, v13')
    a('v_lshl_add_u32 v14, v15, 4, v14')
    a('v_lshrrev_b32 v15, 3, v13')
    a('v_lshlrev_b32 v15, 12, v15')
    a('v_add_u32 v14, v14, v15')
    a(f'v_add_u32 v{vHalo}, 3072, v14')
    a('v_lshlrev_b32 v14, 7, v12')
    a(f'v_lshl_add_u32 v{vPoll}, v13, 2, v14')
    wpieces = list(range(6*pw, 6*pw+6))
    a(f's_lshl_b32 s{T1}, s{S_GA}, 7')
    for n, q in enumerate(wpieces):
        u = q >> 3; pp = q & 7
        a(f's_add_u32 s{S_PB+n}, s{T1}, {pp * 8 * 6144 + u * 2048}')
    nT = 5 if pw < 2 else 4
    def reset_w():
        a(f's_mov_b32 s{S_KW}, 0'); a(f's_mov_b32 s{S_SLOTW}, {W0}')
    def issue_W(vm):
        for n, q in enumerate(wpieces):
            u = q >> 3; pp = q & 7
            a(f's_add_u32 m0, s{S_SLOTW}, {u * 8192 + pp * 1024}')
            a(f's_add_u32 s{S_TMP}, s{S_PB+n}, s{S_KW}')
            a(f'buffer_load_dwordx4 v{vW[pp & 1]}, {srd(S_WQ)}, s{S_TMP} offen lds')
        a(f's_add_u32 s{S_KW}, s{S_KW}, {64 * 6144}')
        a(f's_add_u32 s{S_SLOTW}, s{S_SLOTW}, {W_SLOT}')
        a(f's_cmp_eq_u32 s{S_SLOTW}, {W0 + 3 * W_SLOT}')
        a(f's_cselect_b32 s{S_SLOTW}, {W0}, s{S_SLOTW}')
        vm.add('W', 6)
    def issue_T(vm):
        a(f's_add_u32 m0, s{S_SLOTA}, {(pw >> 1) * 9216 + (pw & 1) * 4096}')
        a(f's_add_u32 s{S_TMP}, s{S_TB}, s{S_KA}')
        for j in range(4):
            a(f'buffer_load_dwordx4 v{vT}, {srd(S_WS)}, s{S_TMP} offen offset:{1024*j} sc1 lds')
        if pw < 2:
            a(f's_add_u32 m0, s{S_SLOTA}, {pw * 9216 + 8192}')
            a(f's_add_u32 s{S_TMP}, s{S_HB}, s{S_KA}')
            a(f'buffer_load_dwordx4 v{vHalo}, {srd(S_WS)}, s{S_TMP} offen sc1 lds')
        a(f's_add_u32 s{S_KA}, s{S_KA}, 16384')
        a(f's_add_u32 s{S_SLOTA}, s{S_SLOTA}, {A_SLOT}')
        a(f's_cmp_eq_u32 s{S_SLOTA}, {3 * A_SLOT}')
        a(f's_cselect_b32 s{S_SLOTA}, 0, s{S_SLOTA}')
        vm.add('T', nT)
    vm = VM()
    if pw == 3:
        a('s_cmp_lg_u32 s2, 0')
        a('s_cbranch_scc1 nonce_skip')
        a(f's_mov_b32 s{T0}, {E_OFF}')
        a(f'buffer_load_dword v20, off, {srd(S_WS)}, s{T0} sc1')
        a('s_waitcnt vmcnt(0)')
        a('v_add_u32 v20, 256, v20')
        a('v_cmp_eq_u32 vcc, 0, v20')
        a('v_mov_b32 v21, 256')
        a('v_cndmask_b32 v20, v20, v21, vcc')
        a('s_mov_b64 exec, 1')
        a(f'buffer_store_dword v20, off, {srd(S_DBG)}, 0 sc1')
        a(f'buffer_store_dword v20, off, {srd(S_WS)}, s{T0} sc1')
        a('s_mov_b64 exec, -1')
        a.label('nonce_skip')
    reset_w()
    for _ in range(3): issue_W(vm)
    if pw == 3:
        lp = 'nonce_poll'; dn = 'nonce_done'
        a(f's_mov_b32 s{S_SPIN}, 0')
        a.label(lp)
        a(f'buffer_load_dword v20, off, {srd(S_DBG)}, 0 sc1')
        a('s_waitcnt vmcnt(0)')
        a('v_cmp_ne_u32 vcc, 0, v20')
        a('s_cmp_eq_u64 vcc, -1')
        a(f's_cbranch_scc1 {dn}')
        a(f's_add_u32 s{S_SPIN}, s{S_SPIN}, 1')
        a(f's_cmp_lt_u32 s{S_SPIN}, {SPIN_MAX}')
        a(f's_cbranch_scc1 {lp}')
        a.label(dn)
        a(f'v_mov_b32 v21, {NONCE0}')
        a('ds_write_b32 v21, v20')
        a('s_waitcnt lgkmcnt(0)')
    else:
        u = pw
        a(f's_mov_b32 s{S_AX}, s{P_BWQ}'); a(f's_mov_b32 s{S_AX+1}, s{P_BWQ+1}')
        make_srd(a, S_AX, 1024 * 6144)
        a('v_mul_u32_u24 v15, 6144, v10')
        a('v_lshl_add_u32 v18, v11, 4, v15')
        a(f's_mul_i32 s{T0}, s{S_RBA}, {64 * 6144}')
        a(f's_add_u32 s{T0}, s{T0}, s{T1}')
        a(f's_add_u32 s{T0}, s{T0}, {u * 2048}')
        for st in range(2):
            for j in range(8):
                r = 32 + 32 * st + 4 * j
                a(f's_add_u32 s{S_TMP}, s{T0}, {j * 8 * 6144}')
                a(f'buffer_load_dwordx4 v[{r}:{r+3}], v18, {srd(S_WQ if st == 0 else S_AX)}, s{S_TMP} offen')
    a('s_barrier')
    a(f'v_mov_b32 v20, {NONCE0}')
    a('ds_read_b32 v20, v20')
    a('s_waitcnt lgkmcnt(0)')
    a(f'v_readfirstlane_b32 s{S_NONCE}, v20')
    a(f's_add_u32 s{S_TAG}, s{S_NONCE}, 1')
    if pw < 3:
        a(f's_mov_b32 s{S_C0}, 0xffff0000')
        a('s_waitcnt vmcnt(0)')
        for st in range(2):
            A = 100 + 8 * st
            for j in range(8):
                r = 32 + 32 * st + 4 * j
                for q in range(4):
                    if j == 0:
                        a(f'v_lshlrev_b32 v{A+2*q}, 16, v{r+q}')
                        a(f'v_and_b32 v{A+2*q+1}, s{S_C0}, v{r+q}')
                    else:
                        a(f'v_lshlrev_b32 v20, 16, v{r+q}')
                        a(f'v_and_b32 v21, s{S_C0}, v{r+q}')
                        a(f'v_add_f32 v{A+2*q}, v{A+2*q}, v20')
                        a(f'v_add_f32 v{A+2*q+1}, v{A+2*q+1}, v21')
        streams = []
        for e in range(16):
            v = 100 + e; t = 120 + e; s = []
            s.append(f'v_add_f32_dpp v{v}, v{v}, v{v} row_ror:8 row_mask:0xf bank_mask:0xf')
            for sw in ('16', '32'):
                s.append(f'v_mov_b32 v{t}, v{v}')
                s.append(f'v_permlane{sw}_swap_b32 v{v}, v{t}')
                s.append(f'v_add_f32 v{v}, v{v}, v{t}')
            streams.append(s)
        for x in interleave(streams): a(x)
        a(f's_lshl_b32 s{T0}, s{S_GA}, 14')
        a(f's_lshl_b32 s{T4}, s{S_RBA}, 10'); a(f's_add_u32 s{T0}, s{T0}, s{T4}')
        a(f's_add_u32 s{T0}, s{T0}, {CSP_OFF + pw * 256}')
        a(f's_add_u32 s{T2}, s{T0}, 262144')
        a('v_lshlrev_b32 v20, 5, v11')
        a('s_mov_b64 exec, 0xff')
        for st in range(2):
            A = 100 + 8 * st
            for q in range(2):
                a(f'buffer_store_dwordx4 v[{A+4*q}:{A+4*q+3}], v20, {srd(S_WS)}, s{T0 if st == 0 else T2} offen offset:{16*q} sc1')
        a('s_mov_b64 exec, -1')
        a('s_waitcnt vmcnt(0)')
    a(f's_lshl_b32 s{T5}, s{S_GA}, 9')
    a(f's_lshl_b32 s{T4}, s{S_RBA}, 2'); a(f's_add_u32 s{T5}, s{T5}, s{T4}')
    a(f's_add_u32 s{T5}, s{T5}, {FC_OFF + pw * 128}')
    flag_store(a, T5, S_TAG, 20)
    vm.clear()
    a.label(f'prod_layer_{tagn}')
    a(f's_lshl_b32 s{T0}, s{S_L}, 22')
    a(f's_lshl_b32 s{T4}, s{S_RBA}, 18')
    a(f's_add_u32 s{S_TB}, s{T0}, s{T4}')
    a(f's_sub_u32 s{T3}, s{S_RBA}, 1')
    a(f's_max_i32 s{T3}, s{T3}, 0')
    a(f's_lshl_b32 s{T4}, s{T3}, 18')
    a(f's_add_u32 s{S_HB}, s{T0}, s{T4}')
    a(f's_add_u32 s{S_TB}, s{S_TB}, {X_OFF + pw * 4096}')
    a(f's_add_u32 s{S_HB}, s{S_HB}, {X_OFF + (pw & 1) * 8192}')
    a(f's_lshl_b32 s{T0}, s{S_L}, 18')
    a(f's_lshl_b32 s{T4}, s{S_RBA}, 14'); a(f's_add_u32 s{S_SB}, s{T0}, s{T4}')
    a(f's_lshl_b32 s{T4}, s{T3}, 14'); a(f's_add_u32 s{S_SH}, s{T0}, s{T4}')
    a(f's_add_u32 s{S_SB}, s{S_SB}, {S_OFF + (512 if pw == 1 else 0)}')
    a(f's_add_u32 s{S_SH}, s{S_SH}, {S_OFF}')
    a(f's_mov_b32 s{S_KA}, 0'); a(f's_mov_b32 s{S_SLOTA}, 0')
    if pw == 0:
        a(f's_lshl_b32 s{T0}, s{S_RBA}, 9'); a(f's_add_u32 s{T0}, s{T0}, {FX_OFF}')
        a(f's_lshl_b32 s{T1}, s{T3}, 9'); a(f's_add_u32 s{T1}, s{T1}, {FX_OFF}')
        poll(a, S_TAG, [(vPoll, T0), (vPoll, T1)], 20, 0x100 + 1)
    ST.put(a, 0)
    a('s_barrier')
    for _ in range(3): issue_T(vm)
    vm.q = [['T0', nT], ['T1', nT], ['T2', nT]]
    vm.wait(a, 'T0')
    ST.put(a, 1)
    a('s_barrier')
    N = nT + 6
    def stage(vm, name):
        issue_T(vm); issue_W(vm)
        vm.q = vm.q[:-2] + [[name, N]]
    vm.wait(a, 'T1'); a('s_barrier'); stage(vm, 'S3')
    vm.wait(a, 'T2'); a('s_barrier'); stage(vm, 'S4')
    a(f's_mov_b32 s{S_CNT}, 2')
    lp = f'ap_loop_{tagn}'
    a.label(lp)
    a(f's_waitcnt vmcnt({N})')
    a('s_barrier')
    tmpvm = VM(); issue_T(tmpvm); issue_W(tmpvm)
    a(f's_add_u32 s{S_CNT}, s{S_CNT}, 1')
    a(f's_cmp_lt_u32 s{S_CNT}, 6')
    a(f's_cbranch_scc1 {lp}')
    vm.q = [['S7', N], ['S8', N]]
    SV = 32
    def extra_issue(step):
        if pw < 3 and step == 0:
            base = S_SB if pw < 2 else S_SH
            va = 18
            if pw < 2:
                a(f'v_lshlrev_b32 v{va}, 3, v9')
            else:
                a('v_or_b32 v14, 8, v13')
                a('v_lshlrev_b32 v14, 3, v14')
                a('v_lshrrev_b32 v15, 3, v13')
                a('v_lshlrev_b32 v15, 9, v15')
                a('v_add_u32 v14, v14, v15')
                a(f'v_add_u32 v{va}, 384, v14')
            for cgi in range(16):
                if cgi % 4 == 0: a(f's_add_u32 s{S_TMP}, s{base}, {cgi * 1024}')
                a(f'buffer_load_dwordx2 v[{SV+2*cgi}:{SV+2*cgi+1}], v{va}, {srd(S_WS)}, s{S_TMP} offen offset:{(cgi % 4) * 1024} sc1')
            vm.add('X', 16)
        if pw == 3 and step == 0:
            a(f's_lshl_b32 s{T0}, s{S_GA}, 9'); a(f's_add_u32 s{T0}, s{T0}, {FC_OFF}')
            a(f'buffer_load_dword v20, v{vPoll}, {srd(S_WS)}, s{T0} offen sc1')
            vm.add('X', 1)
        if pw == 3 and step == 1:
            ok = a.uniq('cs_ok')
            a(f's_add_u32 s{T1}, s{S_NONCE}, 1')
            a(f'v_subrev_u32 v20, s{T1}, v20')
            a('v_cmp_gt_u32 vcc, 8, v20')
            a('s_cmp_eq_u64 vcc, -1')
            a(f's_cbranch_scc1 {ok}')
            poll(a, T1, [(vPoll, T0)], 20, 0x300)
            a.label(ok)
            a(f's_and_b32 s{T0}, s{S_L}, 1'); a(f's_lshl_b32 s{T0}, s{T0}, 18')
            a(f's_lshl_b32 s{T4}, s{S_GA}, 14'); a(f's_add_u32 s{T0}, s{T0}, s{T4}')
            a(f's_add_u32 s{T0}, s{T0}, {CSP_OFF}')
            for rb in range(16):
                if rb % 4 == 0: a(f's_add_u32 s{S_TMP}, s{T0}, {rb * 1024}')
                a(f'buffer_load_dwordx4 v[{SV+4*rb}:{SV+4*rb+3}], v{vT}, {srd(S_WS)}, s{S_TMP} offen offset:{(rb % 4) * 1024} sc1')
            vm.add('Y', 16)
    def extra_process():
        if pw < 3:
            for cgi in range(1, 16):
                a(f'v_add_f32 v{SV}, v{SV}, v{SV+2*cgi}')
                a(f'v_add_f32 v{SV+1}, v{SV+1}, v{SV+2*cgi+1}')
            a(f's_mov_b32 s{T0}, 0x3a800000')
            a(f'v_mul_f32 v{SV}, s{T0}, v{SV}')
            a(f'v_mul_f32 v{SV+1}, s{T0}, v{SV+1}')
            a(f'v_fma_f32 v{SV+1}, -v{SV}, v{SV}, v{SV+1}')
            a(f'v_max_f32 v{SV+1}, 0, v{SV+1}')
            a(f'v_add_f32 v{SV+1}, 0x3727c5ac, v{SV+1}')
            a(f'v_rsq_f32 v{SV+1}, v{SV+1}')
            a(f'v_sub_f32 v{SV}, 0, v{SV}')
            base = NM0 + (256 if pw == 1 else 512 if pw == 2 else 0)
            a(f'v_lshlrev_b32 v20, 2, v{9 if pw < 2 else 13}')
            a(f'v_add_u32 v20, {base}, v20')
            a(f'ds_write_b32 v20, v{SV}')
            a(f'ds_write_b32 v20, v{SV+1} offset:1024')
            a('s_waitcnt lgkmcnt(0)')
        else:
            for rb in range(1, 16):
                for q in range(4): a(f'v_add_f32 v{SV+q}, v{SV+q}, v{SV+4*rb+q}')
            a(f's_and_b32 s{T0}, s{S_L}, 1'); a(f's_lshl_b32 s{T0}, s{T0}, 10'); a(f's_add_u32 s{T0}, s{T0}, {CS0}')
            a(f'v_add_u32 v20, s{T0}, v{vT}')
            a(f'ds_write_b128 v20, v[{SV}:{SV+3}]')
            a('s_waitcnt lgkmcnt(0)')
    for s in range(6, 13):
        nm = f'S{s+1}'
        vm.wait(a, nm)
        if s == 8 and pw == 3: extra_pending = True
        a('s_barrier')
        stage(vm, f'S{s+3}')
        if s == 6: extra_issue(0)
        if s == 8:
            if pw == 3:
                vm.wait(a, 'X'); extra_issue(1)
        if s == 10:
            vm.wait(a, 'Y' if pw == 3 else 'X')
            extra_process()
    vm.wait(a, 'S14'); a('s_barrier')
    vm.wait(a, 'S15'); a('s_barrier')
    a('s_barrier')
    ST.put(a, 2)
    a(f's_lshl_b32 s{T0}, s{S_GB}, 7')
    a(f's_add_u32 s{T0}, s{T0}, {pw * 4 * 16384}')
    def wo_chunk(j):
        for n in range(4):
            a(f's_mov_b32 m0, {j*16384 + (pw*4 + n)*1024}')
            a(f's_add_u32 s{S_TMP}, s{T0}, {(j*16 + n) * 16384}')
            a(f'buffer_load_dwordx4 v{vWO[n & 1]}, {srd(S_WO)}, s{S_TMP} offen lds')
    for j in range(2): wo_chunk(j)
    a('s_barrier')
    for j in range(2, 8): wo_chunk(j)
    if pw == 0:
        a(f's_lshl_b32 s{T0}, s{S_RBB}, 9'); a(f's_add_u32 s{T0}, s{T0}, {FO_OFF}')
        poll(a, S_TAG, [(vPoll, T0)], 20, 0x200)
    else:
        a('s_waitcnt vmcnt(0)')
    ST.put(a, 5)
    a('s_barrier')
    a(f's_cmp_eq_u32 s{S_L}, 3')
    a(f's_cbranch_scc1 prod_end_{tagn}')
    a(f's_add_u32 s{S_L}, s{S_L}, 1')
    a(f's_add_u32 s{S_TAG}, s{S_TAG}, 1')
    set_layer_srds(a)
    a('s_barrier')
    reset_w()
    vm.clear()
    for _ in range(3): issue_W(vm)
    a(f's_branch prod_layer_{tagn}')
    a.label(f'prod_end_{tagn}')
    a('s_barrier')
    ST.cyc(a, 61)
    ST.flush(a)
    a('s_endpgm')

def build(opts):
    OPT.clear(); OPT.update(opts)
    a = Asm()
    kname = NAME + '_kernel'
    a.raw(f'.globl {kname}')
    a.raw('.p2align 8')
    a.raw(f'.type {kname},@function')
    a.label(kname)
    a('s_cmp_ge_u32 s2, 256')
    a('s_cbranch_scc1 k_done')
    a(f's_load_dwordx2 s[{S_AX}:{S_AX+1}], s[0:1], {K_AX}')
    a(f's_load_dwordx2 s[{P_AWQ}:{P_AWQ+1}], s[0:1], {K_AWQKV}')
    a(f's_load_dwordx2 s[{P_AWO}:{P_AWO+1}], s[0:1], {K_AWO}')
    a(f's_load_dwordx2 s[{P_BWQ}:{P_BWQ+1}], s[0:1], {K_BWQKV}')
    a(f's_load_dwordx2 s[{P_BWO}:{P_BWO+1}], s[0:1], {K_BWO}')
    a(f's_load_dwordx2 s[{S_OUT}:{S_OUT+1}], s[0:1], {K_OUT}')
    a(f's_load_dwordx2 s[{S_DBG}:{S_DBG+1}], s[0:1], {K_DBG}')
    a(f's_load_dwordx2 s[{S_WS}:{S_WS+1}], s[0:1], {K_WS}')
    if OPT.get('stamps'):
        a(f'v_mov_b32 v{V_ST}, 0')
    a(f's_and_b32 s{T0}, s2, 7')
    a(f's_lshr_b32 s{T1}, s2, 3')
    a(f's_and_b32 s{S_RBA}, s{T0}, 1'); a(f's_lshl_b32 s{S_RBA}, s{S_RBA}, 3')
    a(f's_and_b32 s{T2}, s{T1}, 7'); a(f's_add_u32 s{S_RBA}, s{S_RBA}, s{T2}')
    a(f's_lshr_b32 s{S_GA}, s{T0}, 1'); a(f's_lshl_b32 s{S_GA}, s{S_GA}, 2')
    a(f's_lshr_b32 s{T2}, s{T1}, 3'); a(f's_add_u32 s{S_GA}, s{S_GA}, s{T2}')
    a(f's_and_b32 s{S_RBB}, s{T0}, 3'); a(f's_lshl_b32 s{S_RBB}, s{S_RBB}, 2')
    a(f's_and_b32 s{T2}, s{T1}, 3'); a(f's_add_u32 s{S_RBB}, s{S_RBB}, s{T2}')
    a(f's_lshr_b32 s{S_GB}, s{T0}, 2'); a(f's_lshl_b32 s{S_GB}, s{S_GB}, 3')
    a(f's_lshr_b32 s{T2}, s{T1}, 2'); a(f's_add_u32 s{S_GB}, s{S_GB}, s{T2}')
    a('v_lshrrev_b32 v1, 6, v0')
    a(f'v_readfirstlane_b32 s{S_WAVE}, v1')
    a(f's_lshr_b32 s{S_H}, s{S_WAVE}, 1')
    a(f's_and_b32 s{S_H}, s{S_H}, 1')
    a(f's_mov_b32 s{S_L}, 0')
    a('s_waitcnt lgkmcnt(0)')
    make_srd(a, S_WS, 256 * MB if OPT.get('stamps') else WS_USED)
    make_srd(a, S_AX, 4 * MB); make_srd(a, S_OUT, 4 * MB); make_srd(a, S_DBG, 256)
    for p in (P_AWQ, P_BWQ, P_AWO, P_BWO): a(f's_and_b32 s{p+1}, s{p+1}, 0xffff')
    a(f's_mov_b32 s{S_WQ+2}, {1024 * 6144}'); a(f's_mov_b32 s{S_WQ+3}, {SRD3}')
    a(f's_mov_b32 s{S_WO+2}, {1024 * 2048}'); a(f's_mov_b32 s{S_WO+3}, {SRD3}')
    set_layer_srds(a)
    ST.put(a, 0, False); ST.cyc(a, 60)
    for w in range(4, 8):
        a(f's_cmp_eq_u32 s{S_WAVE}, {w}'); a(f's_cbranch_scc1 prod_w{w-4}')
    c = consumer_regs()
    consumer_prologue(a, c)
    a(f's_bitcmp1_b32 s{S_WAVE}, 0')
    a('s_cbranch_scc1 a_cons_p1')
    a_consumer(a, c, 0)
    a_consumer(a, c, 1)
    b_consumer(a, c)
    for pw in range(4): producer(a, pw)
    a.label('k_done')
    a('s_endpgm')
    n = a.pad_hazards()
    hdr = open(f'cdna_kernels/{NAME}.s.ref').read().split('\n')
    lines = [l for l in hdr if l.startswith(';') and '@launch' not in l and 'Override launch' not in l and 'grid=ceil' not in l]
    lines = lines[:11]
    lines.append(f'; @launch grid=(256,1,1) block=(512,1,1) lds={LDS_SIZE}')
    out = '\n'.join(lines) + '\n.amdgcn_target "amdgcn-amd-amdhsa--gfx950"\n.text\n' + a.text()
    out += f'''.section .rodata,"a"
.p2align 6
.amdhsa_kernel {kname}
  .amdhsa_next_free_vgpr 256
  .amdhsa_next_free_sgpr 102
  .amdhsa_accum_offset 256
  .amdhsa_group_segment_fixed_size 0
  .amdhsa_kernarg_size 72
  .amdhsa_float_denorm_mode_32 3
  .amdhsa_user_sgpr_count 2
  .amdhsa_user_sgpr_kernarg_segment_ptr 1
  .amdhsa_system_sgpr_workgroup_id_x 1
.end_amdhsa_kernel
'''
    return out, n, c.top

if __name__ == '__main__':
    opts = {}
    for kv in sys.argv[2:]:
        k, v = kv.split('='); opts[k] = eval(v)
    out, n, top = build(opts)
    open(sys.argv[1], 'w').write(out)
    print('written', sys.argv[1], 'nops inserted:', n, 'bytes', len(out), 'consumer vgpr top', top)
```

```python
import sys
sys.path.insert(0, 'work')
from asmlib import Asm

NAME = 'interleave_layers__sliding_local_dilated__sliding_local_dilated__prompt'
MB = 1 << 20
K_AX, K_AWQKV, K_AWO, K_BX, K_BWQKV, K_BWO, K_OUT, K_DBG, K_WS = 0, 8, 16, 24, 32, 40, 48, 56, 64
SRD3 = 0x00020000
X_OFF, O_OFF, LSTRIDE = 0, 16 * MB, 4 * MB
S_OFF, S_LSTRIDE = 32 * MB, 256 * 1024
CSP_OFF = 33 * MB
FX_OFF = 34 * MB
FO_OFF = FX_OFF + 8192
FC_OFF = FX_OFF + 16384
E_OFF = FX_OFF + 32768
WP_OFF = 40 * MB
WOP_OFF = 52 * MB
WS_USED = 56 * MB
ST_OFF = 200 * MB
A_SLOT, W_SLOT = 18432, 24576
W0 = 3 * A_SLOT
NW = 3
def set_lds_map(nw):
    global NW, HALO0, NM0, RS0, CS0, NONCE0, LDS_SIZE
    NW = nw
    HALO0 = max(131072, W0 + nw * W_SLOT)
    NM0 = HALO0 + 4096
    RS0 = NM0 + 1024
    CS0 = RS0 + 1024
    NONCE0 = CS0 + 2048
    LDS_SIZE = NONCE0 + 256
set_lds_map(3)
S_WS, S_WQ, S_WO, S_AX, S_OUT, S_DBG = 4, 8, 12, 16, 20, 24
P_AWQ, P_BWQ, P_AWO, P_BWO = 28, 30, 32, 34
S_RBA, S_GA, S_RBB, S_GB, S_WAVE, S_H, S_L, S_NONCE, S_TAG = 36, 37, 38, 39, 40, 41, 42, 43, 44
T0, T1, T2, T3, T4, T5 = 45, 46, 47, 48, 49, 50
S_TMP = 51
S_C0 = 52
S_SLOTA, S_SLOTW, S_CNT, S_KA, S_KW, S_SPIN = 58, 59, 60, 61, 62, 63
S_SEL, S_VAL, S_VAL0 = 64, 72, 80
S_M1, S_M2, S_M3, S_DIAG = 88, 90, 92, 94
S_PB = 64
S_TB, S_HB, S_SB, S_SH = 70, 71, 72, 73
S_FLAGAT = 53 + 2
S_ST = 96
SPIN_MAX = 20000

OPT = {}

class Regs:
    def __init__(self, start, limit): self.n = start; self.limit = limit
    def get(self, k=1, align=1):
        self.n = (self.n + align - 1) // align * align
        r = self.n; self.n += k
        assert self.n <= self.limit, 'out of registers'
        return r

def cvt(dst, s0, s1): return f'v_cvt_pk_bf16_f32 v{dst}, v{s0}, v{s1}'
def mfma(d, A, B, c=None):
    cs = '0' if c is None else f'v[{c}:{c+3}]'
    return f'v_mfma_f32_16x16x32_bf16 v[{d}:{d+3}], v[{A}:{A+3}], v[{B}:{B+3}], {cs}'
def srd(r): return f's[{r}:{r+3}]'

def interleave(lists):
    out = []
    n = max(len(x) for x in lists)
    for i in range(n):
        for x in lists:
            if i < len(x): out.append(x[i])
    return out

def make_srd(a, r, size):
    a(f's_and_b32 s{r+1}, s{r+1}, 0xffff')
    a(f's_mov_b32 s{r+2}, {size}')
    a(f's_mov_b32 s{r+3}, {SRD3}')

V_ST = 8
class Stamps:
    n_per_layer = 12
    def put(self, a, idx, per_layer=True):
        if not OPT.get('stamps'): return
        a(f's_memrealtime s[{S_ST}:{S_ST+1}]')
        a('s_waitcnt lgkmcnt(0)')
        if per_layer:
            a(f's_mul_i32 s{S_ST+1}, s{S_L}, {self.n_per_layer}')
            a(f's_add_u32 s{S_ST+1}, s{S_ST+1}, {idx + 4}')
            a(f's_mov_b32 m0, s{S_ST+1}')
            a(f'v_writelane_b32 v{V_ST}, s{S_ST}, m0')
        else:
            a(f'v_writelane_b32 v{V_ST}, s{S_ST}, {idx}')
    def cycl(self, a, idx):
        if not OPT.get('stamps'): return
        a(f's_memtime s[{S_ST}:{S_ST+1}]')
        a('s_waitcnt lgkmcnt(0)')
        a(f's_mul_i32 s{S_ST+1}, s{S_L}, {self.n_per_layer}')
        a(f's_add_u32 s{S_ST+1}, s{S_ST+1}, {idx + 4}')
        a(f's_mov_b32 m0, s{S_ST+1}')
        a(f'v_writelane_b32 v{V_ST}, s{S_ST}, m0')
    def cyc(self, a, idx):
        if not OPT.get('stamps'): return
        a(f's_memtime s[{S_ST}:{S_ST+1}]')
        a('s_waitcnt lgkmcnt(0)')
        a(f'v_writelane_b32 v{V_ST}, s{S_ST}, {idx}')
    def flush(self, a):
        if not OPT.get('stamps'): return
        a(f's_lshl_b32 s{T0}, s2, 3')
        a(f's_add_u32 s{T0}, s{T0}, s{S_WAVE}')
        a(f's_lshl_b32 s{T0}, s{T0}, 8')
        a(f's_add_u32 s{T0}, s{T0}, {ST_OFF}')
        a('v_and_b32 v1, 63, v0')
        a('v_lshlrev_b32 v1, 2, v1')
        a(f'buffer_store_dword v{V_ST}, v1, {srd(S_WS)}, s{T0} offen')
        a('s_waitcnt vmcnt(0)')
ST = Stamps()

S_MK = 98
def lane_mask(gs, lines=(0, 1, 2, 3)):
    return sum(1 << (16 * w + g) for w in lines for g in gs)
def set_mask(a, m):
    a(f's_mov_b32 s{S_MK}, {m & 0xffffffff}'); a(f's_mov_b32 s{S_MK+1}, {m >> 32}')
def poll_issue(a, loads, vt):
    for n, (va, so) in enumerate(loads):
        a(f'buffer_load_dword v{vt+n}, v{va}, {srd(S_WS)}, s{so} offen sc1')
def poll_test(a, tag, nloads, vt, masked):
    for n in range(nloads):
        a(f'v_subrev_u32 v{vt+n}, s{tag}, v{vt+n}')
    if nloads == 2:
        a(f'v_max_u32 v{vt}, v{vt}, v{vt+1}')
    a(f'v_cmp_gt_u32 vcc, 8, v{vt}')
    if masked:
        a(f's_and_b64 s[{S_MK+2}:{S_MK+3}], vcc, s[{S_MK}:{S_MK+1}]')
        a(f's_cmp_eq_u64 s[{S_MK+2}:{S_MK+3}], s[{S_MK}:{S_MK+1}]')
    else:
        a('s_cmp_eq_u64 vcc, -1')
def poll(a, tag, loads, vt, code, mask=None):
    lp = a.uniq('poll'); dn = a.uniq('polled')
    if mask is not None: set_mask(a, mask)
    a(f's_mov_b32 s{S_SPIN}, 0')
    a.label(lp)
    poll_issue(a, loads, vt)
    a('s_waitcnt vmcnt(0)')
    poll_test(a, tag, len(loads), vt, mask is not None)
    a(f's_cbranch_scc1 {dn}')
    a(f's_add_u32 s{S_SPIN}, s{S_SPIN}, 1')
    a(f's_cmp_lt_u32 s{S_SPIN}, {SPIN_MAX}')
    a(f's_cbranch_scc1 {lp}')
    a(f'v_mov_b32 v{vt}, {code}')
    a(f's_mov_b32 s{S_SPIN}, 16')
    a(f'buffer_store_dword v{vt}, off, {srd(S_DBG)}, s{S_SPIN}')
    a.label(dn)

def order_b():
    late = OPT.get('late', [3, 11])
    o = [(4 + n) % 16 for n in range(16)]
    return [g for g in o if g not in late] + list(late)
def order_a():
    return OPT.get('order_a', [4, 5, 6, 7, 12, 13, 14, 15, 0, 8, 1, 9, 2, 10, 3, 11])
def set_ga(a):
    if OPT.get('rot', False):
        a(f's_add_u32 s{S_GA}, s{S_GB}, s{S_L}'); a(f's_and_b32 s{S_GA}, s{S_GA}, 7')
        a(f's_and_b32 s{T4}, s{S_GB}, 8'); a(f's_or_b32 s{S_GA}, s{S_GA}, s{T4}')

def flag_store(a, soff, tag, vt):
    a(f'v_mov_b32 v{vt}, s{tag}')
    a('s_mov_b64 exec, 1')
    a(f'buffer_store_dword v{vt}, off, {srd(S_WS)}, s{soff} sc1')
    a('s_mov_b64 exec, -1')

def set_layer_srds(a):
    a(f's_bitcmp1_b32 s{S_L}, 0')
    a(f's_cselect_b32 s{S_WQ}, s{P_BWQ}, s{P_AWQ}')
    a(f's_cselect_b32 s{S_WQ+1}, s{P_BWQ+1}, s{P_AWQ+1}')
    a(f's_cselect_b32 s{S_WO}, s{P_BWO}, s{P_AWO}')
    a(f's_cselect_b32 s{S_WO+1}, s{P_BWO+1}, s{P_AWO+1}')

class C: pass
def consumer_regs():
    c = C()
    R = Regs(10, 256)
    c.acc = {}
    for u in range(3):
        for f in range(2):
            for t in range(4): c.acc[u, f, t] = R.get(4, 4)
    c.accH = [R.get(4, 4), R.get(4, 4)]
    c.buf = []
    for b in range(2):
        d = {}
        for u in range(3):
            for f in range(2): d['w', u, f] = R.get(4, 4)
        for t in range(5): d['t', t] = R.get(4, 4)
        c.buf.append(d)
    c.buf0 = c.buf[0]['w', 0, 0]; c.buf1 = c.buf[1]['w', 0, 0]
    c.xr = {(tt, P): R.get(4, 4) for tt in range(2) for P in range(2)}
    c.M1 = [R.get(), R.get()]
    c.vXrow = R.get(); c.vFrag = R.get(); c.vStat = R.get()
    c.vWB = [R.get() for _ in range(4)]
    c.vWBh = [R.get() for _ in range(4)]
    c.vI = R.get()
    c.Vp = [R.get(10, 2), R.get(10, 2)]
    c.vA, c.vW0, c.vW1, c.vAb, c.vW0b, c.vW1b, c.tmp, c.lane = 1, 2, 3, 4, 5, 6, 7, 9
    c.vA0b, c.vA1b, c.vA1 = 10, 11, 254
    assert R.n <= 254
    c.top = R.n
    return c

def stats_and_store(a, c, store_x=True):
    tb = c.buf0
    ones = tb; D = [tb + 4, tb + 8, tb + 12, tb + 16]
    for j in range(4): a(f'v_mov_b32 v{ones+j}, 0x3f803f80')
    if store_x:
        for tt in range(2):
            for P in range(2):
                r = c.xr[tt, P]
                a(f'buffer_store_dwordx4 v[{r}:{r+3}], v{c.vFrag}, {srd(S_WS)}, s{T0} offen offset:{2048*tt + 1024*P} sc1')
    for P in range(2):
        for tt in range(2):
            r = c.xr[tt, P]
            a(mfma(D[2*tt], ones, r, None if P == 0 else D[2*tt]))
            a(mfma(D[2*tt+1], r, r, None if P == 0 else D[2*tt+1]))
    for tt in range(2):
        s, g = D[2*tt], D[2*tt+1]
        a(f'v_cndmask_b32 v{s+1}, v{g}, v{g+1}, s[{S_M1}:{S_M1+1}]')
        a(f'v_cndmask_b32 v{s+1}, v{s+1}, v{g+2}, s[{S_M2}:{S_M2+1}]')
        a(f'v_cndmask_b32 v{s+1}, v{s+1}, v{g+3}, s[{S_M3}:{S_M3+1}]')
    a(f's_mov_b64 exec, s[{S_DIAG}:{S_DIAG+1}]')
    for tt in range(2):
        s = D[2*tt]
        a(f'buffer_store_dwordx2 v[{s}:{s+1}], v{c.vStat}, {srd(S_WS)}, s{T2} offen offset:{128*tt} sc1')
    a('s_mov_b64 exec, -1')

def swap_xr(a, c):
    for tt in range(2):
        for P in range(2):
            r = c.xr[tt, P]
            a(f'v_permlane16_swap_b32 v{r}, v{r+2}')
            a(f'v_permlane16_swap_b32 v{r+1}, v{r+3}')

def x_dst_offsets(a, Lreg_plus):
    a(f's_add_u32 s{T3}, s{S_L}, {Lreg_plus}')
    a(f's_lshl_b32 s{T0}, s{T3}, 22')
    a(f's_lshl_b32 s{T4}, s{S_RBB}, 18'); a(f's_add_u32 s{T0}, s{T0}, s{T4}')
    a(f's_lshl_b32 s{T4}, s{S_GB}, 14'); a(f's_add_u32 s{T0}, s{T0}, s{T4}')
    a(f's_lshl_b32 s{T4}, s{S_WAVE}, 12'); a(f's_add_u32 s{T0}, s{T0}, s{T4}')
    if X_OFF: a(f's_add_u32 s{T0}, s{T0}, {X_OFF}')
    a(f's_lshl_b32 s{T2}, s{T3}, 18')
    a(f's_lshl_b32 s{T4}, s{S_RBB}, 14'); a(f's_add_u32 s{T2}, s{T2}, s{T4}')
    a(f's_lshl_b32 s{T4}, s{S_GB}, 10'); a(f's_add_u32 s{T2}, s{T2}, s{T4}')
    a(f's_lshl_b32 s{T4}, s{S_WAVE}, 8'); a(f's_add_u32 s{T2}, s{T2}, s{T4}')
    a(f's_add_u32 s{T2}, s{T2}, {S_OFF}')

def xflag_off(a, dst):
    a(f's_lshl_b32 s{dst}, s{S_RBB}, 9')
    a(f's_lshl_b32 s{T4}, s{S_WAVE}, 7'); a(f's_add_u32 s{dst}, s{dst}, s{T4}')
    a(f's_lshl_b32 s{T4}, s{S_GB}, 2'); a(f's_add_u32 s{dst}, s{dst}, s{T4}')
    a(f's_add_u32 s{dst}, s{dst}, {FX_OFF}')

def row_offsets(a):
    a(f's_lshl_b32 s{T0}, s{S_RBB}, 7')
    a(f's_and_b32 s{T4}, s{S_WAVE}, 1'); a(f's_lshl_b32 s{T4}, s{T4}, 6'); a(f's_add_u32 s{T0}, s{T0}, s{T4}')
    a(f's_lshr_b32 s{T4}, s{S_WAVE}, 1'); a(f's_add_u32 s{T0}, s{T0}, s{T4}')
    a(f's_lshl_b32 s{T0}, s{T0}, 11')
    a(f's_lshl_b32 s{T4}, s{S_GB}, 7'); a(f's_add_u32 s{T0}, s{T0}, s{T4}')
    a(f's_add_u32 s{T1}, s{T0}, 65536')

def consumer_prologue(a, c):
    L = c.lane; tA, tB, tC, tD = c.buf0, c.buf0 + 1, c.buf0 + 2, c.buf0 + 3
    a(f'v_and_b32 v{L}, 63, v0')
    a(f'v_and_b32 v{c.vI}, 15, v{L}')
    a(f'v_lshrrev_b32 v{tB}, 4, v{L}')
    a(f'v_and_b32 v{tC}, 1, v{tB}'); a(f'v_lshlrev_b32 v{tC}, 1, v{tC}')
    a(f'v_lshrrev_b32 v{tD}, 1, v{tB}'); a(f'v_add_u32 v{tC}, v{tC}, v{tD}')
    a(f'v_lshlrev_b32 v{c.vXrow}, 4, v{tC}')
    a(f'v_lshl_add_u32 v{c.vXrow}, v{c.vI}, 12, v{c.vXrow}')
    a(f'v_lshlrev_b32 v{c.vFrag}, 8, v{tC}')
    a(f'v_lshl_add_u32 v{c.vFrag}, v{c.vI}, 4, v{c.vFrag}')
    a(f'v_lshlrev_b32 v{c.vStat}, 3, v{c.vI}')
    a(f'v_lshlrev_b32 v{c.vAb}, 4, v{L}')
    row_offsets(a)
    for tt in range(2):
        for P in range(2):
            r = c.xr[tt, P]
            a(f'buffer_load_dwordx4 v[{r}:{r+3}], v{c.vXrow}, {srd(S_AX)}, s{T0 if tt == 0 else T1} offen offset:{64*P}')
    a(f'v_lshrrev_b32 v{tC}, 2, v{c.vI}')
    a(f'v_lshl_add_u32 v{tD}, v{tB}, 3, v{tC}')
    a(f'v_lshlrev_b32 v{c.vW0b}, 7, v{tD}')
    a(f'v_and_b32 v{tD}, 3, v{c.vI}')
    a(f'v_lshl_add_u32 v{c.vW0b}, v{tD}, 3, v{c.vW0b}')
    a(f'v_lshrrev_b32 v{tC}, 1, v{tC}')
    a(f'v_and_b32 v{tD}, 1, v{tB}')
    a(f'v_lshl_add_u32 v{tC}, v{tD}, 1, v{tC}')
    for f in range(4):
        a(f'v_xor_b32 v{tD}, {f}, v{tC}')
        a(f'v_lshl_add_u32 v{c.vWB[f]}, v{tD}, 5, v{c.vW0b}')
        a(f'v_add_u32 v{c.vWBh[f]}, 0x10000, v{c.vWB[f]}')
    a(f's_lshl_b32 s{T0}, s{S_H}, 1')
    a(f'v_xor_b32 v{tC}, s{T0}, v{tC}')
    a(f'v_xor_b32 v{tD}, 1, v{tC}')
    a(f'v_lshl_add_u32 v{c.vW1b}, v{tD}, 5, v{c.vW0b}')
    a(f'v_lshl_add_u32 v{c.vW0b}, v{tC}, 5, v{c.vW0b}')
    vK, tmpv = tA, tD
    a(f'v_lshlrev_b32 v{vK}, 2, v{tB}')
    for r in range(4):
        sel = S_SEL + 2*r; val = S_VAL + 2*r; val0 = S_VAL0 + 2*r
        a(f'v_add_u32 v{tmpv}, {r}, v{vK}')
        a(f'v_cmp_le_u32 s[{sel}:{sel+1}], v{tmpv}, v{c.vI}')
        a(f'v_sub_u32 v{tmpv}, v{c.vI}, v{tmpv}')
        a(f'v_and_b32 v{tmpv}, 15, v{tmpv}')
        a(f'v_cmp_gt_u32 s[{val}:{val+1}], 8, v{tmpv}')
        a(f's_and_b64 s[{val0}:{val0+1}], s[{val}:{val+1}], s[{sel}:{sel+1}]')
        a(f's_cmp_eq_u32 s{S_RBA}, 0')
        a(f's_cselect_b64 s[{val0}:{val0+1}], s[{val0}:{val0+1}], s[{val}:{val+1}]')
    a(f'v_mov_b32 v{tC}, 0xffff'); a(f'v_mov_b32 v{tA}, 0xffff0000')
    for j in range(2):
        s0 = S_SEL + 4*j; s1 = s0 + 2
        a(f'v_cndmask_b32 v{c.M1[j]}, 0, v{tC}, s[{s0}:{s0+1}]')
        a(f'v_cndmask_b32 v{tmpv}, 0, v{tA}, s[{s1}:{s1+1}]')
        a(f'v_or_b32 v{c.M1[j]}, v{c.M1[j]}, v{tmpv}')
    a(f'v_and_b32 v{tC}, 3, v{c.vI}')
    a(f'v_cmp_eq_u32 s[{S_M1}:{S_M1+1}], 1, v{tC}')
    a(f'v_cmp_eq_u32 s[{S_M2}:{S_M2+1}], 2, v{tC}')
    a(f'v_cmp_eq_u32 s[{S_M3}:{S_M3+1}], 3, v{tC}')
    a(f'v_lshrrev_b32 v{tC}, 2, v{c.vI}')
    a(f'v_cmp_eq_u32 s[{S_DIAG}:{S_DIAG+1}], v{tC}, v{tB}')
    a(f's_mov_b32 s{S_C0+2}, 0x3e8293ee')
    a(f's_mov_b32 s{S_C0+1}, 0xffff0000')
    a(f'v_lshrrev_b32 v{tC}, 1, v{c.vI}')
    a(f'v_xor_b32 v{tC}, v{tC}, v{tB}')
    a(f'v_lshlrev_b32 v{tC}, 4, v{tC}')
    a(f'v_lshl_add_u32 v{c.vA0b}, v{c.vI}, 7, v{tC}')
    a(f'v_xor_b32 v{c.vA1b}, 64, v{c.vA0b}')
    x_dst_offsets(a, 0)
    xflag_off(a, T5)
    a(f's_mov_b32 s{S_FLAGAT}, 2')
    a('s_waitcnt vmcnt(0)')
    ST.put(a, 1, False)
    stats_and_store(a, c, store_x=False)
    swap_xr(a, c)
    a('s_waitcnt lgkmcnt(0)')
    a(f's_add_u32 s{S_NONCE}, s{S_NONCE}, 256')
    a(f's_add_u32 s{S_TAG}, s{S_NONCE}, 1')
    ST.put(a, 2, False)

def x_poll_offs(a):
    a(f's_lshl_b32 s{T0}, s{S_RBA}, 9'); a(f's_add_u32 s{T0}, s{T0}, {FX_OFF}')
    a(f's_sub_u32 s{T3}, s{S_RBA}, 1'); a(f's_max_i32 s{T3}, s{T3}, 0')
    a(f's_lshl_b32 s{T1}, s{T3}, 9'); a(f's_add_u32 s{T1}, s{T1}, {FX_OFF}')
def o_poll_offs(a):
    a(f's_lshl_b32 s{T0}, s{S_RBB}, 9'); a(f's_add_u32 s{T0}, s{T0}, {FO_OFF}')
def pre_poll(a, c, kind):
    sk = a.uniq('prepoll_skip'); pv = c.buf1
    a(f's_cmp_lg_u32 s{S_WAVE}, 0')
    a(f's_cbranch_scc1 {sk}')
    a(f'v_lshrrev_b32 v{pv}, 4, v{c.lane}')
    a(f'v_lshlrev_b32 v{pv}, 7, v{pv}')
    a(f'v_lshl_add_u32 v{pv}, v{c.vI}, 2, v{pv}')
    if kind == 'x':
        x_poll_offs(a); poll_issue(a, [(pv, T0), (pv, T1)], pv + 1)
    else:
        o_poll_offs(a); poll_issue(a, [(pv, T0)], pv + 1)
    a.label(sk)
def finish_poll(a, c, kind, mask, code):
    sk = a.uniq('poll_skip'); pv = c.buf1
    a(f's_cmp_lg_u32 s{S_WAVE}, 0')
    a(f's_cbranch_scc1 {sk}')
    n = 2 if kind == 'x' else 1
    if OPT.get('prepoll'):
        set_mask(a, mask)
        poll_test(a, S_TAG, n, pv + 1, True)
        a(f's_cbranch_scc1 {sk}')
    a(f'v_lshrrev_b32 v{pv}, 4, v{c.lane}')
    a(f'v_lshlrev_b32 v{pv}, 7, v{pv}')
    a(f'v_lshl_add_u32 v{pv}, v{c.vI}, 2, v{pv}')
    if kind == 'x':
        x_poll_offs(a); poll(a, S_TAG, [(pv, T0), (pv, T1)], pv + 1, code, mask)
    else:
        o_poll_offs(a); poll(a, S_TAG, [(pv, T0)], pv + 1, code, mask)
    a.label(sk)

def poll_addr(a, c):
    a(f'v_lshrrev_b32 v{c.buf0}, 4, v{c.lane}')
    a(f'v_lshlrev_b32 v{c.buf0}, 7, v{c.buf0}')
    a(f'v_lshl_add_u32 v{c.buf0}, v{c.vI}, 2, v{c.buf0}')

def a_consumer(a, c, par):
    acc, accH, buf = c.acc, c.accH, c.buf
    vA, vW0, vW1, vA1 = c.vA, c.vW0, c.vW1, c.vA1
    tag = f'p{par}'
    a.label(f'a_cons_{tag}')
    for k, r in list(acc.items()) + [(0, accH[0]), (1, accH[1])]:
        for j in range(0, 4): a(f'v_mov_b32 v{r+j}, 0')
    a(f's_mov_b32 s{S_SLOTA}, 0'); a(f's_mov_b32 s{S_SLOTW}, {W0}')
    a(f'v_mov_b32 v{vA}, v{c.vA0b}')
    a(f'v_mov_b32 v{vA1}, v{c.vA1b}')
    a(f'v_add_u32 v{vW0}, s{S_SLOTW}, v{c.vW0b}')
    a(f'v_add_u32 v{vW1}, s{S_SLOTW}, v{c.vW1b}')
    def reads(b, ks):
        d = buf[b]; out = []
        for u in range(3):
            for f in range(2):
                vW = vW0 if f == 0 else vW1
                for j in range(2):
                    r = d['w', u, f] + 2 * j
                    out.append(f'ds_read_b64_tr_b16 v[{r}:{r+1}], v{vW} offset:{u*8192 + ks*4096 + j*512}')
        for t in range(5):
            tau = par * 4 + t if t < 4 else 8
            r = d['t', t]
            out.append(f'ds_read_b128 v[{r}:{r+3}], v{vA if ks == 0 else vA1} offset:{tau*2048}')
        wq = out[0:4]; wk = out[4:8]; wv = out[8:12]; tt = out[12:17]
        return wq[0:2] + tt[0:4] + wq[2:4] + wk + wv + tt[4:5]
    def mfmas(b, halo_first=False):
        d = buf[b]; out = []; h = []
        for u in range(3):
            for f in range(2):
                for t in range(4):
                    cc = acc[u, f, t]; w = d['w', u, f]; x = d['t', t]
                    A, B = (w, x) if u < 2 else (x, w)
                    out.append(mfma(cc, A, B, cc))
        for f in range(2):
            cc = accH[f]; x = d['t', 4]
            A, B = (d['w', 1, f], x) if par == 0 else (x, d['w', 2, f])
            h.append(mfma(cc, A, B, cc))
        return h + out if halo_first else out + h
    def step(ms, fill, late=()):
        fl = list(fill) + list(late)
        for i, x in enumerate(ms):
            a(x)
            if i < len(fl): a(fl[i])
        for x in fl[len(ms):]: a(x)
    adv = [f's_add_u32 s{S_SLOTA}, s{S_SLOTA}, {A_SLOT}',
           f's_add_u32 s{S_SLOTW}, s{S_SLOTW}, {W_SLOT}',
           f's_cmp_eq_u32 s{S_SLOTA}, {3 * A_SLOT}',
           f's_cselect_b32 s{S_SLOTA}, 0, s{S_SLOTA}'] + ([
           f's_cmp_eq_u32 s{S_SLOTW}, {W0 + NW * W_SLOT}'] if NW != 3 else []) + [
           f's_cselect_b32 s{S_SLOTW}, {W0}, s{S_SLOTW}',
           f'v_add_u32 v{vA}, s{S_SLOTA}, v{c.vA0b}',
           f'v_add_u32 v{vA1}, s{S_SLOTA}, v{c.vA1b}',
           f'v_add_u32 v{vW0}, s{S_SLOTW}, v{c.vW0b}',
           f'v_add_u32 v{vW1}, s{S_SLOTW}, v{c.vW1b}']
    a(f's_mov_b32 s{S_CNT}, 0')
    a(f's_cmp_eq_u32 s{S_L}, 0')
    a(f's_cbranch_scc1 a_first_{tag}')
    finish_poll(a, c, 'x', lane_mask(order_a()[:OPT.get('xg1', 4)]), 0x101)
    a('s_barrier')
    a.label(f'a_first_{tag}')
    ST.put(a, 0)
    a('s_barrier')
    ST.put(a, 1); ST.cycl(a, 10)
    for x in reads(0, 0): a(x)
    a('s_waitcnt lgkmcnt(0)')
    lp = f'ac_loop_{tag}'
    a.label(lp)
    step(mfmas(0), reads(1, 1), adv)
    a('s_waitcnt lgkmcnt(0)')
    a('s_barrier')
    step(mfmas(1), reads(0, 0), [f's_cmp_eq_u32 s{S_CNT}, s{S_FLAGAT}', f's_cbranch_scc1 a_flag_{tag}\na_flag_back_{tag}:',
                                 f's_add_u32 s{S_CNT}, s{S_CNT}, 1', f's_cmp_lt_u32 s{S_CNT}, 15'])
    a('s_waitcnt lgkmcnt(0)')
    a(f's_cbranch_scc1 {lp}')
    a(f's_branch a_last_{tag}')
    a.label(f'a_flag_{tag}')
    a('s_waitcnt vmcnt(0)')
    flag_store(a, T5, S_TAG, c.tmp)
    a(f's_branch a_flag_back_{tag}')
    a.label(f'a_last_{tag}')
    step(mfmas(0), reads(1, 1))
    b0 = c.buf0
    colst = [b0 + 2*t for t in range(5)]
    csq = [b0 + 12, b0 + 16]; csk = [b0 + 20, b0 + 24]; csv = b0 + 10
    v4 = {0: (b0 + 28, b0 + 32), 1: (b0 + 36, b0 + 40)}
    b1 = c.buf1
    v4.update({2: (b1, b1 + 4), 3: (b1 + 8, b1 + 12), 4: (b1 + 16, b1 + 20)})
    vS, vS4, vC4, vC = vA, vW0, vW1, c.tmp
    pre = [f's_and_b32 s{T0}, s{S_L}, 1',
           f's_lshl_b32 s{T0}, s{T0}, 10',
           f's_lshl_b32 s{T1}, s{S_H}, 7',
           f's_add_u32 s{T0}, s{T0}, s{T1}',
           f's_add_u32 s{T0}, s{T0}, {CS0}',
           f'v_lshlrev_b32 v{vS}, 2, v{c.vI}',
           f'v_and_b32 v{vS4}, 0x30, v{c.lane}',
           f'v_add_u32 v{vC4}, s{T0}, v{vS4}',
           f'v_add_u32 v{vC}, s{T0}, v{vS}',
           f'v_add_u32 v{vS}, {NM0}, v{vS}',
           f'v_add_u32 v{vS4}, {NM0}, v{vS4}']
    for x in pre: a(x)
    a('s_waitcnt lgkmcnt(0)')
    a('s_barrier')
    def tile_of(t): return par * 4 + t if t < 4 else 8
    rd = []
    htile = 4
    if par == 0:
        rd += [f'ds_read_b32 v{colst[4]}, v{vS} offset:{8*64}', f'ds_read_b32 v{colst[4]+1}, v{vS} offset:{8*64 + 1024}']
    for f in range(2): rd.append(f'ds_read_b128 v[{csk[f]}:{csk[f]+3}], v{vC4} offset:{256 + 64*f}')
    for f in range(2): rd.append(f'ds_read_b32 v{csv+f}, v{vC} offset:{512 + 64*f}')
    v4order = [4, 0, 1, 2, 3] if par == 1 else [0, 1, 2, 3]
    slots = [v4[0], v4[1], v4[2], v4[3], v4[4]]
    v4m = {t: slots[n] for n, t in enumerate(v4order)}
    def v4read(t):
        return [f'ds_read_b128 v[{v4m[t][0]}:{v4m[t][0]+3}], v{vS4} offset:{tile_of(t)*64}',
                f'ds_read_b128 v[{v4m[t][1]}:{v4m[t][1]+3}], v{vS4} offset:{tile_of(t)*64 + 1024}']
    for t in v4order[:2]: rd += v4read(t)
    for t in range(4):
        rd += [f'ds_read_b32 v{colst[t]}, v{vS} offset:{tile_of(t)*64}', f'ds_read_b32 v{colst[t]+1}, v{vS} offset:{tile_of(t)*64 + 1024}']
    for f in range(2): rd.append(f'ds_read_b128 v[{csq[f]}:{csq[f]+3}], v{vC4} offset:{64*f}')
    step(mfmas(1, True), rd)
    for t in v4order[2:]:
        for x in v4read(t): a(x)
    ST.put(a, 2); ST.cycl(a, 11)
    def fix_col(r, cs, pair, scale):
        o = []
        for j in (0, 2):
            o.append(f'v_pk_fma_f32 v[{r+j}:{r+j+1}], v[{cs+j}:{cs+j+1}], v[{pair}:{pair+1}], v[{r+j}:{r+j+1}] op_sel_hi:[1,0,1]')
        if scale:
            for j in (0, 2):
                o.append(f'v_pk_mul_f32 v[{r+j}:{r+j+1}], v[{r+j}:{r+j+1}], v[{pair}:{pair+1}] op_sel:[0,1] op_sel_hi:[1,1]')
        return o
    def fix_row(r, f, t):
        nm, rs = v4m[t]; o = []
        for j in (0, 2):
            sel = 'op_sel_hi:[1,0,1]' if f == 0 else 'op_sel:[0,1,0] op_sel_hi:[1,1,1]'
            o.append(f'v_pk_fma_f32 v[{r+j}:{r+j+1}], v[{nm+j}:{nm+j+1}], v[{csv}:{csv+1}], v[{r+j}:{r+j+1}] {sel}')
        for j in (0, 2):
            o.append(f'v_pk_mul_f32 v[{r+j}:{r+j+1}], v[{r+j}:{r+j+1}], v[{rs+j}:{rs+j+1}]')
        return o
    a('s_waitcnt lgkmcnt(0)')
    H = accH[0]
    hs = []
    for f in range(2):
        s = fix_col(accH[f], csk[f], colst[4], True) if par == 0 else fix_row(accH[f], f, 4)
        hs.append(s)
    for x in interleave(hs): a(x)
    a(cvt(H, accH[0], accH[0] + 1)); a(cvt(H + 1, accH[0] + 2, accH[0] + 3))
    a(cvt(H + 2, accH[1], accH[1] + 1)); a(cvt(H + 3, accH[1] + 2, accH[1] + 3))
    vH = vA
    a(f'v_lshlrev_b32 v{vH}, 4, v{c.lane}')
    a(f's_lshl_b32 s{T0}, s{S_H}, 11')
    a(f's_add_u32 s{T0}, s{T0}, {HALO0}')
    a(f'v_add_u32 v{vH}, s{T0}, v{vH}')
    a(f'ds_write_b128 v{vH}, v[{H}:{H+3}] offset:{0 if par == 0 else 1024}')
    Qp = [acc[0, 0, t] for t in range(4)]
    Kp = [accH[1]] + [acc[1, 0, t] for t in range(4)]
    Vp = c.Vp
    streams = []
    for t in range(4):
        s = []
        for f in range(2): s += fix_col(acc[1, f, t], csk[f], colst[t], True)
        q = acc[1, 0, t]; q1 = acc[1, 1, t]
        s += [cvt(q, q, q + 1), cvt(q + 1, q + 2, q + 3), cvt(q + 2, q1, q1 + 1), cvt(q + 3, q1 + 2, q1 + 3)]
        for f in range(2): s += fix_col(acc[0, f, t], csq[f], colst[t], False)
        q = acc[0, 0, t]; q1 = acc[0, 1, t]
        s += [cvt(q, q, q + 1), cvt(q + 1, q + 2, q + 3), cvt(q + 2, q1, q1 + 1), cvt(q + 3, q1 + 2, q1 + 3)]
        s.append(f'v_mul_f32 v{colst[t]+1}, s{S_C0+2}, v{colst[t]+1}')
        streams.append(s)
    for x in interleave(streams): a(x)
    a('s_waitcnt lgkmcnt(0)')
    a('s_barrier')
    if par == 0:
        a(f'v_xor_b32 v{vW0}, {8*16}, v{vH}')
        a(f'v_xor_b32 v{vW1}, {32*16}, v{vH}')
        vKH, vVH = vW0, vW1
    else:
        vKH = vVH = vH
    a(f'ds_read_b128 v[{Kp[0]}:{Kp[0]+3}], v{vKH}')
    a(f'ds_read_b64 v[{Vp[0]}:{Vp[0]+1}], v{vVH} offset:1024')
    a(f'ds_read_b64 v[{Vp[1]}:{Vp[1]+1}], v{vVH} offset:1032')
    S0 = [acc[0, 1, t] for t in range(4)]; S1 = [acc[1, 1, t] for t in range(4)]
    smm = []
    for t in range(4): smm.append(mfma(S1[t], Kp[t+1], Qp[t]))
    for t in range(1, 4): smm.append(mfma(S0[t], Kp[t], Qp[t]))
    vfix = []
    for t in range(4):
        for f in range(2):
            r = acc[2, f, t]
            vfix.append(fix_row(r, f, t) + [cvt(Vp[f] + 2 + 2*t, r, r + 1), cvt(Vp[f] + 3 + 2*t, r + 2, r + 3)])
    vf = interleave(vfix[0:4]) + interleave(vfix[4:8])
    n = 0
    for x in smm:
        a(x)
        for y in vf[n:n+2]: a(y)
        n += 2
    for y in vf[n:]: a(y)
    a('s_waitcnt lgkmcnt(0)')
    a(mfma(S0[0], Kp[0], Qp[0]))
    vNEG = c.tmp
    a(f'v_mov_b32 v{vNEG}, 0xf149f2ca')
    streams = []
    for t in range(4):
        s = []
        m = S0[t]; tp = acc[1, 0, t]; Pop = acc[2, 0, t]; cq = colst[t] + 1
        Ob = [acc[0, 0, t], S1[t]]
        val = (S_VAL0 if t == 0 else S_VAL)
        for r in range(4):
            s.append(f'v_cndmask_b32 v{m+r}, v{S0[t]+r}, v{S1[t]+r}, s[{S_SEL+2*r}:{S_SEL+2*r+1}]')
        for r in range(4):
            s.append(f'v_cndmask_b32 v{m+r}, v{vNEG}, v{m+r}, s[{val+2*r}:{val+2*r+1}]')
        mx, t2 = tp, tp + 1
        s.append(f'v_max3_f32 v{mx}, v{m}, v{m+1}, v{m+2}')
        s.append(f'v_max_f32 v{mx}, v{mx}, v{m+3}')
        for sw in ('16', '32'):
            s.append(f'v_mov_b32 v{t2}, v{mx}')
            s.append(f'v_permlane{sw}_swap_b32 v{mx}, v{t2}')
            s.append(f'v_max_f32 v{mx}, v{mx}, v{t2}')
        s.append(f'v_mul_f32 v{mx}, v{mx}, v{cq}')
        for r in range(4): s.append(f'v_fma_f32 v{m+r}, v{m+r}, v{cq}, -v{mx}')
        for r in range(4): s.append(f'v_exp_f32 v{m+r}, v{m+r}')
        sm = tp
        s.append(f'v_add_f32 v{sm}, v{m}, v{m+1}')
        s.append(f'v_add_f32 v{t2}, v{m+2}, v{m+3}')
        s.append(f'v_add_f32 v{sm}, v{sm}, v{t2}')
        for sw in ('16', '32'):
            s.append(f'v_mov_b32 v{t2}, v{sm}')
            s.append(f'v_permlane{sw}_swap_b32 v{sm}, v{t2}')
            s.append(f'v_add_f32 v{sm}, v{sm}, v{t2}')
        s.append(f'v_rcp_f32 v{sm}, v{sm}')
        for r in range(4): s.append(f'v_mul_f32 v{m+r}, v{m+r}, v{sm}')
        s.append(cvt(tp + 2, m, m + 1)); s.append(cvt(tp + 3, m + 2, m + 3))
        for j in range(2):
            s.append(f'v_bfi_b32 v{Pop+j}, v{c.M1[j]}, 0, v{tp+2+j}')
            s.append(f'v_and_b32 v{Pop+2+j}, v{c.M1[j]}, v{tp+2+j}')
        for f in range(2):
            s.append(mfma(Ob[f], Vp[f] + 2*t, Pop))
        o = tp
        s.append(cvt(o, Ob[0], Ob[0] + 1)); s.append(cvt(o + 1, Ob[0] + 2, Ob[0] + 3))
        s.append(cvt(o + 2, Ob[1], Ob[1] + 1)); s.append(cvt(o + 3, Ob[1] + 2, Ob[1] + 3))
        s.append(f'v_permlane16_swap_b32 v{o}, v{o+2}')
        s.append(f'v_permlane16_swap_b32 v{o+1}, v{o+3}')
        s.append(f'buffer_store_dwordx4 v[{o}:{o+3}], v{c.vFrag}, {srd(S_WS)}, s{T0 + t} offen sc1')
        streams.append(s)
    a(f's_lshl_b32 s{T0}, s{S_L}, 22')
    a(f's_lshl_b32 s{T4}, s{S_RBA}, 18'); a(f's_add_u32 s{T0}, s{T0}, s{T4}')
    a(f's_lshl_b32 s{T4}, s{S_GA}, 11'); a(f's_add_u32 s{T0}, s{T0}, s{T4}')
    a(f's_lshl_b32 s{T4}, s{S_H}, 10'); a(f's_add_u32 s{T0}, s{T0}, s{T4}')
    a(f's_add_u32 s{T0}, s{T0}, {O_OFF + par * 4 * 32768}')
    for t in range(1, 4): a(f's_add_u32 s{T0+t}, s{T0}, {32768*t}')
    for x in interleave(streams): a(x)
    ST.put(a, 3)
    a(f's_lshl_b32 s{T5}, s{S_RBA}, 9')
    a(f's_lshl_b32 s{T4}, s{S_WAVE}, 7'); a(f's_add_u32 s{T5}, s{T5}, s{T4}')
    a(f's_lshl_b32 s{T4}, s{S_GA}, 2'); a(f's_add_u32 s{T5}, s{T5}, s{T4}')
    a(f's_add_u32 s{T5}, s{T5}, {FO_OFF}')
    if OPT.get('prepoll'): pre_poll(a, c, 'o')
    a('s_waitcnt vmcnt(0)')
    flag_store(a, T5, S_TAG, c.tmp)
    ST.put(a, 4)
    a('s_branch b_cons')

DEPTH = 16
def b_consumer(a, c):
    R = Regs(10, 204)
    acc = {(f, t): R.get(4, 4) for f in range(4) for t in range(2)}
    wb = [[R.get(4, 4) for f in range(4)] for b in range(2)]
    ring = [[R.get(4, 4) for t in range(2)] for d in range(DEPTH)]
    vW = c.vWB; vWh = c.vWBh
    prog = True
    order = order_b()
    heads = [2 * g + j for g in order for j in range(2)]
    a.label('b_cons')
    for tt in range(2):
        for f in range(4):
            x = c.xr[tt, f >> 1] + 2 * (f & 1); r = acc[f, tt]
            for j in range(2):
                a(f'v_lshlrev_b32 v{r+2*j}, 16, v{x+j}')
                a(f'v_and_b32 v{r+2*j+1}, s{S_C0+1}, v{x+j}')
    a(f's_lshl_b32 s{S_KA}, s{S_L}, 22')
    a(f's_lshl_b32 s{T4}, s{S_RBB}, 18'); a(f's_add_u32 s{S_KA}, s{S_KA}, s{T4}')
    a(f's_lshl_b32 s{T4}, s{S_WAVE}, 16'); a(f's_add_u32 s{S_KA}, s{S_KA}, s{T4}')
    a(f's_add_u32 s{S_KA}, s{S_KA}, {O_OFF}')
    a(f's_add_u32 s{S_KW}, s{S_KA}, 32768')
    def tok_load(n):
        o = []; hd = heads[n]
        if n % 2 == 0:
            o += [f's_add_u32 s{T0}, s{S_KA}, {(hd >> 2) * 4096}', f's_add_u32 s{T1}, s{S_KW}, {(hd >> 2) * 4096}']
        for t in range(2):
            r = ring[n % DEPTH][t]
            o.append(f'buffer_load_dwordx4 v[{r}:{r+3}], v{c.vAb}, {srd(S_WS)}, s{T0 + t} offen offset:{1024*(hd & 3)} sc1')
        return o
    def wreads(n):
        b = n & 1; out = []; hd = heads[n]
        for f in range(4):
            for j in range(2):
                r = wb[b][f] + 2*j
                out.append(f'ds_read_b64_tr_b16 v[{r}:{r+1}], v{(vW if hd < 16 else vWh)[f]} offset:{(hd % 16)*4096 + j*512}')
        return out
    finish_poll(a, c, 'o', lane_mask(order[:DEPTH // 2]), 0x200)
    a('s_barrier')
    ST.put(a, 5)
    D0 = OPT.get('d0', 12)
    for n in range(D0):
        for x in tok_load(n): a(x)
    ptr = D0
    for x in wreads(0): a(x)
    nlate = len(OPT.get('late', [3, 11]))
    for n in range(32):
        b = n & 1
        nxt = wreads(n + 1) if n + 1 < 32 else []
        later = ptr - n - 1
        a(f's_waitcnt vmcnt({2*later}) lgkmcnt(0)')
        if n == 0: ST.put(a, 6)
        ms = []
        for f in range(4):
            for t in range(2):
                cc = acc[f, t]; w = wb[b][f]; x = ring[n % DEPTH][t]
                ms.append(mfma(cc, w, x, cc))
        for i, m in enumerate(ms):
            a(m)
            if i < len(nxt): a(nxt[i])
        new = min(32, n + DEPTH + 1, D0 + 2 * (n + 1))
        for m in range(ptr, new):
            if m == DEPTH or m == 32 - 2 * nlate:
                a('s_barrier')
            for x in tok_load(m): a(x)
        ptr = new
    a('s_barrier')
    ST.put(a, 7)
    for tt in range(2):
        for f in range(4):
            x = c.xr[tt, f >> 1] + 2 * (f & 1); r = acc[f, tt]
            a(cvt(x, r, r + 1)); a(cvt(x + 1, r + 2, r + 3))
    swap_xr(a, c)
    a(f's_cmp_eq_u32 s{S_L}, 3')
    a('s_cbranch_scc1 b_final')
    x_dst_offsets(a, 1)
    stats_and_store(a, c)
    swap_xr(a, c)
    xflag_off(a, T5)
    a(f's_add_u32 s{S_L}, s{S_L}, 1')
    a(f's_add_u32 s{S_TAG}, s{S_TAG}, 1')
    set_ga(a)
    ST.put(a, 8 - 12)
    a(f's_mov_b32 s{S_FLAGAT}, -1')
    a(f'v_mov_b32 v{c.vA0b}, v{c.vAb}')
    a(f'v_add_u32 v{c.vA1b}, 1024, v{c.vAb}')
    if OPT.get('prepoll'): pre_poll(a, c, 'x')
    a('s_waitcnt vmcnt(0)')
    flag_store(a, T5, S_TAG, c.tmp)
    ST.put(a, 9 - 12)
    a(f's_bitcmp1_b32 s{S_WAVE}, 0')
    a('s_cbranch_scc1 a_cons_p1')
    a('s_branch a_cons_p0')
    a.label('b_final')
    a(f's_or_b32 s{T4}, s2, s{S_WAVE}')
    a(f's_cmp_lg_u32 s{T4}, 0')
    a('s_cbranch_scc1 b_final_rows')
    a(f's_mov_b32 s{T5}, {E_OFF}')
    flag_store(a, T5, S_NONCE, c.tmp)
    a.label('b_final_rows')
    row_offsets(a)
    for tt in range(2):
        for P in range(2):
            r = c.xr[tt, P]
            a(f'buffer_store_dwordx4 v[{r}:{r+3}], v{c.vXrow}, {srd(S_OUT)}, s{T0 if tt == 0 else T1} offen offset:{64*P}')
    ST.put(a, 8)
    if OPT.get('stamps'): a('s_waitcnt vmcnt(0)')
    ST.put(a, 9)
    ST.cyc(a, 61)
    ST.flush(a)
    a('s_endpgm')

class VM:
    def __init__(self): self.q = []; self.nt = 0; self.nw = 0
    def add(self, name, n): self.q.append([name, n])
    def wait(self, a, name):
        if not any(nm == name for nm, n in self.q): return
        idx = max(i for i, (nm, n) in enumerate(self.q) if nm == name)
        later = sum(n for nm, n in self.q[idx+1:])
        assert later <= 63
        a(f's_waitcnt vmcnt({later})')
        self.q = self.q[idx+1:]
    def wait_any(self, a, names):
        idxs = [i for i, (nm, n) in enumerate(self.q) if nm in names]
        if not idxs: return
        idx = max(idxs)
        later = sum(n for nm, n in self.q[idx+1:])
        assert later <= 63
        a(f's_waitcnt vmcnt({later})')
        self.q = self.q[idx+1:]
    def clear(self): self.q = []

def producer(a, pw):
    vT, vHalo, vPoll = 1, 2, 5
    vW = [3, 4]
    vTL = [6, 7]
    vWS = [16, 17]
    vLD = 18
    S_CSF = 74
    S_BSET = S_OUT
    tagn = f'w{pw}'
    a.label(f'prod_{tagn}')
    a('v_and_b32 v9, 63, v0')
    a('v_lshrrev_b32 v10, 3, v9')
    a('v_and_b32 v11, 7, v9')
    a('v_lshrrev_b32 v12, 4, v9')
    a('v_and_b32 v13, 15, v9')
    a(f'v_lshlrev_b32 v{vT}, 4, v9')
    for par in range(2):
        a('v_and_b32 v14, 1, v12')
        a(f'v_or_b32 v14, {2*par}, v14')
        a('v_lshlrev_b32 v14, 1, v14')
        a('v_xor_b32 v14, v14, v11')
        a('v_lshlrev_b32 v14, 4, v14')
        a('v_mul_u32_u24 v15, 6144, v10')
        a(f'v_add_u32 v{vW[par]}, v14, v15')
        a(f'v_lshl_add_u32 v{vWS[par]}, v10, 7, v14')
    for half in range(2):
        a(f'v_or_b32 v14, {4*half}, v12')
        a('v_xor_b32 v14, v14, v11')
        a('v_lshlrev_b32 v14, 4, v14')
        a(f'v_lshl_add_u32 v{vTL[half]}, v10, 12, v14')
    order = order_a(); order2 = order_b()
    wpieces = list(range(6*pw, 6*pw+6))
    nT = 5 if pw < 2 else 4
    vm = VM()
    def adv_w():
        a(f's_add_u32 s{S_SLOTW}, s{S_SLOTW}, {W_SLOT}')
        a(f's_cmp_eq_u32 s{S_SLOTW}, {W0 + NW * W_SLOT}')
        a(f's_cselect_b32 s{S_SLOTW}, {W0}, s{S_SLOTW}')
    def adv_t():
        a(f's_add_u32 s{S_SLOTA}, s{S_SLOTA}, {A_SLOT}')
        a(f's_cmp_eq_u32 s{S_SLOTA}, {3 * A_SLOT}')
        a(f's_cselect_b32 s{S_SLOTA}, 0, s{S_SLOTA}')
    def reset_w():
        vm.nw = 0
        a(f's_mov_b32 s{S_SLOTW}, {W0}')
    def issue_W(name, first):
        kw = order[vm.nw]; vm.nw += 1
        if first:
            for n, q in enumerate(wpieces):
                u = q >> 3; pp = q & 7
                a(f's_add_u32 m0, s{S_SLOTW}, {u * 8192 + pp * 1024}')
                a(f's_add_u32 s{S_TMP}, s{S_PB+n}, {kw * 64 * 6144}')
                a(f'buffer_load_dwordx4 v{vW[pp & 1]}, {srd(S_WQ)}, s{S_TMP} offen {OPT.get("wmod", "")} lds')
        else:
            for base, cnt in ((0, 4), (4096, 2)):
                a(f's_add_u32 m0, s{S_SLOTW}, {pw * 6144 + base}')
                a(f's_add_u32 s{S_TMP}, s{S_PB}, {kw * W_SLOT + base}')
                for j in range(cnt):
                    a(f'buffer_load_dwordx4 v{vT}, {srd(S_WS)}, s{S_TMP} offen offset:{1024*j} {OPT.get("wmod", "")} lds')
        adv_w()
        vm.add(name, 6)
    def issue_T(name, first):
        k = order[vm.nt]; vm.nt += 1
        if first:
            for tt in range(2):
                for half in range(2):
                    a(f's_add_u32 m0, s{S_SLOTA}, {pw * 4096 + tt * 2048 + half * 1024}')
                    a(f's_add_u32 s{S_TMP}, s{S_TB}, {tt * 65536 + half * 32768 + k * 128}')
                    a(f'buffer_load_dwordx4 v{vTL[half]}, {srd(S_AX)}, s{S_TMP} offen lds')
            if pw < 2:
                a(f's_add_u32 m0, s{S_SLOTA}, {16384 + pw * 1024}')
                a(f's_add_u32 s{S_TMP}, s{S_HB}, {k * 128}')
                a(f'buffer_load_dwordx4 v{vTL[pw]}, {srd(S_AX)}, s{S_TMP} offen lds')
        else:
            a(f's_add_u32 m0, s{S_SLOTA}, {pw * 4096}')
            a(f's_add_u32 s{S_TMP}, s{S_TB}, {k * 16384}')
            for j in range(4):
                a(f'buffer_load_dwordx4 v{vT}, {srd(S_WS)}, s{S_TMP} offen offset:{1024*j} sc1 lds')
            if pw < 2:
                a(f's_add_u32 m0, s{S_SLOTA}, {16384 + pw * 1024}')
                a(f's_add_u32 s{S_TMP}, s{S_HB}, {k * 16384}')
                a(f'buffer_load_dwordx4 v{vHalo}, {srd(S_WS)}, s{S_TMP} offen sc1 lds')
        adv_t()
        vm.add(name, nT)
    def stats_sources():
        a(f's_sub_u32 s{T3}, s{S_RBA}, 1')
        a(f's_max_i32 s{T3}, s{T3}, 0')
        a(f's_lshl_b32 s{T0}, s{S_L}, 18')
        a(f's_lshl_b32 s{T4}, s{S_RBA}, 14'); a(f's_add_u32 s{S_SB}, s{T0}, s{T4}')
        a(f's_lshl_b32 s{T4}, s{T3}, 14'); a(f's_add_u32 s{S_SH}, s{T0}, s{T4}')
        a(f's_add_u32 s{S_SB}, s{S_SB}, {S_OFF + (512 if pw == 1 else 0)}')
        a(f's_add_u32 s{S_SH}, s{S_SH}, {S_OFF}')
    a(f's_lshl_b32 s{T1}, s{S_GA}, 7')
    for n, q in enumerate(wpieces):
        u = q >> 3; pp = q & 7
        a(f's_add_u32 s{S_PB+n}, s{T1}, {pp * 8 * 6144 + u * 2048}')
    stats_sources()
    a(f's_lshl_b32 s{S_TB}, s{S_RBA}, 18')
    a(f's_add_u32 s{S_TB}, s{S_TB}, {((pw & 1) * 64 + (pw >> 1)) * 2048}')
    a(f's_lshl_b32 s{S_HB}, s{T3}, 18')
    a(f's_add_u32 s{S_HB}, s{S_HB}, {(112 + (pw & 1)) * 2048}')
    SV = 32
    a(f'v_mul_u32_u24 v15, {6144 if pw < 3 else 2048}, v10')
    a(f'v_lshl_add_u32 v{vLD}, v11, 4, v15')
    if pw < 3:
        a(f's_mov_b32 s{S_BSET}, s{P_BWQ}'); a(f's_mov_b32 s{S_BSET+1}, s{P_BWQ+1}')
        a(f's_mov_b32 s{S_BSET+2}, {1024 * 6144}')
    else:
        a(f's_mov_b32 s{S_BSET}, s{P_BWO}'); a(f's_mov_b32 s{S_BSET+1}, s{P_BWO+1}')
        a(f's_mov_b32 s{S_BSET+2}, {1024 * 2048}')
    def rp_issue(st):
        row = 6144 if pw < 3 else 2048
        a(f's_mul_i32 s{T0}, s{S_RBA}, {64 * row}')
        a(f's_lshl_b32 s{T4}, s{S_GA}, 7'); a(f's_add_u32 s{T0}, s{T0}, s{T4}')
        if pw < 3 and pw: a(f's_add_u32 s{T0}, s{T0}, {pw * 2048}')
        d = (S_WQ if pw < 3 else S_WO) if st == 0 else S_BSET
        for j in range(8):
            r = SV + 32 * st + 4 * j
            a(f's_add_u32 s{S_TMP}, s{T0}, {j * 8 * row}')
            a(f'buffer_load_dwordx4 v[{r}:{r+3}], v{vLD}, {srd(d)}, s{S_TMP} offen')
        vm.add(f'C{st}', 8)
    rp0 = OPT.get('rp0', 'start')
    reset_w()
    a(f's_mov_b32 s{S_SLOTA}, 0'); vm.nt = 0
    if rp0 == 'start' and pw < 3: rp_issue(0)
    issue_W('W0', True); issue_T('T0', True)
    if rp0 == 'second' and pw < 3: rp_issue(0)
    issue_W('W1', True); issue_T('T1', True); issue_T('T2', True)
    for n in range(2, NW): issue_W(f'W{n}', True)
    if rp0 != 'late':
        if pw == 3: rp_issue(0)
        rp_issue(1)
    a('v_lshlrev_b32 v14, 8, v12')
    a('v_or_b32 v15, 8, v13')
    a('v_lshl_add_u32 v14, v15, 4, v14')
    a('v_lshrrev_b32 v15, 3, v13')
    a('v_lshlrev_b32 v15, 13, v15')
    a('v_add_u32 v14, v14, v15')
    a(f'v_add_u32 v{vHalo}, {3 * 2048}, v14')
    a('v_lshlrev_b32 v14, 7, v12')
    a(f'v_lshl_add_u32 v{vPoll}, v13, 2, v14')
    a(f's_lshl_b32 s{S_CSF}, s{S_GA}, 9')
    a(f's_lshl_b32 s{T4}, s{S_RBA}, 2'); a(f's_add_u32 s{S_CSF}, s{S_CSF}, s{T4}')
    a(f's_add_u32 s{S_CSF}, s{S_CSF}, {FC_OFF + pw * 128}')
    a('s_waitcnt lgkmcnt(0)')
    a(f's_add_u32 s{S_NONCE}, s{S_NONCE}, 256')
    a(f's_add_u32 s{S_TAG}, s{S_NONCE}, 1')
    def rp_process(st):
        vm.wait(a, f'C{st}')
        if pw < 3:
            A = 100
            if OPT.get('dot2', 'v') == 'no':
                a(f's_mov_b32 s{T2}, 0xffff0000')
                for j in range(8):
                    r = SV + 32 * st + 4 * j
                    for q in range(4):
                        if j == 0:
                            a(f'v_lshlrev_b32 v{A+2*q}, 16, v{r+q}')
                            a(f'v_and_b32 v{A+2*q+1}, s{T2}, v{r+q}')
                        else:
                            a(f'v_lshlrev_b32 v20, 16, v{r+q}')
                            a(f'v_and_b32 v21, s{T2}, v{r+q}')
                            a(f'v_add_f32 v{A+2*q}, v{A+2*q}, v20')
                            a(f'v_add_f32 v{A+2*q+1}, v{A+2*q+1}, v21')
            else:
                a('v_mov_b32 v20, 0x3f80'); a('v_mov_b32 v21, 0x3f800000')
                for e in range(8): a(f'v_mov_b32 v{A+e}, 0')
                for j in range(8):
                    r = SV + 32 * st + 4 * j
                    for q in range(4):
                        a(f'v_dot2c_f32_bf16 v{A+2*q}, v20, v{r+q}')
                        a(f'v_dot2c_f32_bf16 v{A+2*q+1}, v21, v{r+q}')
            streams = []
            for e in range(8):
                v = A + e; t = 120 + e; sq = []
                sq.append(f'v_add_f32_dpp v{v}, v{v}, v{v} row_ror:8 row_mask:0xf bank_mask:0xf')
                for sw in ('16', '32'):
                    sq.append(f'v_mov_b32 v{t}, v{v}')
                    sq.append(f'v_permlane{sw}_swap_b32 v{v}, v{t}')
                    sq.append(f'v_add_f32 v{v}, v{v}, v{t}')
                streams.append(sq)
            for x in interleave(streams): a(x)
            a(f's_lshl_b32 s{T0}, s{S_GA}, 14')
            a(f's_lshl_b32 s{T4}, s{S_RBA}, 10'); a(f's_add_u32 s{T0}, s{T0}, s{T4}')
            a(f's_add_u32 s{T0}, s{T0}, {CSP_OFF + pw * 256 + st * 262144}')
            a('v_lshlrev_b32 v20, 5, v11')
            a('s_mov_b64 exec, 0xff')
            for q in range(2):
                a(f'buffer_store_dwordx4 v[{A+4*q}:{A+4*q+3}], v20, {srd(S_WS)}, s{T0} offen offset:{16*q} sc1')
            a('s_mov_b64 exec, -1')
            vm.add(f'CS{st}', 2)
            a(f's_mul_i32 s{T0}, s{S_GA}, {16 * W_SLOT}')
            a(f's_mul_i32 s{T4}, s{S_RBA}, {W_SLOT}'); a(f's_add_u32 s{T0}, s{T0}, s{T4}')
            a(f's_add_u32 s{T0}, s{T0}, {WP_OFF + st * 6 * MB + pw * 8192}')
        else:
            a(f's_lshl_b32 s{T0}, s{S_GB}, 17')
            a(f's_lshl_b32 s{T4}, s{S_RBB}, 13'); a(f's_add_u32 s{T0}, s{T0}, s{T4}')
            a(f's_add_u32 s{T0}, s{T0}, {WOP_OFF + st * 2 * MB}')
        for j in range(8):
            r = SV + 32 * st + 4 * j
            if j == 4: a(f's_add_u32 s{T0}, s{T0}, 4096')
            a(f'buffer_store_dwordx4 v[{r}:{r+3}], v{vWS[j & 1]}, {srd(S_WS)}, s{T0} offen offset:{(j % 4) * 1024} sc1')
        vm.add(f'RP{st}', 8)
    def cs_poll_off():
        a(f's_lshl_b32 s{T0}, s{S_GA}, 9'); a(f's_add_u32 s{T0}, s{T0}, {FC_OFF}')
    def cs_poll_issue():
        cs_poll_off()
        a(f'buffer_load_dword v20, v{vPoll}, {srd(S_WS)}, s{T0} offen sc1')
        vm.add('X', 1)
    def cs_check(plus, mask, code):
        vm.wait(a, 'X')
        ok = a.uniq('cs_ok')
        a(f's_add_u32 s{T1}, s{S_NONCE}, {plus}')
        set_mask(a, mask)
        poll_test(a, T1, 1, 20, True)
        a(f's_cbranch_scc1 {ok}')
        cs_poll_off()
        poll(a, T1, [(vPoll, T0)], 20, code, mask)
        a.label(ok)
    def cs_loads():
        a(f's_and_b32 s{T0}, s{S_L}, 1'); a(f's_lshl_b32 s{T0}, s{T0}, 18')
        a(f's_lshl_b32 s{T4}, s{S_GA}, 14'); a(f's_add_u32 s{T0}, s{T0}, s{T4}')
        a(f's_add_u32 s{T0}, s{T0}, {CSP_OFF}')
        for rb in range(16):
            if rb % 4 == 0: a(f's_add_u32 s{S_TMP}, s{T0}, {rb * 1024}')
            a(f'buffer_load_dwordx4 v[{SV+4*rb}:{SV+4*rb+3}], v{vT}, {srd(S_WS)}, s{S_TMP} offen offset:{(rb % 4) * 1024} sc1')
        vm.add('Y', 16)
    def cs_process():
        vm.wait(a, 'Y')
        for rb in range(1, 16):
            for q in range(4): a(f'v_add_f32 v{SV+q}, v{SV+q}, v{SV+4*rb+q}')
        a(f's_and_b32 s{T0}, s{S_L}, 1'); a(f's_lshl_b32 s{T0}, s{T0}, 10'); a(f's_add_u32 s{T0}, s{T0}, {CS0}')
        a(f'v_add_u32 v20, s{T0}, v{vT}')
        a(f'ds_write_b128 v20, v[{SV}:{SV+3}]')
        a('s_waitcnt lgkmcnt(0)')
    def stats_issue():
        base = S_SB if pw < 2 else S_SH
        va = vLD
        if pw < 2:
            a(f'v_lshlrev_b32 v{va}, 3, v9')
        else:
            a('v_or_b32 v14, 8, v13')
            a('v_lshlrev_b32 v14, 3, v14')
            a('v_lshrrev_b32 v15, 3, v13')
            a('v_lshlrev_b32 v15, 9, v15')
            a('v_add_u32 v14, v14, v15')
            a(f'v_add_u32 v{va}, 384, v14')
        for cgi in range(16):
            if cgi % 4 == 0: a(f's_add_u32 s{S_TMP}, s{base}, {cgi * 1024}')
            a(f'buffer_load_dwordx2 v[{SV+2*cgi}:{SV+2*cgi+1}], v{va}, {srd(S_WS)}, s{S_TMP} offen offset:{(cgi % 4) * 1024} sc1')
        vm.add('X', 16)
    def stats_process():
        vm.wait(a, 'X')
        for cgi in range(1, 16):
            a(f'v_add_f32 v{SV}, v{SV}, v{SV+2*cgi}')
            a(f'v_add_f32 v{SV+1}, v{SV+1}, v{SV+2*cgi+1}')
        a(f's_mov_b32 s{T0}, 0x3a800000')
        a(f'v_mul_f32 v{SV}, s{T0}, v{SV}')
        a(f'v_mul_f32 v{SV+1}, s{T0}, v{SV+1}')
        a(f'v_fma_f32 v{SV+1}, -v{SV}, v{SV}, v{SV+1}')
        a(f'v_max_f32 v{SV+1}, 0, v{SV+1}')
        a(f'v_add_f32 v{SV+1}, 0x3727c5ac, v{SV+1}')
        a(f'v_rsq_f32 v{SV+1}, v{SV+1}')
        a(f'v_sub_f32 v{SV}, 0, v{SV}')
        base = NM0 + (256 if pw == 1 else 512 if pw == 2 else 0)
        a(f'v_lshlrev_b32 v20, 2, v{9 if pw < 2 else 13}')
        a(f'v_add_u32 v20, {base}, v20')
        a(f'ds_write_b32 v20, v{SV}')
        a(f'ds_write_b32 v20, v{SV+1} offset:1024')
        a('s_waitcnt lgkmcnt(0)')
    xg1 = OPT.get('xg1', 4); xg2 = OPT.get('xg2', 10); nlate = len(OPT.get('late', [3, 11]))
    def xpoll_addr():
        a(f's_lshl_b32 s{T0}, s{S_RBA}, 9'); a(f's_add_u32 s{T0}, s{T0}, {FX_OFF}')
        a(f's_sub_u32 s{T3}, s{S_RBA}, 1'); a(f's_max_i32 s{T3}, s{T3}, 0')
        a(f's_lshl_b32 s{T1}, s{T3}, 9'); a(f's_add_u32 s{T1}, s{T1}, {FX_OFF}')
    PV = 22
    def stages(first):
        checks = {xg2 - 2: order} if first else {xg1 - 2: order[:xg2], xg2 - 2: order}
        dist = OPT.get('pidist', 2)
        def after(k):
            if pw == 3 and (k + dist) in checks:
                xpoll_addr(); poll_issue(a, [(vPoll, T0), (vPoll, T1)], PV); vm.add('P', 2)
        after(0)
        if first and rp0 == 'late': rp_issue(0)
        p0, p1, pf1, pf2 = OPT.get('rpsched', (3, 5, 5, 8) if rp0 == 'late' else (0, 2, 2, 5))
        s_stats = OPT.get('s_stats', 11); s_cs = OPT.get('s_cs', 11)
        for s in range(15):
            if OPT.get('l0st') is not None and first == (OPT['l0st'] == 0):
                def st2(reg, idx):
                    a(f's_memrealtime s[{S_ST}:{S_ST+1}]'); a('s_waitcnt lgkmcnt(0)'); a(f'v_writelane_b32 v{reg}, s{S_ST}, {idx}')
                st2(24, s)
                vm.wait_any(a, (f'W{s+1}',)); st2(24, 16 + s)
                vm.wait_any(a, (f'T{s+1}',)); st2(24, 32 + s)
            vm.wait_any(a, (f'T{s+1}', f'W{s+1}'))
            if pw == 3 and (s + 1) in checks:
                vm.wait(a, 'P')
                ok = a.uniq('x_ok')
                set_mask(a, lane_mask(checks[s + 1]))
                poll_test(a, S_TAG, 2, PV, True)
                a(f's_cbranch_scc1 {ok}')
                xpoll_addr()
                poll(a, S_TAG, [(vPoll, T0), (vPoll, T1)], PV, 0x102, lane_mask(checks[s + 1]))
                a.label(ok)
            a('s_barrier')
            after(s + 1)
            if s + 3 <= 15: issue_T(f'T{s+3}', first)
            if s + NW <= 15: issue_W(f'W{s+NW}', first)
            if first:
                if s == 0 and rp0 == 'late': rp_issue(1)
                if s == p0: rp_process(0)
                if s == pf1 and pw < 3:
                    vm.wait(a, 'CS0'); flag_store(a, S_CSF, S_TAG, 20); vm.add('F', 1)
                if s == p1: rp_process(1)
                if s == pf2:
                    vm.wait(a, 'RP1')
                    a(f's_add_u32 s{T1}, s{S_NONCE}, 2')
                    flag_store(a, S_CSF, T1, 20); vm.add('F', 1)
            if pw < 3:
                if s == s_stats: stats_issue()
                if s == 14: stats_process()
            elif first:
                if s == s_cs - 2: cs_poll_issue()
                if s == s_cs:
                    cs_check(1, lane_mask(range(16), (0, 1, 2)), 0x300); cs_loads(); cs_poll_issue()
                if s == 14:
                    cs_process(); cs_check(2, lane_mask(range(16)), 0x301)
            else:
                if s == s_cs: cs_loads()
                if s == 14: cs_process()
        a('s_barrier')
    vm.wait_any(a, ('T0', 'W0'))
    ST.put(a, 1)
    a('s_barrier')
    stages(True)
    a(f's_branch prod_tail_{tagn}')
    a.label(f'prod_layer_{tagn}')
    vm.clear()
    stats_sources()
    a(f's_lshl_b32 s{T0}, s{S_L}, 22')
    a(f's_lshl_b32 s{T4}, s{S_RBA}, 18')
    a(f's_add_u32 s{S_TB}, s{T0}, s{T4}')
    a(f's_lshl_b32 s{T4}, s{T3}, 18')
    a(f's_add_u32 s{S_HB}, s{T0}, s{T4}')
    a(f's_add_u32 s{S_TB}, s{S_TB}, {X_OFF + pw * 4096}')
    a(f's_add_u32 s{S_HB}, s{S_HB}, {X_OFF + (pw & 1) * 1024}')
    a(f's_mov_b32 s{S_SLOTA}, 0'); vm.nt = 0; vm.nw = NW
    ST.put(a, 0)
    a('s_barrier')
    for n in range(3): issue_T(f'T{n}', False)
    vm.wait(a, 'T0')
    ST.put(a, 1)
    a('s_barrier')
    stages(False)
    a.label(f'prod_tail_{tagn}')
    ST.put(a, 2)
    a(f's_and_b32 s{T0}, s{S_L}, 1'); a(f's_lshl_b32 s{T0}, s{T0}, 21')
    a(f's_lshl_b32 s{T4}, s{S_GB}, 17'); a(f's_add_u32 s{T0}, s{T0}, s{T4}')
    a(f's_add_u32 s{T0}, s{T0}, {WOP_OFF + pw * 4096}')
    def wo_chunk(j):
        a(f's_mov_b32 m0, {j*16384 + pw*4096}')
        a(f's_add_u32 s{S_TMP}, s{T0}, {j * 16384}')
        for n in range(4):
            a(f'buffer_load_dwordx4 v{vT}, {srd(S_WS)}, s{S_TMP} offen offset:{n * 1024} lds')
    for j in range(2): wo_chunk(j)
    a('s_barrier')
    for j in range(2, 8): wo_chunk(j)
    a('s_waitcnt vmcnt(0)')
    ST.put(a, 5)
    a('s_barrier')
    if pw == 0:
        a(f's_lshl_b32 s{T0}, s{S_RBB}, 9'); a(f's_add_u32 s{T0}, s{T0}, {FO_OFF}')
        poll(a, S_TAG, [(vPoll, T0)], 20, 0x201, lane_mask(order2[:16 - nlate]))
    a('s_barrier')
    if pw == 0:
        poll(a, S_TAG, [(vPoll, T0)], 20, 0x202, lane_mask(order2))
    a('s_barrier')
    a(f's_cmp_eq_u32 s{S_L}, 3')
    a(f's_cbranch_scc1 prod_end_{tagn}')
    a(f's_add_u32 s{S_L}, s{S_L}, 1')
    a(f's_add_u32 s{S_TAG}, s{S_TAG}, 1')
    a(f's_and_b32 s{T0}, s{S_L}, 1'); a(f's_mul_i32 s{T0}, s{T0}, {6 * MB}')
    a(f's_mul_i32 s{T4}, s{S_GA}, {16 * W_SLOT}'); a(f's_add_u32 s{T0}, s{T0}, s{T4}')
    a(f's_add_u32 s{S_PB}, s{T0}, {WP_OFF + pw * 6144}')
    a('s_barrier')
    reset_w()
    for n in range(NW): issue_W(f'W{n}', False)
    a(f's_branch prod_layer_{tagn}')
    a.label(f'prod_end_{tagn}')
    a('s_barrier')
    ST.cyc(a, 61)
    ST.flush(a)
    if OPT.get('l0st') is not None:
        a(f's_add_u32 s{T0}, s{T0}, {1 << 20}')
        a(f'buffer_store_dword v24, v1, {srd(S_WS)}, s{T0} offen')
        a('s_waitcnt vmcnt(0)')
    a('s_endpgm')

def build(opts):
    OPT.clear(); OPT.update(opts)
    set_lds_map(OPT.get('nw', 4))
    a = Asm()
    kname = NAME + '_kernel'
    a.raw(f'.globl {kname}')
    a.raw('.p2align 8')
    a.raw(f'.type {kname},@function')
    a.label(kname)
    a('s_cmp_ge_u32 s2, 256')
    a('s_cbranch_scc1 k_done')
    a(f's_load_dwordx2 s[{S_AX}:{S_AX+1}], s[0:1], {K_AX}')
    a(f's_load_dwordx2 s[{P_AWQ}:{P_AWQ+1}], s[0:1], {K_AWQKV}')
    a(f's_load_dwordx2 s[{P_AWO}:{P_AWO+1}], s[0:1], {K_AWO}')
    a(f's_load_dwordx2 s[{P_BWQ}:{P_BWQ+1}], s[0:1], {K_BWQKV}')
    a(f's_load_dwordx2 s[{P_BWO}:{P_BWO+1}], s[0:1], {K_BWO}')
    a(f's_load_dwordx2 s[{S_OUT}:{S_OUT+1}], s[0:1], {K_OUT}')
    a(f's_load_dwordx2 s[{S_DBG}:{S_DBG+1}], s[0:1], {K_DBG}')
    a(f's_load_dwordx2 s[{S_WS}:{S_WS+1}], s[0:1], {K_WS}')
    if OPT.get('stamps'):
        a(f'v_mov_b32 v{V_ST}, 0')
    a(f's_and_b32 s{T0}, s2, 7')
    a(f's_lshr_b32 s{T1}, s2, 3')
    if OPT.get('map', 'same') == 'old':
        a(f's_and_b32 s{S_RBA}, s{T0}, 1'); a(f's_lshl_b32 s{S_RBA}, s{S_RBA}, 3')
        a(f's_and_b32 s{T2}, s{T1}, 7'); a(f's_add_u32 s{S_RBA}, s{S_RBA}, s{T2}')
        a(f's_lshr_b32 s{S_GA}, s{T0}, 1'); a(f's_lshl_b32 s{S_GA}, s{S_GA}, 2')
        a(f's_lshr_b32 s{T2}, s{T1}, 3'); a(f's_add_u32 s{S_GA}, s{S_GA}, s{T2}')
    else:
        a(f's_and_b32 s{S_RBA}, s{T0}, 3'); a(f's_lshl_b32 s{S_RBA}, s{S_RBA}, 2')
        a(f's_and_b32 s{T2}, s{T1}, 3'); a(f's_add_u32 s{S_RBA}, s{S_RBA}, s{T2}')
        a(f's_lshr_b32 s{S_GA}, s{T0}, 2'); a(f's_lshl_b32 s{S_GA}, s{S_GA}, 3')
        a(f's_lshr_b32 s{T2}, s{T1}, 2'); a(f's_add_u32 s{S_GA}, s{S_GA}, s{T2}')
    a(f's_and_b32 s{S_RBB}, s{T0}, 3'); a(f's_lshl_b32 s{S_RBB}, s{S_RBB}, 2')
    a(f's_and_b32 s{T2}, s{T1}, 3'); a(f's_add_u32 s{S_RBB}, s{S_RBB}, s{T2}')
    a(f's_lshr_b32 s{S_GB}, s{T0}, 2'); a(f's_lshl_b32 s{S_GB}, s{S_GB}, 3')
    a(f's_lshr_b32 s{T2}, s{T1}, 2'); a(f's_add_u32 s{S_GB}, s{S_GB}, s{T2}')
    a('v_lshrrev_b32 v1, 6, v0')
    a(f'v_readfirstlane_b32 s{S_WAVE}, v1')
    a(f's_lshr_b32 s{S_H}, s{S_WAVE}, 1')
    a(f's_and_b32 s{S_H}, s{S_H}, 1')
    a(f's_mov_b32 s{S_L}, 0')
    a('s_waitcnt lgkmcnt(0)')
    make_srd(a, S_WS, 256 * MB if OPT.get('stamps') else WS_USED)
    make_srd(a, S_AX, 4 * MB); make_srd(a, S_OUT, 4 * MB); make_srd(a, S_DBG, 256)
    for p in (P_AWQ, P_BWQ, P_AWO, P_BWO): a(f's_and_b32 s{p+1}, s{p+1}, 0xffff')
    a(f's_mov_b32 s{S_WQ+2}, {1024 * 6144}'); a(f's_mov_b32 s{S_WQ+3}, {SRD3}')
    a(f's_mov_b32 s{S_WO+2}, {1024 * 2048}'); a(f's_mov_b32 s{S_WO+3}, {SRD3}')
    set_layer_srds(a)
    ST.put(a, 0, False); ST.cyc(a, 60)
    a(f's_mov_b32 s{T0}, {E_OFF}')
    a(f's_load_dword s{S_NONCE}, s[{S_WS}:{S_WS+1}], s{T0}')
    for w in range(4, 8):
        a(f's_cmp_eq_u32 s{S_WAVE}, {w}'); a(f's_cbranch_scc1 prod_w{w-4}')
    c = consumer_regs()
    consumer_prologue(a, c)
    a(f's_bitcmp1_b32 s{S_WAVE}, 0')
    a('s_cbranch_scc1 a_cons_p1')
    a_consumer(a, c, 0)
    a_consumer(a, c, 1)
    b_consumer(a, c)
    for pw in range(4): producer(a, pw)
    a.label('k_done')
    a('s_endpgm')
    n = a.pad_hazards()
    hdr = open(f'cdna_kernels/{NAME}.s.ref').read().split('\n')
    lines = [l for l in hdr if l.startswith(';') and '@launch' not in l and 'Override launch' not in l and 'grid=ceil' not in l]
    lines = lines[:11]
    lines.append(f'; @launch grid=(256,1,1) block=(512,1,1) lds={LDS_SIZE}')
    out = '\n'.join(lines) + '\n.amdgcn_target "amdgcn-amd-amdhsa--gfx950"\n.text\n' + a.text()
    out += f'''.section .rodata,"a"
.p2align 6
.amdhsa_kernel {kname}
  .amdhsa_next_free_vgpr 256
  .amdhsa_next_free_sgpr 102
  .amdhsa_accum_offset 256
  .amdhsa_group_segment_fixed_size 0
  .amdhsa_kernarg_size 72
  .amdhsa_float_denorm_mode_32 3
  .amdhsa_user_sgpr_count 2
  .amdhsa_user_sgpr_kernarg_segment_ptr 1
  .amdhsa_system_sgpr_workgroup_id_x 1
.end_amdhsa_kernel
'''
    return out, n, c.top

if __name__ == '__main__':
    opts = {}
    for kv in sys.argv[2:]:
        k, v = kv.split('='); opts[k] = eval(v)
    out, n, top = build(opts)
    open(sys.argv[1], 'w').write(out)
    print('written', sys.argv[1], 'nops inserted:', n, 'bytes', len(out), 'consumer vgpr top', top)
```

```python
import re

TRANS = ('v_exp_f32', 'v_log_f32', 'v_rcp_f32', 'v_rsq_f32', 'v_sqrt_f32', 'v_sin_f32', 'v_cos_f32', 'v_rcp_iflag_f32')

def split_ops(s):
    out, depth, cur = [], 0, ''
    for ch in s:
        if ch == '[' or ch == '(': depth += 1
        if ch == ']' or ch == ')': depth -= 1
        if ch == ',' and depth == 0:
            out.append(cur.strip()); cur = ''
        else:
            cur += ch
    if cur.strip(): out.append(cur.strip())
    return out

def regs_of(tok):
    tok = tok.strip()
    tok = tok.lstrip('-')
    m = re.match(r'^abs\((.*)\)$', tok)
    if m: tok = m.group(1)
    tok = tok.strip('|')
    m = re.match(r'^([vsa])\[(\d+):(\d+)\]$', tok)
    if m: return {(m.group(1), i) for i in range(int(m.group(2)), int(m.group(3)) + 1)}
    m = re.match(r'^([vsa])(\d+)$', tok)
    if m: return {(m.group(1), int(m.group(2)))}
    if tok in ('vcc',): return {('s', 'vcc_lo'), ('s', 'vcc_hi')}
    if tok in ('vcc_lo', 'vcc_hi'): return {('s', tok)}
    if tok == 'exec': return {('s', 'exec_lo'), ('s', 'exec_hi')}
    if tok in ('exec_lo', 'exec_hi'): return {('s', tok)}
    if tok == 'm0': return {('s', 'm0')}
    return set()

class Ins:
    __slots__ = ('text', 'mn', 'ops', 'mods', 'kind', 'defs', 'uses', 'label', 'srcA', 'srcB', 'srcC', 'passes',
                 'target', 'storedata', 'isdpp', 'lds', 'comment', 'maskuse', 'laneuse')
    def __init__(self, text):
        self.text = text
        self.label = None
        self.kind = None
        self.defs = set(); self.uses = set()
        self.srcA = self.srcB = self.srcC = set()
        self.passes = 0; self.target = None; self.storedata = set(); self.isdpp = False; self.lds = False
        self.maskuse = set(); self.laneuse = set()
        t = text.split(';')[0].strip()
        if t.endswith(':'):
            self.label = t[:-1]; self.kind = 'label'; self.mn = None; return
        if not t or t.startswith('.'):
            self.kind = 'dir'; self.mn = None; return
        sp = t.split(None, 1)
        self.mn = sp[0]
        rest = sp[1] if len(sp) > 1 else ''
        ops = split_ops(rest)
        mods = []
        if ops:
            parts = ops[-1].split()
            ops[-1] = parts[0]; mods = parts[1:]
        self.ops = ops; self.mods = mods
        mn = self.mn
        R = regs_of
        base = re.sub(r'_(e32|e64|dpp|sdwa)$', '', mn)
        if mn.startswith('v_mfma'):
            self.kind = 'mfma'
            self.defs = R(ops[0]); self.srcA = R(ops[1]); self.srcB = R(ops[2]); self.srcC = R(ops[3])
            self.uses = self.srcA | self.srcB | self.srcC
            self.passes = 8 if '32x32x16' in mn else 4 if '16x16x32' in mn else None
            assert self.passes, mn
        elif mn.startswith('v_'):
            self.kind = 'valu'
            self.isdpp = mn.endswith('_dpp') or any(m.startswith(('row_', 'quad_perm', 'wave_')) for m in mods)
            if base.startswith('v_permlane') and 'swap' in base:
                self.defs = R(ops[0]) | R(ops[1]); self.uses = set(self.defs)
            elif base.startswith('v_cmp'):
                self.defs = R(ops[0])
                for o in ops[1:]: self.uses |= R(o)
            elif base in ('v_add_co_u32', 'v_sub_co_u32', 'v_subrev_co_u32'):
                self.defs = R(ops[0]) | R(ops[1])
                for o in ops[2:]: self.uses |= R(o)
            elif base in ('v_addc_co_u32', 'v_subb_co_u32'):
                self.defs = R(ops[0]) | R(ops[1])
                for o in ops[2:]: self.uses |= R(o)
                self.maskuse = R(ops[-1])
            else:
                self.defs = R(ops[0])
                for o in ops[1:]: self.uses |= R(o)
                if base in ('v_fmac_f32', 'v_writelane_b32', 'v_dot2c_f32_bf16', 'v_pk_fmac_f16') or self.isdpp:
                    self.uses |= R(ops[0])
                if base == 'v_cndmask_b32':
                    self.maskuse = R(ops[3]) if len(ops) > 3 else R('vcc')
                    self.uses |= self.maskuse
                if base in ('v_readlane_b32', 'v_writelane_b32'):
                    self.laneuse = R(ops[2])
        elif mn.startswith('ds_'):
            self.kind = 'ds'
            if mn.startswith(('ds_read', 'ds_bpermute', 'ds_permute', 'ds_swizzle')) or '_rtn' in mn:
                self.defs = R(ops[0])
                for o in ops[1:]: self.uses |= R(o)
            else:
                for o in ops: self.uses |= R(o)
        elif mn.startswith('buffer_'):
            self.kind = 'vmem'
            allm = mods + ops
            if mn in ('buffer_inv', 'buffer_wbl2'):
                pass
            elif 'lds' in mods:
                self.lds = True
                for o in ops: self.uses |= R(o)
                self.uses |= R('m0')
            elif mn.startswith('buffer_load'):
                self.defs = R(ops[0])
                for o in ops[1:]: self.uses |= R(o)
            else:
                for o in ops: self.uses |= R(o)
                if 'x3' in mn or 'x4' in mn: self.storedata = R(ops[0])
                if mn.startswith('buffer_atomic') and 'sc0' in mods: self.defs = R(ops[0])
        elif mn.startswith('global_'):
            self.kind = 'vmem'
            if mn.startswith('global_load_lds'):
                self.lds = True
                for o in ops: self.uses |= R(o)
                self.uses |= R('m0')
            elif mn.startswith('global_load'):
                self.defs = R(ops[0])
                for o in ops[1:]: self.uses |= R(o)
            elif mn.startswith('global_store'):
                for o in ops: self.uses |= R(o)
                if 'x3' in mn or 'x4' in mn: self.storedata = R(ops[1])
            elif mn.startswith('global_atomic'):
                if 'sc0' in mods:
                    self.defs = R(ops[0])
                    for o in ops[1:]: self.uses |= R(o)
                else:
                    for o in ops: self.uses |= R(o)
            else:
                raise ValueError(text)
        elif mn.startswith('s_'):
            self.kind = 'salu'
            if mn in ('s_branch',) or mn.startswith('s_cbranch'):
                self.kind = 'branch'; self.target = ops[0]
            elif mn == 's_call_b64':
                self.kind = 'branch'; self.target = ops[1]; self.defs = R(ops[0])
            elif mn == 's_setpc_b64':
                self.kind = 'end'; self.uses = R(ops[0])
            elif mn == 's_endpgm':
                self.kind = 'end'
            elif mn == 's_nop':
                self.kind = 'nop'
            elif mn.startswith(('s_cmp', 's_waitcnt', 's_barrier', 's_setprio', 's_sleep', 's_bitcmp', 's_setreg', 's_sendmsg')):
                for o in ops: self.uses |= R(o)
            elif mn.startswith(('s_load', 's_buffer_load', 's_memtime', 's_memrealtime')):
                self.kind = 'smem'
                self.defs = R(ops[0])
                for o in ops[1:]: self.uses |= R(o)
            else:
                self.defs = R(ops[0])
                for o in ops[1:]: self.uses |= R(o)
                if 'saveexec' in mn: self.defs |= R('exec'); self.uses |= R('exec')
                if mn in ('s_addk_i32', 's_mulk_i32'): self.uses |= R(ops[0])
        else:
            raise ValueError('unknown instruction: ' + text)

    def states(self):
        if self.kind == 'nop': return int(self.ops[0], 0) + 1
        if self.kind in ('label', 'dir'): return 0
        return 1

def vonly(s): return {r for r in s if r[0] in 'va'}
def sonly(s): return {r for r in s if r[0] == 's'}

def required(p, c):
    need = 0
    pk, ck = p.kind, c.kind
    if pk == 'valu':
        pv = vonly(p.defs); ps = sonly(p.defs)
        if pv:
            if ck == 'mfma' and pv & c.uses: need = max(need, 2)
            if ck == 'valu':
                b = c.mn
                if b.startswith('v_permlane') and pv & c.uses: need = max(need, 2)
                if c.isdpp and pv & c.uses: need = max(need, 2)
                if b.startswith(('v_readlane', 'v_readfirstlane')) and pv & c.uses: need = max(need, 1)
                if p.mn.startswith(TRANS) and not b.startswith(TRANS) and pv & c.uses: need = max(need, 1)
            if p.mn.startswith(TRANS) and ck in ('ds', 'vmem') and pv & c.uses: need = max(need, 1)
        if ps:
            if ck == 'valu':
                if ps & c.laneuse: need = max(need, 4)
                if ps & sonly(c.uses): need = max(need, 2)
            if ck == 'mfma' and ps & c.uses: need = max(need, 2)
            if ck == 'vmem' and ps & c.uses: need = max(need, 5)
            if ck == 'smem' and ps & c.uses: need = max(need, 5)
            if ck in ('salu', 'branch') and ps & c.uses: need = max(need, 1)
    if pk == 'mfma':
        n = p.passes
        D = p.defs
        if ck == 'mfma':
            if D & (c.srcA | c.srcB): need = max(need, n + 4)
            if D & c.srcC:
                if not (D == c.srcC and c.passes == n): need = max(need, n + 2)
            if D & c.defs and not (D & c.srcC):
                if not (D == c.defs and c.passes == n): need = max(need, n + 2)
        elif ck == 'valu':
            if D & (c.uses | c.defs): need = max(need, n + 4)
            if p.srcC & c.defs: need = max(need, n - 1)
        elif ck in ('ds', 'vmem'):
            if D & (c.uses | c.defs): need = max(need, n + 4)
            if p.srcC & c.defs: need = max(need, n - 1)
    if pk == 'salu' and ('s', 'm0') in p.defs:
        if c.lds or (ck == 'ds' and 'addtid' in c.mn): need = max(need, 1)
    if pk == 'vmem' and p.storedata:
        if ck in ('valu', 'mfma') and p.storedata & c.defs: need = max(need, 2)
        elif ck in ('ds', 'vmem') and p.storedata & c.defs: need = max(need, 1)
    return need

MAXLOOK = 20

class Asm:
    def __init__(self):
        self.ins = []
        self._uniq = 0
    def __call__(self, text):
        for line in text.split('\n'):
            line = line.strip()
            if line: self.ins.append(Ins(line))
    def label(self, name): self.ins.append(Ins(name + ':'))
    def uniq(self, prefix):
        self._uniq += 1
        return f'{prefix}_{self._uniq}'
    def raw(self, text):
        i = Ins(''); i.text = text; i.kind = 'dir'; self.ins.append(i)
    def comment(self, text): self.raw('; ' + text)

    def pad_hazards(self, verbose=False):
        inserted = 0
        ins = self.ins
        def build():
            labels = {x.label: i for i, x in enumerate(ins) if x.label}
            preds = {}
            for i, x in enumerate(ins):
                if x.kind == 'branch' and x.target in labels:
                    preds.setdefault(labels[x.target], []).append(i)
            return preds
        def falls(i):
            x = ins[i]
            return not (x.kind == 'end' or (x.kind == 'branch' and x.mn == 's_branch'))
        for rnd in range(3):
            preds = build()
            ci = 0
            any_ins = False
            while ci < len(ins):
                c = ins[ci]
                if c.kind in ('label', 'dir', 'nop', 'end'):
                    ci += 1; continue
                short = 0
                stack = []
                def push_preds(idx, acc):
                    if idx > 0 and falls(idx - 1): stack.append((idx - 1, acc))
                    if ins[idx].label is not None:
                        for b in preds.get(idx, []): stack.append((b, acc))
                push_preds(ci, 0)
                seen = {}
                while stack:
                    idx, acc = stack.pop()
                    if acc >= MAXLOOK: continue
                    if seen.get(idx, 99) <= acc: continue
                    seen[idx] = acc
                    p = ins[idx]
                    if p.kind not in ('label', 'dir', 'nop'):
                        need = required(p, c)
                        if need > acc: short = max(short, need - acc)
                    push_preds(idx, acc + p.states())
                if short:
                    if verbose: print(f'pad {short} before: {c.text}')
                    n = short
                    while n > 0:
                        k = min(n, 16)
                        ins.insert(ci, Ins(f's_nop {k-1}')); ci += 1; n -= k
                    inserted += short
                    any_ins = True
                    preds = build()
                ci += 1
            if not any_ins: break
        return inserted

    def text(self):
        lines = []
        for x in self.ins:
            if x.kind == 'label': lines.append(x.text)
            elif x.kind == 'dir': lines.append(x.text)
            else: lines.append('    ' + x.text)
        return '\n'.join(lines) + '\n'

    def max_regs(self):
        mv = ms = -1
        for x in self.ins:
            for r in (x.defs | x.uses):
                if r[0] == 'v': mv = max(mv, r[1])
                if r[0] == 's' and isinstance(r[1], int): ms = max(ms, r[1])
        return mv, ms
```

```python
import sys
sys.path.insert(0, 'work')
from asmlib import Asm

NAME = 'interleave_layers__sliding_local_dilated__sliding_local_dilated__prompt'
MB = 1 << 20
K_AX, K_AWQKV, K_AWO, K_BX, K_BWQKV, K_BWO, K_OUT, K_DBG, K_WS = 0, 8, 16, 24, 32, 40, 48, 56, 64
SRD3 = 0x00020000
X_OFF, O_OFF, LSTRIDE = 0, 16 * MB, 4 * MB
S_OFF, S_LSTRIDE = 32 * MB, 256 * 1024
CSP_OFF = 33 * MB
FX_OFF = 34 * MB
FO_OFF = FX_OFF + 8192
FC_OFF = FX_OFF + 16384
E_OFF = FX_OFF + 32768
WP_OFF = 40 * MB
WOP_OFF = 52 * MB
FL_OFF = FX_OFF + 24576
WS_USED = 56 * MB
ST_OFF = 200 * MB
A_SLOT, W_SLOT = 18432, 24576
W0 = 3 * A_SLOT
NW = 3
def set_lds_map(nw):
    global NW, HALO0, NM0, RS0, CS0, NONCE0, LDS_SIZE
    NW = nw
    HALO0 = max(131072, W0 + nw * W_SLOT)
    NM0 = HALO0 + 4096
    RS0 = NM0 + 1024
    CS0 = RS0 + 1024
    NONCE0 = CS0 + 2048
    LDS_SIZE = NONCE0 + 256
set_lds_map(3)
S_WS, S_WQ, S_WO, S_AX, S_OUT, S_DBG = 4, 8, 12, 16, 20, 24
P_AWQ, P_BWQ, P_AWO, P_BWO = 28, 30, 32, 34
S_RBA, S_GA, S_RBB, S_GB, S_WAVE, S_H, S_L, S_NONCE, S_TAG = 36, 37, 38, 39, 40, 41, 42, 43, 44
T0, T1, T2, T3, T4, T5 = 45, 46, 47, 48, 49, 50
S_TMP = 51
S_C0 = 52
S_SLOTA, S_SLOTW, S_CNT, S_KA, S_KW, S_SPIN = 58, 59, 60, 61, 62, 63
S_SEL, S_VAL, S_VAL0 = 64, 72, 80
S_M1, S_M2, S_M3, S_DIAG = 88, 90, 92, 94
S_PB = 64
S_TB, S_HB, S_SB, S_SH = 70, 71, 72, 73
S_FLAGAT = 53 + 2
S_ST = 96
SPIN_MAX = 20000

OPT = {}

class Regs:
    def __init__(self, start, limit): self.n = start; self.limit = limit
    def get(self, k=1, align=1):
        self.n = (self.n + align - 1) // align * align
        r = self.n; self.n += k
        assert self.n <= self.limit, 'out of registers'
        return r

def cvt(dst, s0, s1): return f'v_cvt_pk_bf16_f32 v{dst}, v{s0}, v{s1}'
def mfma(d, A, B, c=None):
    cs = '0' if c is None else f'v[{c}:{c+3}]'
    return f'v_mfma_f32_16x16x32_bf16 v[{d}:{d+3}], v[{A}:{A+3}], v[{B}:{B+3}], {cs}'
def srd(r): return f's[{r}:{r+3}]'

def interleave(lists):
    out = []
    n = max(len(x) for x in lists)
    for i in range(n):
        for x in lists:
            if i < len(x): out.append(x[i])
    return out

def make_srd(a, r, size):
    a(f's_and_b32 s{r+1}, s{r+1}, 0xffff')
    a(f's_mov_b32 s{r+2}, {size}')
    a(f's_mov_b32 s{r+3}, {SRD3}')

V_ST = 8
class Stamps:
    n_per_layer = 12
    def put(self, a, idx, per_layer=True):
        if not OPT.get('stamps'): return
        a(f's_memrealtime s[{S_ST}:{S_ST+1}]')
        a('s_waitcnt lgkmcnt(0)')
        if per_layer:
            a(f's_mul_i32 s{S_ST+1}, s{S_L}, {self.n_per_layer}')
            a(f's_add_u32 s{S_ST+1}, s{S_ST+1}, {idx + 4}')
            a(f's_mov_b32 m0, s{S_ST+1}')
            a(f'v_writelane_b32 v{V_ST}, s{S_ST}, m0')
        else:
            a(f'v_writelane_b32 v{V_ST}, s{S_ST}, {idx}')
    def cycl(self, a, idx):
        if not OPT.get('stamps'): return
        a(f's_memtime s[{S_ST}:{S_ST+1}]')
        a('s_waitcnt lgkmcnt(0)')
        a(f's_mul_i32 s{S_ST+1}, s{S_L}, {self.n_per_layer}')
        a(f's_add_u32 s{S_ST+1}, s{S_ST+1}, {idx + 4}')
        a(f's_mov_b32 m0, s{S_ST+1}')
        a(f'v_writelane_b32 v{V_ST}, s{S_ST}, m0')
    def cyc(self, a, idx):
        if not OPT.get('stamps'): return
        a(f's_memtime s[{S_ST}:{S_ST+1}]')
        a('s_waitcnt lgkmcnt(0)')
        a(f'v_writelane_b32 v{V_ST}, s{S_ST}, {idx}')
    def flush(self, a):
        if not OPT.get('stamps'): return
        a(f's_lshl_b32 s{T0}, s2, 3')
        a(f's_add_u32 s{T0}, s{T0}, s{S_WAVE}')
        a(f's_lshl_b32 s{T0}, s{T0}, 8')
        a(f's_add_u32 s{T0}, s{T0}, {ST_OFF}')
        a('v_and_b32 v1, 63, v0')
        a('v_lshlrev_b32 v1, 2, v1')
        a(f'buffer_store_dword v{V_ST}, v1, {srd(S_WS)}, s{T0} offen')
        a('s_waitcnt vmcnt(0)')
ST = Stamps()

S_MK = 98
def lane_mask(gs, lines=(0, 1, 2, 3)):
    return sum(1 << (16 * w + g) for w in lines for g in gs)
def set_mask(a, m):
    a(f's_mov_b32 s{S_MK}, {m & 0xffffffff}'); a(f's_mov_b32 s{S_MK+1}, {m >> 32}')
def poll_issue(a, loads, vt):
    for n, (va, so) in enumerate(loads):
        a(f'buffer_load_dword v{vt+n}, v{va}, {srd(S_WS)}, s{so} offen sc1')
def poll_test(a, tag, nloads, vt, masked):
    for n in range(nloads):
        a(f'v_subrev_u32 v{vt+n}, s{tag}, v{vt+n}')
    if nloads == 2:
        a(f'v_max_u32 v{vt}, v{vt}, v{vt+1}')
    a(f'v_cmp_gt_u32 vcc, 8, v{vt}')
    if masked:
        a(f's_and_b64 s[{S_MK+2}:{S_MK+3}], vcc, s[{S_MK}:{S_MK+1}]')
        a(f's_cmp_eq_u64 s[{S_MK+2}:{S_MK+3}], s[{S_MK}:{S_MK+1}]')
    else:
        a('s_cmp_eq_u64 vcc, -1')
def poll(a, tag, loads, vt, code, mask=None):
    lp = a.uniq('poll'); dn = a.uniq('polled')
    if mask is not None: set_mask(a, mask)
    a(f's_mov_b32 s{S_SPIN}, 0')
    a.label(lp)
    poll_issue(a, loads, vt)
    a('s_waitcnt vmcnt(0)')
    poll_test(a, tag, len(loads), vt, mask is not None)
    a(f's_cbranch_scc1 {dn}')
    a(f's_add_u32 s{S_SPIN}, s{S_SPIN}, 1')
    a(f's_cmp_lt_u32 s{S_SPIN}, {SPIN_MAX}')
    a(f's_cbranch_scc1 {lp}')
    a(f'v_mov_b32 v{vt}, {code}')
    a(f's_mov_b32 s{S_SPIN}, 16')
    a(f'buffer_store_dword v{vt}, off, {srd(S_DBG)}, s{S_SPIN}')
    a.label(dn)

def order_b():
    late = OPT.get('late', [3, 11])
    o = [(4 + n) % 16 for n in range(16)]
    return [g for g in o if g not in late] + list(late)
def order_a():
    return OPT.get('order_a', [4, 5, 6, 7, 12, 13, 14, 15, 0, 8, 1, 9, 2, 10, 3, 11])
def set_ga(a):
    if OPT.get('rot', False):
        a(f's_add_u32 s{S_GA}, s{S_GB}, s{S_L}'); a(f's_and_b32 s{S_GA}, s{S_GA}, 7')
        a(f's_and_b32 s{T4}, s{S_GB}, 8'); a(f's_or_b32 s{S_GA}, s{S_GA}, s{T4}')

def flag_store(a, soff, tag, vt):
    a(f'v_mov_b32 v{vt}, s{tag}')
    a('s_mov_b64 exec, 1')
    a(f'buffer_store_dword v{vt}, off, {srd(S_WS)}, s{soff} sc1')
    a('s_mov_b64 exec, -1')

def set_layer_srds(a):
    a(f's_bitcmp1_b32 s{S_L}, 0')
    a(f's_cselect_b32 s{S_WQ}, s{P_BWQ}, s{P_AWQ}')
    a(f's_cselect_b32 s{S_WQ+1}, s{P_BWQ+1}, s{P_AWQ+1}')
    a(f's_cselect_b32 s{S_WO}, s{P_BWO}, s{P_AWO}')
    a(f's_cselect_b32 s{S_WO+1}, s{P_BWO+1}, s{P_AWO+1}')

class C: pass
def consumer_regs():
    c = C()
    R = Regs(10, 256)
    c.acc = {}
    for u in range(3):
        for f in range(2):
            for t in range(4): c.acc[u, f, t] = R.get(4, 4)
    c.accH = [R.get(4, 4), R.get(4, 4)]
    c.buf = []
    for b in range(2):
        d = {}
        for u in range(3):
            for f in range(2): d['w', u, f] = R.get(4, 4)
        for t in range(5): d['t', t] = R.get(4, 4)
        c.buf.append(d)
    c.buf0 = c.buf[0]['w', 0, 0]; c.buf1 = c.buf[1]['w', 0, 0]
    c.xr = {(tt, P): R.get(4, 4) for tt in range(2) for P in range(2)}
    c.M1 = [R.get(), R.get()]
    c.vXrow = R.get(); c.vFrag = R.get(); c.vStat = R.get()
    c.vWB = [R.get() for _ in range(4)]
    c.vWBh = [R.get() for _ in range(4)]
    c.vI = R.get()
    c.Vp = [R.get(10, 2), R.get(10, 2)]
    c.vA, c.vW0, c.vW1, c.vAb, c.vW0b, c.vW1b, c.tmp, c.lane = 1, 2, 3, 4, 5, 6, 7, 9
    c.vA0b, c.vA1b, c.vA1 = 10, 11, 254
    assert R.n <= 254
    c.top = R.n
    return c

def stats_and_store(a, c, store_x=True, b3=False):
    tb = c.buf0
    ones = tb; D = [tb + 4, tb + 8, tb + 12, tb + 16]
    for j in range(4): a(f'v_mov_b32 v{ones+j}, 0x3f803f80')
    if store_x:
        for tt in range(2):
            for P in range(2):
                r = c.xr[tt, P]
                a(f'buffer_store_dwordx4 v[{r}:{r+3}], v{c.vFrag}, {srd(S_WS)}, s{T0} offen offset:{2048*tt + 1024*P} sc1')
    if b3: a('s_barrier')
    for P in range(2):
        for tt in range(2):
            r = c.xr[tt, P]
            a(mfma(D[2*tt], ones, r, None if P == 0 else D[2*tt]))
            a(mfma(D[2*tt+1], r, r, None if P == 0 else D[2*tt+1]))
    for tt in range(2):
        s, g = D[2*tt], D[2*tt+1]
        a(f'v_cndmask_b32 v{s+1}, v{g}, v{g+1}, s[{S_M1}:{S_M1+1}]')
        a(f'v_cndmask_b32 v{s+1}, v{s+1}, v{g+2}, s[{S_M2}:{S_M2+1}]')
        a(f'v_cndmask_b32 v{s+1}, v{s+1}, v{g+3}, s[{S_M3}:{S_M3+1}]')
    a(f's_mov_b64 exec, s[{S_DIAG}:{S_DIAG+1}]')
    for tt in range(2):
        s = D[2*tt]
        a(f'buffer_store_dwordx2 v[{s}:{s+1}], v{c.vStat}, {srd(S_WS)}, s{T2} offen offset:{128*tt} sc1')
    a('s_mov_b64 exec, -1')

def swap_xr(a, c):
    for tt in range(2):
        for P in range(2):
            r = c.xr[tt, P]
            a(f'v_permlane16_swap_b32 v{r}, v{r+2}')
            a(f'v_permlane16_swap_b32 v{r+1}, v{r+3}')

def x_dst_offsets(a, Lreg_plus):
    a(f's_add_u32 s{T3}, s{S_L}, {Lreg_plus}')
    a(f's_lshl_b32 s{T0}, s{T3}, 22')
    a(f's_lshl_b32 s{T4}, s{S_RBB}, 18'); a(f's_add_u32 s{T0}, s{T0}, s{T4}')
    a(f's_lshl_b32 s{T4}, s{S_GB}, 14'); a(f's_add_u32 s{T0}, s{T0}, s{T4}')
    a(f's_lshl_b32 s{T4}, s{S_WAVE}, 12'); a(f's_add_u32 s{T0}, s{T0}, s{T4}')
    if X_OFF: a(f's_add_u32 s{T0}, s{T0}, {X_OFF}')
    a(f's_lshl_b32 s{T2}, s{T3}, 18')
    a(f's_lshl_b32 s{T4}, s{S_RBB}, 14'); a(f's_add_u32 s{T2}, s{T2}, s{T4}')
    a(f's_lshl_b32 s{T4}, s{S_GB}, 10'); a(f's_add_u32 s{T2}, s{T2}, s{T4}')
    a(f's_lshl_b32 s{T4}, s{S_WAVE}, 8'); a(f's_add_u32 s{T2}, s{T2}, s{T4}')
    a(f's_add_u32 s{T2}, s{T2}, {S_OFF}')

def xflag_off(a, dst):
    a(f's_lshl_b32 s{dst}, s{S_RBB}, 9')
    a(f's_lshl_b32 s{T4}, s{S_WAVE}, 7'); a(f's_add_u32 s{dst}, s{dst}, s{T4}')
    a(f's_lshl_b32 s{T4}, s{S_GB}, 2'); a(f's_add_u32 s{dst}, s{dst}, s{T4}')
    a(f's_add_u32 s{dst}, s{dst}, {FX_OFF}')

def row_offsets(a):
    a(f's_lshl_b32 s{T0}, s{S_RBB}, 7')
    a(f's_and_b32 s{T4}, s{S_WAVE}, 1'); a(f's_lshl_b32 s{T4}, s{T4}, 6'); a(f's_add_u32 s{T0}, s{T0}, s{T4}')
    a(f's_lshr_b32 s{T4}, s{S_WAVE}, 1'); a(f's_add_u32 s{T0}, s{T0}, s{T4}')
    a(f's_lshl_b32 s{T0}, s{T0}, 11')
    a(f's_lshl_b32 s{T4}, s{S_GB}, 7'); a(f's_add_u32 s{T0}, s{T0}, s{T4}')
    a(f's_add_u32 s{T1}, s{T0}, 65536')

def consumer_prologue(a, c):
    L = c.lane; tA, tB, tC, tD = c.buf0, c.buf0 + 1, c.buf0 + 2, c.buf0 + 3
    a(f'v_and_b32 v{L}, 63, v0')
    a(f'v_and_b32 v{c.vI}, 15, v{L}')
    a(f'v_lshrrev_b32 v{tB}, 4, v{L}')
    a(f'v_and_b32 v{tC}, 1, v{tB}'); a(f'v_lshlrev_b32 v{tC}, 1, v{tC}')
    a(f'v_lshrrev_b32 v{tD}, 1, v{tB}'); a(f'v_add_u32 v{tC}, v{tC}, v{tD}')
    a(f'v_lshlrev_b32 v{c.vXrow}, 4, v{tC}')
    a(f'v_lshl_add_u32 v{c.vXrow}, v{c.vI}, 12, v{c.vXrow}')
    a(f'v_lshlrev_b32 v{c.vFrag}, 8, v{tC}')
    a(f'v_lshl_add_u32 v{c.vFrag}, v{c.vI}, 4, v{c.vFrag}')
    a(f'v_lshlrev_b32 v{c.vStat}, 3, v{c.vI}')
    a(f'v_lshlrev_b32 v{c.vAb}, 4, v{L}')
    row_offsets(a)
    for tt in range(2):
        for P in range(2):
            r = c.xr[tt, P]
            a(f'buffer_load_dwordx4 v[{r}:{r+3}], v{c.vXrow}, {srd(S_AX)}, s{T0 if tt == 0 else T1} offen offset:{64*P}')
    a(f'v_lshrrev_b32 v{tC}, 2, v{c.vI}')
    a(f'v_lshl_add_u32 v{tD}, v{tB}, 3, v{tC}')
    a(f'v_lshlrev_b32 v{c.vW0b}, 7, v{tD}')
    a(f'v_and_b32 v{tD}, 3, v{c.vI}')
    a(f'v_lshl_add_u32 v{c.vW0b}, v{tD}, 3, v{c.vW0b}')
    a(f'v_lshrrev_b32 v{tC}, 1, v{tC}')
    a(f'v_and_b32 v{tD}, 1, v{tB}')
    a(f'v_lshl_add_u32 v{tC}, v{tD}, 1, v{tC}')
    for f in range(4):
        a(f'v_xor_b32 v{tD}, {f}, v{tC}')
        a(f'v_lshl_add_u32 v{c.vWB[f]}, v{tD}, 5, v{c.vW0b}')
        a(f'v_add_u32 v{c.vWBh[f]}, 0x10000, v{c.vWB[f]}')
    a(f's_lshl_b32 s{T0}, s{S_H}, 1')
    a(f'v_xor_b32 v{tC}, s{T0}, v{tC}')
    a(f'v_xor_b32 v{tD}, 1, v{tC}')
    a(f'v_lshl_add_u32 v{c.vW1b}, v{tD}, 5, v{c.vW0b}')
    a(f'v_lshl_add_u32 v{c.vW0b}, v{tC}, 5, v{c.vW0b}')
    vK, tmpv = tA, tD
    a(f'v_lshlrev_b32 v{vK}, 2, v{tB}')
    for r in range(4):
        sel = S_SEL + 2*r; val = S_VAL + 2*r; val0 = S_VAL0 + 2*r
        a(f'v_add_u32 v{tmpv}, {r}, v{vK}')
        a(f'v_cmp_le_u32 s[{sel}:{sel+1}], v{tmpv}, v{c.vI}')
        a(f'v_sub_u32 v{tmpv}, v{c.vI}, v{tmpv}')
        a(f'v_and_b32 v{tmpv}, 15, v{tmpv}')
        a(f'v_cmp_gt_u32 s[{val}:{val+1}], 8, v{tmpv}')
        a(f's_and_b64 s[{val0}:{val0+1}], s[{val}:{val+1}], s[{sel}:{sel+1}]')
        a(f's_cmp_eq_u32 s{S_RBA}, 0')
        a(f's_cselect_b64 s[{val0}:{val0+1}], s[{val0}:{val0+1}], s[{val}:{val+1}]')
    a(f'v_mov_b32 v{tC}, 0xffff'); a(f'v_mov_b32 v{tA}, 0xffff0000')
    for j in range(2):
        s0 = S_SEL + 4*j; s1 = s0 + 2
        a(f'v_cndmask_b32 v{c.M1[j]}, 0, v{tC}, s[{s0}:{s0+1}]')
        a(f'v_cndmask_b32 v{tmpv}, 0, v{tA}, s[{s1}:{s1+1}]')
        a(f'v_or_b32 v{c.M1[j]}, v{c.M1[j]}, v{tmpv}')
    a(f'v_and_b32 v{tC}, 3, v{c.vI}')
    a(f'v_cmp_eq_u32 s[{S_M1}:{S_M1+1}], 1, v{tC}')
    a(f'v_cmp_eq_u32 s[{S_M2}:{S_M2+1}], 2, v{tC}')
    a(f'v_cmp_eq_u32 s[{S_M3}:{S_M3+1}], 3, v{tC}')
    a(f'v_lshrrev_b32 v{tC}, 2, v{c.vI}')
    a(f'v_cmp_eq_u32 s[{S_DIAG}:{S_DIAG+1}], v{tC}, v{tB}')
    a(f's_mov_b32 s{S_C0+2}, 0x3e8293ee')
    a(f's_mov_b32 s{S_C0+1}, 0xffff0000')
    a(f'v_lshrrev_b32 v{tC}, 1, v{c.vI}')
    a(f'v_xor_b32 v{tC}, v{tC}, v{tB}')
    a(f'v_lshlrev_b32 v{tC}, 4, v{tC}')
    a(f'v_lshl_add_u32 v{c.vA0b}, v{c.vI}, 7, v{tC}')
    a(f'v_xor_b32 v{c.vA1b}, 64, v{c.vA0b}')
    x_dst_offsets(a, 0)
    xflag_off(a, T5)
    a(f's_mov_b32 s{S_FLAGAT}, 2')
    a('s_waitcnt vmcnt(0)')
    ST.put(a, 1, False)
    stats_and_store(a, c, store_x=False)
    swap_xr(a, c)
    a('s_waitcnt lgkmcnt(0)')
    a(f's_add_u32 s{S_NONCE}, s{S_NONCE}, 256')
    a(f's_add_u32 s{S_TAG}, s{S_NONCE}, 1')
    ST.put(a, 2, False)

def x_poll_offs(a):
    a(f's_lshl_b32 s{T0}, s{S_RBA}, 9'); a(f's_add_u32 s{T0}, s{T0}, {FX_OFF}')
    a(f's_sub_u32 s{T3}, s{S_RBA}, 1'); a(f's_max_i32 s{T3}, s{T3}, 0')
    a(f's_lshl_b32 s{T1}, s{T3}, 9'); a(f's_add_u32 s{T1}, s{T1}, {FX_OFF}')
def o_poll_offs(a):
    a(f's_lshl_b32 s{T0}, s{S_RBB}, 9'); a(f's_add_u32 s{T0}, s{T0}, {FO_OFF}')
def pre_poll(a, c, kind):
    sk = a.uniq('prepoll_skip'); pv = c.buf1
    a(f's_cmp_lg_u32 s{S_WAVE}, 0')
    a(f's_cbranch_scc1 {sk}')
    a(f'v_lshrrev_b32 v{pv}, 4, v{c.lane}')
    a(f'v_lshlrev_b32 v{pv}, 7, v{pv}')
    a(f'v_lshl_add_u32 v{pv}, v{c.vI}, 2, v{pv}')
    if kind == 'x':
        x_poll_offs(a); poll_issue(a, [(pv, T0), (pv, T1)], pv + 1)
    else:
        o_poll_offs(a); poll_issue(a, [(pv, T0)], pv + 1)
    a.label(sk)
def finish_poll(a, c, kind, mask, code):
    sk = a.uniq('poll_skip'); pv = c.buf1
    a(f's_cmp_lg_u32 s{S_WAVE}, 0')
    a(f's_cbranch_scc1 {sk}')
    n = 2 if kind == 'x' else 1
    if OPT.get('prepoll'):
        set_mask(a, mask)
        poll_test(a, S_TAG, n, pv + 1, True)
        a(f's_cbranch_scc1 {sk}')
    a(f'v_lshrrev_b32 v{pv}, 4, v{c.lane}')
    a(f'v_lshlrev_b32 v{pv}, 7, v{pv}')
    a(f'v_lshl_add_u32 v{pv}, v{c.vI}, 2, v{pv}')
    if kind == 'x':
        x_poll_offs(a); poll(a, S_TAG, [(pv, T0), (pv, T1)], pv + 1, code, mask)
    else:
        o_poll_offs(a); poll(a, S_TAG, [(pv, T0)], pv + 1, code, mask)
    a.label(sk)

def poll_addr(a, c):
    a(f'v_lshrrev_b32 v{c.buf0}, 4, v{c.lane}')
    a(f'v_lshlrev_b32 v{c.buf0}, 7, v{c.buf0}')
    a(f'v_lshl_add_u32 v{c.buf0}, v{c.vI}, 2, v{c.buf0}')

def a_consumer(a, c, par):
    acc, accH, buf = c.acc, c.accH, c.buf
    vA, vW0, vW1, vA1 = c.vA, c.vW0, c.vW1, c.vA1
    tag = f'p{par}'
    a.label(f'a_cons_{tag}')
    for k, r in list(acc.items()) + [(0, accH[0]), (1, accH[1])]:
        for j in range(0, 4): a(f'v_mov_b32 v{r+j}, 0')
    a(f's_mov_b32 s{S_SLOTA}, 0'); a(f's_mov_b32 s{S_SLOTW}, {W0}')
    a(f'v_mov_b32 v{vA}, v{c.vA0b}')
    a(f'v_mov_b32 v{vA1}, v{c.vA1b}')
    a(f'v_add_u32 v{vW0}, s{S_SLOTW}, v{c.vW0b}')
    a(f'v_add_u32 v{vW1}, s{S_SLOTW}, v{c.vW1b}')
    def reads(b, ks):
        d = buf[b]; out = []
        for u in range(3):
            for f in range(2):
                vW = vW0 if f == 0 else vW1
                for j in range(2):
                    r = d['w', u, f] + 2 * j
                    out.append(f'ds_read_b64_tr_b16 v[{r}:{r+1}], v{vW} offset:{u*8192 + ks*4096 + j*512}')
        for t in range(5):
            tau = par * 4 + t if t < 4 else 8
            r = d['t', t]
            out.append(f'ds_read_b128 v[{r}:{r+3}], v{vA if ks == 0 else vA1} offset:{tau*2048}')
        wq = out[0:4]; wk = out[4:8]; wv = out[8:12]; tt = out[12:17]
        return wq[0:2] + tt[0:4] + wq[2:4] + wk + wv + tt[4:5]
    def mfmas(b, halo_first=False):
        d = buf[b]; out = []; h = []
        for u in range(3):
            for f in range(2):
                for t in range(4):
                    cc = acc[u, f, t]; w = d['w', u, f]; x = d['t', t]
                    A, B = (w, x) if u < 2 else (x, w)
                    out.append(mfma(cc, A, B, cc))
        for f in range(2):
            cc = accH[f]; x = d['t', 4]
            A, B = (d['w', 1, f], x) if par == 0 else (x, d['w', 2, f])
            h.append(mfma(cc, A, B, cc))
        return h + out if halo_first else out + h
    def step(ms, fill, late=()):
        fl = list(fill) + list(late)
        for i, x in enumerate(ms):
            a(x)
            if i < len(fl): a(fl[i])
        for x in fl[len(ms):]: a(x)
    adv = [f's_add_u32 s{S_SLOTA}, s{S_SLOTA}, {A_SLOT}',
           f's_add_u32 s{S_SLOTW}, s{S_SLOTW}, {W_SLOT}',
           f's_cmp_eq_u32 s{S_SLOTA}, {3 * A_SLOT}',
           f's_cselect_b32 s{S_SLOTA}, 0, s{S_SLOTA}'] + ([
           f's_cmp_eq_u32 s{S_SLOTW}, {W0 + NW * W_SLOT}'] if NW != 3 else []) + [
           f's_cselect_b32 s{S_SLOTW}, {W0}, s{S_SLOTW}',
           f'v_add_u32 v{vA}, s{S_SLOTA}, v{c.vA0b}',
           f'v_add_u32 v{vA1}, s{S_SLOTA}, v{c.vA1b}',
           f'v_add_u32 v{vW0}, s{S_SLOTW}, v{c.vW0b}',
           f'v_add_u32 v{vW1}, s{S_SLOTW}, v{c.vW1b}']
    a(f's_mov_b32 s{S_CNT}, 0')
    a(f's_cmp_eq_u32 s{S_L}, 0')
    a(f's_cbranch_scc1 a_first_{tag}')
    if not OPT.get('sx'):
        finish_poll(a, c, 'x', lane_mask(order_a()[:OPT.get('xg1', 4)]), 0x101)
        a('s_barrier')
    a.label(f'a_first_{tag}')
    ST.put(a, 0)
    a('s_barrier')
    ST.put(a, 1); ST.cycl(a, 10)
    for x in reads(0, 0): a(x)
    a('s_waitcnt lgkmcnt(0)')
    lp = f'ac_loop_{tag}'
    a.label(lp)
    step(mfmas(0), reads(1, 1), adv)
    a('s_waitcnt lgkmcnt(0)')
    a('s_barrier')
    step(mfmas(1), reads(0, 0), [f's_cmp_eq_u32 s{S_CNT}, s{S_FLAGAT}', f's_cbranch_scc1 a_flag_{tag}\na_flag_back_{tag}:',
                                 f's_add_u32 s{S_CNT}, s{S_CNT}, 1', f's_cmp_lt_u32 s{S_CNT}, 15'])
    a('s_waitcnt lgkmcnt(0)')
    a(f's_cbranch_scc1 {lp}')
    a(f's_branch a_last_{tag}')
    a.label(f'a_flag_{tag}')
    a('s_waitcnt vmcnt(0)')
    flag_store(a, T5, S_TAG, c.tmp)
    a(f's_branch a_flag_back_{tag}')
    a.label(f'a_last_{tag}')
    step(mfmas(0), reads(1, 1))
    b0 = c.buf0
    colst = [b0 + 2*t for t in range(5)]
    csq = [b0 + 12, b0 + 16]; csk = [b0 + 20, b0 + 24]; csv = b0 + 10
    v4 = {0: (b0 + 28, b0 + 32), 1: (b0 + 36, b0 + 40)}
    b1 = c.buf1
    v4.update({2: (b1, b1 + 4), 3: (b1 + 8, b1 + 12), 4: (b1 + 16, b1 + 20)})
    vS, vS4, vC4, vC = vA, vW0, vW1, c.tmp
    pre = [f's_and_b32 s{T0}, s{S_L}, 1',
           f's_lshl_b32 s{T0}, s{T0}, 10',
           f's_lshl_b32 s{T1}, s{S_H}, 7',
           f's_add_u32 s{T0}, s{T0}, s{T1}',
           f's_add_u32 s{T0}, s{T0}, {CS0}',
           f'v_lshlrev_b32 v{vS}, 2, v{c.vI}',
           f'v_and_b32 v{vS4}, 0x30, v{c.lane}',
           f'v_add_u32 v{vC4}, s{T0}, v{vS4}',
           f'v_add_u32 v{vC}, s{T0}, v{vS}',
           f'v_add_u32 v{vS}, {NM0}, v{vS}',
           f'v_add_u32 v{vS4}, {NM0}, v{vS4}']
    for x in pre: a(x)
    a('s_waitcnt lgkmcnt(0)')
    a('s_barrier')
    def tile_of(t): return par * 4 + t if t < 4 else 8
    rd = []
    htile = 4
    if par == 0:
        rd += [f'ds_read_b32 v{colst[4]}, v{vS} offset:{8*64}', f'ds_read_b32 v{colst[4]+1}, v{vS} offset:{8*64 + 1024}']
    for f in range(2): rd.append(f'ds_read_b128 v[{csk[f]}:{csk[f]+3}], v{vC4} offset:{256 + 64*f}')
    for f in range(2): rd.append(f'ds_read_b32 v{csv+f}, v{vC} offset:{512 + 64*f}')
    v4order = [4, 0, 1, 2, 3] if par == 1 else [0, 1, 2, 3]
    slots = [v4[0], v4[1], v4[2], v4[3], v4[4]]
    v4m = {t: slots[n] for n, t in enumerate(v4order)}
    def v4read(t):
        return [f'ds_read_b128 v[{v4m[t][0]}:{v4m[t][0]+3}], v{vS4} offset:{tile_of(t)*64}',
                f'ds_read_b128 v[{v4m[t][1]}:{v4m[t][1]+3}], v{vS4} offset:{tile_of(t)*64 + 1024}']
    for t in v4order[:2]: rd += v4read(t)
    for t in range(4):
        rd += [f'ds_read_b32 v{colst[t]}, v{vS} offset:{tile_of(t)*64}', f'ds_read_b32 v{colst[t]+1}, v{vS} offset:{tile_of(t)*64 + 1024}']
    for f in range(2): rd.append(f'ds_read_b128 v[{csq[f]}:{csq[f]+3}], v{vC4} offset:{64*f}')
    step(mfmas(1, True), rd)
    for t in v4order[2:]:
        for x in v4read(t): a(x)
    ST.put(a, 2); ST.cycl(a, 11)
    def fix_col(r, cs, pair, scale):
        o = []
        for j in (0, 2):
            o.append(f'v_pk_fma_f32 v[{r+j}:{r+j+1}], v[{cs+j}:{cs+j+1}], v[{pair}:{pair+1}], v[{r+j}:{r+j+1}] op_sel_hi:[1,0,1]')
        if scale:
            for j in (0, 2):
                o.append(f'v_pk_mul_f32 v[{r+j}:{r+j+1}], v[{r+j}:{r+j+1}], v[{pair}:{pair+1}] op_sel:[0,1] op_sel_hi:[1,1]')
        return o
    def fix_row(r, f, t):
        nm, rs = v4m[t]; o = []
        for j in (0, 2):
            sel = 'op_sel_hi:[1,0,1]' if f == 0 else 'op_sel:[0,1,0] op_sel_hi:[1,1,1]'
            o.append(f'v_pk_fma_f32 v[{r+j}:{r+j+1}], v[{nm+j}:{nm+j+1}], v[{csv}:{csv+1}], v[{r+j}:{r+j+1}] {sel}')
        for j in (0, 2):
            o.append(f'v_pk_mul_f32 v[{r+j}:{r+j+1}], v[{r+j}:{r+j+1}], v[{rs+j}:{rs+j+1}]')
        return o
    a('s_waitcnt lgkmcnt(0)')
    H = accH[0]
    hs = []
    for f in range(2):
        s = fix_col(accH[f], csk[f], colst[4], True) if par == 0 else fix_row(accH[f], f, 4)
        hs.append(s)
    for x in interleave(hs): a(x)
    a(cvt(H, accH[0], accH[0] + 1)); a(cvt(H + 1, accH[0] + 2, accH[0] + 3))
    a(cvt(H + 2, accH[1], accH[1] + 1)); a(cvt(H + 3, accH[1] + 2, accH[1] + 3))
    vH = vA
    a(f'v_lshlrev_b32 v{vH}, 4, v{c.lane}')
    a(f's_lshl_b32 s{T0}, s{S_H}, 11')
    a(f's_add_u32 s{T0}, s{T0}, {HALO0}')
    a(f'v_add_u32 v{vH}, s{T0}, v{vH}')
    a(f'ds_write_b128 v{vH}, v[{H}:{H+3}] offset:{0 if par == 0 else 1024}')
    Qp = [acc[0, 0, t] for t in range(4)]
    Kp = [accH[1]] + [acc[1, 0, t] for t in range(4)]
    Vp = c.Vp
    streams = []
    for t in range(4):
        s = []
        for f in range(2): s += fix_col(acc[1, f, t], csk[f], colst[t], True)
        q = acc[1, 0, t]; q1 = acc[1, 1, t]
        s += [cvt(q, q, q + 1), cvt(q + 1, q + 2, q + 3), cvt(q + 2, q1, q1 + 1), cvt(q + 3, q1 + 2, q1 + 3)]
        for f in range(2): s += fix_col(acc[0, f, t], csq[f], colst[t], False)
        q = acc[0, 0, t]; q1 = acc[0, 1, t]
        s += [cvt(q, q, q + 1), cvt(q + 1, q + 2, q + 3), cvt(q + 2, q1, q1 + 1), cvt(q + 3, q1 + 2, q1 + 3)]
        s.append(f'v_mul_f32 v{colst[t]+1}, s{S_C0+2}, v{colst[t]+1}')
        streams.append(s)
    for x in interleave(streams): a(x)
    a('s_waitcnt lgkmcnt(0)')
    a('s_barrier')
    if par == 0:
        a(f'v_xor_b32 v{vW0}, {8*16}, v{vH}')
        a(f'v_xor_b32 v{vW1}, {32*16}, v{vH}')
        vKH, vVH = vW0, vW1
    else:
        vKH = vVH = vH
    a(f'ds_read_b128 v[{Kp[0]}:{Kp[0]+3}], v{vKH}')
    a(f'ds_read_b64 v[{Vp[0]}:{Vp[0]+1}], v{vVH} offset:1024')
    a(f'ds_read_b64 v[{Vp[1]}:{Vp[1]+1}], v{vVH} offset:1032')
    S0 = [acc[0, 1, t] for t in range(4)]; S1 = [acc[1, 1, t] for t in range(4)]
    smm = []
    for t in range(4): smm.append(mfma(S1[t], Kp[t+1], Qp[t]))
    for t in range(1, 4): smm.append(mfma(S0[t], Kp[t], Qp[t]))
    vfix = []
    for t in range(4):
        for f in range(2):
            r = acc[2, f, t]
            vfix.append(fix_row(r, f, t) + [cvt(Vp[f] + 2 + 2*t, r, r + 1), cvt(Vp[f] + 3 + 2*t, r + 2, r + 3)])
    vf = interleave(vfix[0:4]) + interleave(vfix[4:8])
    n = 0
    for x in smm:
        a(x)
        for y in vf[n:n+2]: a(y)
        n += 2
    for y in vf[n:]: a(y)
    a('s_waitcnt lgkmcnt(0)')
    a(mfma(S0[0], Kp[0], Qp[0]))
    vNEG = c.tmp
    a(f'v_mov_b32 v{vNEG}, 0xf149f2ca')
    streams = []
    for t in range(4):
        s = []
        m = S0[t]; tp = acc[1, 0, t]; Pop = acc[2, 0, t]; cq = colst[t] + 1
        Ob = [acc[0, 0, t], S1[t]]
        val = (S_VAL0 if t == 0 else S_VAL)
        for r in range(4):
            s.append(f'v_cndmask_b32 v{m+r}, v{S0[t]+r}, v{S1[t]+r}, s[{S_SEL+2*r}:{S_SEL+2*r+1}]')
        for r in range(4):
            s.append(f'v_cndmask_b32 v{m+r}, v{vNEG}, v{m+r}, s[{val+2*r}:{val+2*r+1}]')
        mx, t2 = tp, tp + 1
        s.append(f'v_max3_f32 v{mx}, v{m}, v{m+1}, v{m+2}')
        s.append(f'v_max_f32 v{mx}, v{mx}, v{m+3}')
        for sw in ('16', '32'):
            s.append(f'v_mov_b32 v{t2}, v{mx}')
            s.append(f'v_permlane{sw}_swap_b32 v{mx}, v{t2}')
            s.append(f'v_max_f32 v{mx}, v{mx}, v{t2}')
        s.append(f'v_mul_f32 v{mx}, v{mx}, v{cq}')
        for r in range(4): s.append(f'v_fma_f32 v{m+r}, v{m+r}, v{cq}, -v{mx}')
        for r in range(4): s.append(f'v_exp_f32 v{m+r}, v{m+r}')
        sm = tp
        s.append(f'v_add_f32 v{sm}, v{m}, v{m+1}')
        s.append(f'v_add_f32 v{t2}, v{m+2}, v{m+3}')
        s.append(f'v_add_f32 v{sm}, v{sm}, v{t2}')
        for sw in ('16', '32'):
            s.append(f'v_mov_b32 v{t2}, v{sm}')
            s.append(f'v_permlane{sw}_swap_b32 v{sm}, v{t2}')
            s.append(f'v_add_f32 v{sm}, v{sm}, v{t2}')
        s.append(f'v_rcp_f32 v{sm}, v{sm}')
        for r in range(4): s.append(f'v_mul_f32 v{m+r}, v{m+r}, v{sm}')
        s.append(cvt(tp + 2, m, m + 1)); s.append(cvt(tp + 3, m + 2, m + 3))
        for j in range(2):
            s.append(f'v_bfi_b32 v{Pop+j}, v{c.M1[j]}, 0, v{tp+2+j}')
            s.append(f'v_and_b32 v{Pop+2+j}, v{c.M1[j]}, v{tp+2+j}')
        for f in range(2):
            s.append(mfma(Ob[f], Vp[f] + 2*t, Pop))
        o = tp
        s.append(cvt(o, Ob[0], Ob[0] + 1)); s.append(cvt(o + 1, Ob[0] + 2, Ob[0] + 3))
        s.append(cvt(o + 2, Ob[1], Ob[1] + 1)); s.append(cvt(o + 3, Ob[1] + 2, Ob[1] + 3))
        s.append(f'v_permlane16_swap_b32 v{o}, v{o+2}')
        s.append(f'v_permlane16_swap_b32 v{o+1}, v{o+3}')
        s.append(f'buffer_store_dwordx4 v[{o}:{o+3}], v{c.vFrag}, {srd(S_WS)}, s{T0 + t} offen sc1')
        streams.append(s)
    a(f's_lshl_b32 s{T0}, s{S_L}, 22')
    a(f's_lshl_b32 s{T4}, s{S_RBA}, 18'); a(f's_add_u32 s{T0}, s{T0}, s{T4}')
    a(f's_lshl_b32 s{T4}, s{S_GA}, 11'); a(f's_add_u32 s{T0}, s{T0}, s{T4}')
    a(f's_lshl_b32 s{T4}, s{S_H}, 10'); a(f's_add_u32 s{T0}, s{T0}, s{T4}')
    a(f's_add_u32 s{T0}, s{T0}, {O_OFF + par * 4 * 32768}')
    for t in range(1, 4): a(f's_add_u32 s{T0+t}, s{T0}, {32768*t}')
    for x in interleave(streams): a(x)
    ST.put(a, 3)
    if not OPT.get('so'):
        a(f's_lshl_b32 s{T5}, s{S_RBA}, 9')
        a(f's_lshl_b32 s{T4}, s{S_WAVE}, 7'); a(f's_add_u32 s{T5}, s{T5}, s{T4}')
        a(f's_lshl_b32 s{T4}, s{S_GA}, 2'); a(f's_add_u32 s{T5}, s{T5}, s{T4}')
        a(f's_add_u32 s{T5}, s{T5}, {FO_OFF}')
        a('s_waitcnt vmcnt(0)')
        flag_store(a, T5, S_TAG, c.tmp)
        ST.put(a, 4)
    a('s_branch b_cons')

DEPTH = 16
S_LINK, S_ANY, S_NFIX = 12, 14, 15
SLOT_S = [28, 29, 30, 31, 32, 33, 34, 35, 8, 9, 10, 11]
def b_consumer(a, c):
    so = OPT.get('so'); sx = OPT.get('sx')
    NR = OPT.get('nr', 9) if so else DEPTH
    R = Regs(10, 204)
    acc = {(f, t): R.get(4, 4) for f in range(4) for t in range(2)}
    wb = [[R.get(4, 4) for f in range(4)] for b in range(2)]
    ring = [[R.get(4, 4) for t in range(2)] for d in range(NR)]
    vW = c.vWB; vWh = c.vWBh
    order = order_b()
    heads = [2 * g + j for g in order for j in range(2)]
    a.label('b_cons')
    for tt in range(2):
        for f in range(4):
            x = c.xr[tt, f >> 1] + 2 * (f & 1); r = acc[f, tt]
            for j in range(2):
                a(f'v_lshlrev_b32 v{r+2*j}, 16, v{x+j}')
                a(f'v_and_b32 v{r+2*j+1}, s{S_C0+1}, v{x+j}')
    a(f's_lshl_b32 s{S_KA}, s{S_L}, 22')
    a(f's_lshl_b32 s{T4}, s{S_RBB}, 18'); a(f's_add_u32 s{S_KA}, s{S_KA}, s{T4}')
    a(f's_lshl_b32 s{T4}, s{S_WAVE}, 16'); a(f's_add_u32 s{S_KA}, s{S_KA}, s{T4}')
    a(f's_add_u32 s{S_KA}, s{S_KA}, {O_OFF}')
    a(f's_add_u32 s{S_KW}, s{S_KA}, 32768')
    if so:
        vAb2 = R.get(); vM = R.get(); vM2 = R.get()
        a(f'v_add_u32 v{vAb2}, 32768, v{c.vAb}')
    def slot_loads(d):
        return [f'buffer_load_dwordx4 v[{ring[d][t]}:{ring[d][t]+3}], v{(c.vAb, vAb2)[t]}, {srd(S_WS)}, s{SLOT_S[d]} offen sc1' for t in range(2)]
    def tok_load(n):
        o = []; hd = heads[n]
        if so:
            return [f's_add_u32 s{SLOT_S[n % NR]}, s{S_KA}, {hd * 1024}'] + slot_loads(n % NR)
        if n % 2 == 0:
            o += [f's_add_u32 s{T0}, s{S_KA}, {(hd >> 2) * 4096}', f's_add_u32 s{T1}, s{S_KW}, {(hd >> 2) * 4096}']
        for t in range(2):
            r = ring[n % NR][t]
            o.append(f'buffer_load_dwordx4 v[{r}:{r+3}], v{c.vAb}, {srd(S_WS)}, s{T0 + t} offen offset:{1024*(hd & 3)} sc1')
        return o
    def mark_test(d, vm_):
        p, q = ring[d]
        if OPT.get('sochk', 'full') == 'one':
            return [f'v_max_u32 v{vm_}, v{p}, v{q}', f'v_cmp_eq_u32 vcc, -1, v{vm_}']
        return [f'v_max3_u32 v{vm_}, v{p}, v{p+1}, v{p+2}', f'v_max3_u32 v{vm_+0}, v{vm_}, v{p+3}, v{q}',
                f'v_max3_u32 v{vm_}, v{vm_}, v{q+1}, v{q+2}', f'v_max_u32 v{vm_}, v{vm_}, v{q+3}',
                f'v_cmp_eq_u32 vcc, -1, v{vm_}']
    stubs = []
    def fix_branch(n):
        stubs.append(n)
        return f's_cbranch_vccnz so_stub_{n}\nso_back_{n}:'
    def wreads(n):
        b = n & 1; out = []; hd = heads[n]
        for f in range(4):
            for j in range(2):
                r = wb[b][f] + 2*j
                out.append(f'ds_read_b64_tr_b16 v[{r}:{r+1}], v{(vW if hd < 16 else vWh)[f]} offset:{(hd % 16)*4096 + j*512}')
        return out
    if so:
        w_ = OPT.get('so_wait', 0)
        if w_ is not None: a(f's_waitcnt vmcnt({w_})')
        ST.put(a, 4)
    else:
        finish_poll(a, c, 'o', lane_mask(order[:DEPTH // 2]), 0x200)
    a('s_barrier')
    ST.put(a, 5)
    D0 = min(NR, OPT.get('d0', 8))
    for n in range(D0):
        for x in tok_load(n): a(x)
    if so:
        for n in range(D0, NR): a(tok_load(n)[0])
    ptr = D0
    for x in wreads(0): a(x)
    nlate = len(OPT.get('late', [3, 11]))
    if so:
        a(f's_waitcnt vmcnt({2 * (D0 - 1)})')
        for x in mark_test(0, vM): a(x)
        a(fix_branch(0))
    for n in range(32):
        b = n & 1
        nxt = wreads(n + 1) if n + 1 < 32 else []
        later = ptr - n - 1
        a(f's_waitcnt lgkmcnt(0)' if so else f's_waitcnt vmcnt({2*later}) lgkmcnt(0)')
        if n == 0: ST.put(a, 6)
        ms = []
        for f in range(4):
            for t in range(2):
                cc = acc[f, t]; w = wb[b][f]; x = ring[n % NR][t]
                ms.append(mfma(cc, w, x, cc))
        new = min(32, n + NR, ptr + OPT.get('brate', 1))
        gaps = [[] for _ in range(8)]
        br = OPT.get('br', (0, 0, 1, 1, 2, 2, 3, 3))
        bl = OPT.get('bl', (3, 4) if so else (4, 6))
        items = []
        for m in range(ptr, new):
            pre = ['s_barrier'] if (not so and (m == DEPTH or m == 32 - 2 * nlate)) else []
            tl = tok_load(m)
            items.append(pre + tl[:-1]); items.append(tl[-1:])
        if len(items) > len(bl): bl = (4, 5, 6, 7, 7, 7, 7, 7)
        for i, x in enumerate(nxt): gaps[br[i]].append(x)
        for k, it in enumerate(items): gaps[bl[k]] += it
        if so and n + 1 < 32:
            mt = mark_test((n + 1) % NR, vM)
            g0 = OPT.get('cg', 5)
            gaps[g0].append(f's_waitcnt vmcnt({2 * (new - n - 2)})')
            if len(mt) == 2:
                gaps[g0].append(mt[0]); gaps[g0 + 1].append(mt[1])
            else:
                gaps[g0] += mt[0:2]; gaps[g0 + 1] += mt[2:5]
            gaps[7].append(fix_branch(n + 1))
        if n == 31 and sx:
            pass
        for i, m in enumerate(ms):
            a(m)
            for x in gaps[i]: a(x)
        ptr = new
    if not sx: a('s_barrier')
    ST.put(a, 7)
    x_dst_offsets(a, 1)
    for tt in range(2):
        for f in range(4):
            x = c.xr[tt, f >> 1] + 2 * (f & 1); r = acc[f, tt]
            a(cvt(x, r, r + 1)); a(cvt(x + 1, r + 2, r + 3))
    swap_xr(a, c)
    a(f's_cmp_eq_u32 s{S_L}, 3')
    a('s_cbranch_scc1 b_final')
    stats_and_store(a, c, b3=sx)
    swap_xr(a, c)
    xflag_off(a, T5)
    a(f's_add_u32 s{S_L}, s{S_L}, 1')
    a(f's_add_u32 s{S_TAG}, s{S_TAG}, 1')
    set_ga(a)
    ST.put(a, 8 - 12)
    a(f's_mov_b32 s{S_FLAGAT}, -1')
    a(f'v_mov_b32 v{c.vA0b}, v{c.vAb}')
    a(f'v_add_u32 v{c.vA1b}, 1024, v{c.vAb}')
    if sx:
        a(f's_waitcnt vmcnt({OPT.get("sx_wait", 2)})')
        a('s_barrier')
    a('s_waitcnt vmcnt(0)')
    flag_store(a, T5, S_TAG, c.tmp)
    ST.put(a, 9 - 12)
    a(f's_bitcmp1_b32 s{S_WAVE}, 0')
    a('s_cbranch_scc1 a_cons_p1')
    a('s_branch a_cons_p0')
    if so:
        for n in stubs:
            a.label(f'so_stub_{n}')
            a(f's_call_b64 s[{S_LINK}:{S_LINK+1}], so_fix')
            a(f's_branch so_back_{n}')
        a.label('so_fix')
        a(f's_mov_b32 s{S_SPIN}, 0')
        if OPT.get('stamps'): a(f's_add_u32 s{S_NFIX}, s{S_NFIX}, 1')
        a.label('so_fix_loop')
        a('s_waitcnt vmcnt(0)')
        a(f's_mov_b32 s{S_ANY}, 0')
        for d in range(NR):
            sk = f'so_fix_ok_{d}'
            for x in mark_test(d, vM2): a(x)
            a(f's_cbranch_vccz {sk}')
            for x in slot_loads(d): a(x)
            a(f's_mov_b32 s{S_ANY}, 1')
            a.label(sk)
        a(f's_cmp_eq_u32 s{S_ANY}, 0')
        a('s_cbranch_scc1 so_fix_done')
        if OPT.get('stamps'): a(f's_add_u32 s{S_NFIX}, s{S_NFIX}, 65536')
        a(f's_add_u32 s{S_SPIN}, s{S_SPIN}, 1')
        a(f's_cmp_lt_u32 s{S_SPIN}, {SPIN_MAX}')
        a('s_cbranch_scc1 so_fix_loop')
        a(f'v_mov_b32 v{vM2}, 0x210')
        a(f's_mov_b32 s{S_SPIN}, 16')
        a(f'buffer_store_dword v{vM2}, off, {srd(S_DBG)}, s{S_SPIN}')
        a('s_waitcnt vmcnt(0)')
        a.label('so_fix_done')
        a('s_nop 4')
        a(f's_setpc_b64 s[{S_LINK}:{S_LINK+1}]')
    a.label('b_final')
    a(f's_or_b32 s{T4}, s2, s{S_WAVE}')
    a(f's_cmp_lg_u32 s{T4}, 0')
    a('s_cbranch_scc1 b_final_rows')
    a(f's_mov_b32 s{T5}, {E_OFF}')
    flag_store(a, T5, S_NONCE, c.tmp)
    a.label('b_final_rows')
    row_offsets(a)
    for tt in range(2):
        for P in range(2):
            r = c.xr[tt, P]
            a(f'buffer_store_dwordx4 v[{r}:{r+3}], v{c.vXrow}, {srd(S_OUT)}, s{T0 if tt == 0 else T1} offen offset:{64*P}')
    ST.put(a, 8)
    if OPT.get('stamps'): a('s_waitcnt vmcnt(0)')
    ST.put(a, 9)
    ST.cyc(a, 61)
    if OPT.get('stamps') and OPT.get('so'): a(f'v_writelane_b32 v{V_ST}, s{S_NFIX}, 59')
    ST.flush(a)
    a('s_endpgm')

class VM:
    def __init__(self): self.q = []; self.nt = 0; self.nw = 0
    def add(self, name, n): self.q.append([name, n])
    def wait(self, a, name):
        if not any(nm == name for nm, n in self.q): return
        idx = max(i for i, (nm, n) in enumerate(self.q) if nm == name)
        later = sum(n for nm, n in self.q[idx+1:])
        assert later <= 63
        a(f's_waitcnt vmcnt({later})')
        self.q = self.q[idx+1:]
    def wait_any(self, a, names):
        idxs = [i for i, (nm, n) in enumerate(self.q) if nm in names]
        if not idxs: return
        idx = max(idxs)
        later = sum(n for nm, n in self.q[idx+1:])
        assert later <= 63
        a(f's_waitcnt vmcnt({later})')
        self.q = self.q[idx+1:]
    def clear(self): self.q = []

def lane_consts(a):
    a('v_and_b32 v9, 63, v0')
    a('v_lshrrev_b32 v10, 3, v9')
    a('v_and_b32 v11, 7, v9')
    a('v_lshrrev_b32 v12, 4, v9')
    a('v_and_b32 v13, 15, v9')
    a('v_lshlrev_b32 v1, 4, v9')
def swz_regs(a, dst, row):
    for par in range(2):
        a('v_and_b32 v14, 1, v12')
        a(f'v_or_b32 v14, {2*par}, v14')
        a('v_lshlrev_b32 v14, 1, v14')
        a('v_xor_b32 v14, v14, v11')
        a('v_lshlrev_b32 v14, 4, v14')
        if row == 6144:
            a('v_mul_u32_u24 v15, 6144, v10')
            a(f'v_add_u32 v{dst[par]}, v14, v15')
        else:
            a(f'v_lshl_add_u32 v{dst[par]}, v10, {row.bit_length() - 1}, v14')

WO_AVAIL = {13: list(range(54, 78)), 14: list(range(18, 36)) + list(range(78, 102)),
            15: list(range(36, 54)) + list(range(102, 126)), 16: list(range(0, 18)) + [126, 127]}
S_WOB = 75
def wo_base(a):
    a(f's_and_b32 s{S_WOB}, s{S_L}, 1'); a(f's_lshl_b32 s{S_WOB}, s{S_WOB}, 21')
    a(f's_lshl_b32 s{T4}, s{S_GB}, 17'); a(f's_add_u32 s{S_WOB}, s{S_WOB}, s{T4}')
    a(f's_add_u32 s{S_WOB}, s{S_WOB}, {WOP_OFF}')
def wo_pieces(a, p, k, vT):
    lst = WO_AVAIL[k]; n = len(lst)
    mine = lst[p * n // 3:(p + 1) * n // 3]
    i = 0
    while i < len(mine):
        j = i
        while j + 1 < len(mine) and mine[j + 1] == mine[j] + 1 and j + 1 - i < 4: j += 1
        a(f's_mov_b32 m0, {mine[i] * 1024}')
        a(f's_add_u32 s{S_TMP}, s{S_WOB}, {mine[i] * 1024}')
        for q in range(j + 1 - i):
            a(f'buffer_load_dwordx4 v{vT}, {srd(S_WS)}, s{S_TMP} offen offset:{1024 * q} lds')
        i = j + 1
    return len(mine)

def l0st(a, first, s, vm, static=False):
    Lw = OPT.get('l0st')
    if Lw is None: return
    if static:
        if not first: return
    elif first != (Lw == 0): return
    def st2(idx):
        sk = a.uniq('st2_skip')
        a(f's_cmp_lg_u32 s{S_L}, {Lw}'); a(f's_cbranch_scc1 {sk}')
        a(f's_memrealtime s[{S_ST}:{S_ST+1}]'); a('s_waitcnt lgkmcnt(0)'); a(f'v_writelane_b32 v24, s{S_ST}, {idx}')
        a.label(sk)
    st2(s)
    vm.wait_any(a, (f'W{s+1}',)); st2(16 + s)
    vm.wait_any(a, (f'T{s+1}',)); st2(32 + s)
def l0st_flush(a):
    if OPT.get('l0st') is not None:
        a(f's_add_u32 s{T0}, s{T0}, {1 << 20}')
        a(f'buffer_store_dword v24, v1, {srd(S_WS)}, s{T0} offen')
        a('s_waitcnt vmcnt(0)')

def loader(a, p):
    vT, vHalo, vPoll = 1, 2, 5
    vW = [3, 4]
    vTL = [6, 7]
    NW0 = OPT.get('nw0', NW)
    tagn = f'w{p}'
    a.label(f'prod_{tagn}')
    lane_consts(a)
    if OPT.get('stamps'): a('s_mov_b32 s76, 0')
    swz_regs(a, vW, 6144)
    for half in range(2):
        a(f'v_or_b32 v14, {4*half}, v12')
        a('v_xor_b32 v14, v14, v11')
        a('v_lshlrev_b32 v14, 4, v14')
        a(f'v_lshl_add_u32 v{vTL[half]}, v10, 12, v14')
    order = order_a()
    vm = VM()
    def adv_w():
        a(f's_add_u32 s{S_SLOTW}, s{S_SLOTW}, {W_SLOT}')
        a(f's_cmp_eq_u32 s{S_SLOTW}, {W0 + NW * W_SLOT}')
        a(f's_cselect_b32 s{S_SLOTW}, {W0}, s{S_SLOTW}')
    def adv_t():
        a(f's_add_u32 s{S_SLOTA}, s{S_SLOTA}, {A_SLOT}')
        a(f's_cmp_eq_u32 s{S_SLOTA}, {3 * A_SLOT}')
        a(f's_cselect_b32 s{S_SLOTA}, 0, s{S_SLOTA}')
    def reset_w():
        vm.nw = 0
        a(f's_mov_b32 s{S_SLOTW}, {W0}')
    def issue_W(name, first):
        kw = order[vm.nw]; vm.nw += 1
        if first:
            for pp in range(8):
                a(f's_add_u32 m0, s{S_SLOTW}, {p * 8192 + pp * 1024}')
                a(f's_add_u32 s{S_TMP}, s{S_PB}, {kw * 64 * 6144 + pp * 8 * 6144}')
                a(f'buffer_load_dwordx4 v{vW[pp & 1]}, {srd(S_WQ)}, s{S_TMP} offen {OPT.get("wmod", "")} lds')
        else:
            for base in (0, 4096):
                a(f's_add_u32 m0, s{S_SLOTW}, {p * 8192 + base}')
                a(f's_add_u32 s{S_TMP}, s{S_PB}, {kw * W_SLOT + base}')
                for j in range(4):
                    a(f'buffer_load_dwordx4 v{vT}, {srd(S_WS)}, s{S_TMP} offen offset:{1024*j} {OPT.get("wmod", "")} lds')
        adv_w()
        vm.add(name, 8)
    def T_loads(k, first, slot):
        def m0(off):
            a(f's_add_u32 m0, s{S_SLOTA}, {off}' if slot is None else f's_mov_b32 m0, {slot + off}')
        if first:
            for tau in range(3 * p, 3 * p + 3):
                for half in range(2):
                    m0(tau * 2048 + half * 1024)
                    if tau < 8:
                        row = (tau & 3) * 32 + (tau >> 2) + 16 * half
                        a(f's_add_u32 s{S_TMP}, s{S_TB}, {row * 2048 + k * 128}')
                    else:
                        a(f's_add_u32 s{S_TMP}, s{S_HB}, {(112 + half) * 2048 + k * 128}')
                    a(f'buffer_load_dwordx4 v{vTL[half]}, {srd(S_AX)}, s{S_TMP} offen lds')
        else:
            groups = ((0, 4), (4096, 2)) if p < 2 else ((0, 4),)
            for base, cnt in groups:
                m0(p * 6144 + base)
                a(f's_add_u32 s{S_TMP}, s{S_TB}, {k * 16384 + p * 6144 + base}')
                for j in range(cnt):
                    a(f'buffer_load_dwordx4 v{vT}, {srd(S_WS)}, s{S_TMP} offen offset:{1024*j} sc1 lds')
            if p == 2:
                m0(16384)
                a(f's_add_u32 s{S_TMP}, s{S_HB}, {k * 16384}')
                for ks in range(2):
                    a(f'buffer_load_dwordx4 v{vHalo}, {srd(S_WS)}, s{S_TMP} offen offset:{1024*ks} sc1 lds')
    def issue_T(name, first):
        k = order[vm.nt]; vm.nt += 1
        T_loads(k, first, None)
        adv_t()
        vm.add(name, 6)
    S_NRT = 76
    def check_T(n):
        slot = (n % 3) * A_SLOT; RD = 32; vM = 30
        lp = a.uniq('tchk'); ok = a.uniq('tchk_ok')
        a(f's_mov_b32 s{S_SPIN}, 0')
        a.label(lp)
        for j in range(6):
            a(f'ds_read_b128 v[{RD+4*j}:{RD+4*j+3}], v{vT} offset:{slot + p * 6144 + j * 1024}')
        regs = list(range(RD, RD + 24))
        if OPT.get('sxchk', 'full') == 'one': regs = regs[0::4]
        a('s_waitcnt lgkmcnt(0)')
        h = len(regs) // 2
        ch = []
        for c_, part in enumerate((regs[:h], regs[h:])):
            v = vM + c_; q = [f'v_max3_u32 v{v}, v{part[0]}, v{part[1]}, v{part[2]}']
            rest = part[3:]
            while len(rest) >= 2:
                q.append(f'v_max3_u32 v{v}, v{v}, v{rest[0]}, v{rest[1]}'); rest = rest[2:]
            if rest: q.append(f'v_max_u32 v{v}, v{v}, v{rest[0]}')
            ch.append(q)
        for x in interleave(ch): a(x)
        a(f'v_max_u32 v{vM}, v{vM}, v{vM+1}')
        a(f'v_cmp_eq_u32 vcc, -1, v{vM}')
        a(f's_cbranch_vccz {ok}')
        if OPT.get('stamps'): a(f's_add_u32 s{S_NRT}, s{S_NRT}, {1 << (8 * n)}')
        T_loads(order[n], False, slot)
        a('s_waitcnt vmcnt(0)')
        a(f's_add_u32 s{S_SPIN}, s{S_SPIN}, 1')
        a(f's_cmp_lt_u32 s{S_SPIN}, {SPIN_MAX}')
        a(f's_cbranch_scc1 {lp}')
        a(f'v_mov_b32 v{vM}, 0x110')
        a(f's_mov_b32 s{S_SPIN}, 16')
        a(f'buffer_store_dword v{vM}, off, {srd(S_DBG)}, s{S_SPIN}')
        a('s_waitcnt vmcnt(0)')
        a.label(ok)
    sx = OPT.get('sx'); so = OPT.get('so'); NS = OPT.get('xg1', 4)
    def stages(first):
        wo_base(a)
        for s in range(15):
            l0st(a, first, s, vm)
            vm.wait_any(a, (f'T{s+1}', f'W{s+1}'))
            if sx and not first and s + 1 < NS: check_T(s + 1)
            a('s_barrier')
            if s + 3 <= 15: issue_T(f'T{s+3}', first)
            if s + NW <= 15: issue_W(f'W{s+NW}', first)
            if s + 1 >= 13: vm.add(f'O{s+1}', wo_pieces(a, p, s + 1, vT))
        a('s_barrier')
        wo_pieces(a, p, 16, vT)
    a(f's_lshl_b32 s{S_PB}, s{S_GA}, 7')
    if p: a(f's_add_u32 s{S_PB}, s{S_PB}, {p * 2048}')
    a(f's_lshl_b32 s{S_TB}, s{S_RBA}, 18')
    a(f's_sub_u32 s{T3}, s{S_RBA}, 1'); a(f's_max_i32 s{T3}, s{T3}, 0')
    a(f's_lshl_b32 s{S_HB}, s{T3}, 18')
    reset_w()
    a(f's_mov_b32 s{S_SLOTA}, 0'); vm.nt = 0
    issue_W('W0', True); issue_T('T0', True); issue_W('W1', True); issue_T('T1', True); issue_T('T2', True)
    for n in range(2, NW): issue_W(f'W{n}', True)
    a('v_lshlrev_b32 v14, 8, v12')
    a('v_or_b32 v15, 8, v13')
    a('v_lshl_add_u32 v14, v15, 4, v14')
    a('v_lshrrev_b32 v15, 3, v13')
    a('v_lshlrev_b32 v15, 13, v15')
    a('v_add_u32 v14, v14, v15')
    a(f'v_add_u32 v{vHalo}, {3 * 2048}, v14')
    if p == 0:
        a('v_lshlrev_b32 v14, 7, v12')
        a(f'v_lshl_add_u32 v{vPoll}, v13, 2, v14')
        a('s_waitcnt lgkmcnt(0)')
        a(f's_add_u32 s{S_NONCE}, s{S_NONCE}, 256')
        a(f's_add_u32 s{S_TAG}, s{S_NONCE}, 1')
    vm.wait_any(a, ('T0', 'W0'))
    ST.put(a, 1)
    a('s_barrier')
    stages(True)
    a(f's_branch prod_tail_{tagn}')
    a.label(f'prod_layer_{tagn}')
    vm.clear()
    a(f's_lshl_b32 s{T0}, s{S_L}, 22')
    a(f's_lshl_b32 s{T4}, s{S_RBA}, 18')
    a(f's_add_u32 s{S_TB}, s{T0}, s{T4}')
    a(f's_sub_u32 s{T3}, s{S_RBA}, 1'); a(f's_max_i32 s{T3}, s{T3}, 0')
    a(f's_lshl_b32 s{T4}, s{T3}, 18')
    a(f's_add_u32 s{S_HB}, s{T0}, s{T4}')
    if X_OFF:
        a(f's_add_u32 s{S_TB}, s{S_TB}, {X_OFF}'); a(f's_add_u32 s{S_HB}, s{S_HB}, {X_OFF}')
    a(f's_mov_b32 s{S_SLOTA}, 0'); vm.nt = 0; vm.nw = NW0
    for n in range(NW0): vm.add(f'W{n}', 8)
    ST.put(a, 0)
    a('s_barrier')
    issue_T('T0', False); issue_T('T1', False)
    for n in range(NW0, NW): issue_W(f'W{n}', False)
    issue_T('T2', False)
    vm.wait(a, 'T0')
    if sx: check_T(0)
    ST.put(a, 1)
    a('s_barrier')
    stages(False)
    a.label(f'prod_tail_{tagn}')
    ST.put(a, 2)
    a('s_barrier')
    a('s_waitcnt vmcnt(0)')
    ST.put(a, 5)
    a('s_barrier')
    if not so:
        order2 = order_b(); nlate = len(OPT.get('late', [3, 11]))
        if p == 0:
            a(f's_lshl_b32 s{T0}, s{S_RBB}, 9'); a(f's_add_u32 s{T0}, s{T0}, {FO_OFF}')
            poll(a, S_TAG, [(vPoll, T0)], 20, 0x201, lane_mask(order2[:16 - nlate]))
        a('s_barrier')
        if p == 0:
            poll(a, S_TAG, [(vPoll, T0)], 20, 0x202, lane_mask(order2))
        a('s_barrier')
    a(f's_cmp_eq_u32 s{S_L}, 3')
    a(f's_cbranch_scc1 prod_end_{tagn}')
    a(f's_add_u32 s{S_L}, s{S_L}, 1')
    if p == 0: a(f's_add_u32 s{S_TAG}, s{S_TAG}, 1')
    a(f's_and_b32 s{T0}, s{S_L}, 1'); a(f's_mul_i32 s{T0}, s{T0}, {6 * MB}')
    a(f's_mul_i32 s{T4}, s{S_GA}, {16 * W_SLOT}'); a(f's_add_u32 s{T0}, s{T0}, s{T4}')
    a(f's_add_u32 s{S_PB}, s{T0}, {WP_OFF + p * 8192}')
    a('s_barrier')
    reset_w()
    for n in range(NW0): issue_W(f'W{n}', False)
    a(f's_branch prod_layer_{tagn}')
    a.label(f'prod_end_{tagn}')
    if not sx: a('s_barrier')
    ST.cyc(a, 61)
    if OPT.get('stamps'): a(f'v_writelane_b32 v{V_ST}, s{S_NRT}, 59')
    ST.flush(a)
    l0st_flush(a)
    a('s_endpgm')

def service(a):
    vT, vPoll, vSt, vStH = 1, 5, 2, 3
    vWS = [6, 7]
    vLD = 18
    vX = 25
    S_CSF = 74
    S_BSET = S_OUT
    a.label('prod_w3')
    lane_consts(a)
    a('v_mul_u32_u24 v15, 6144, v10')
    a(f'v_lshl_add_u32 v{vLD}, v11, 4, v15')
    vm = VM()
    order = order_a()
    RQ = 128
    def rp_issue(st, u):
        a(f's_mul_i32 s{T0}, s{S_RBA}, {64 * 6144}')
        a(f's_lshl_b32 s{T4}, s{S_GA}, 7'); a(f's_add_u32 s{T0}, s{T0}, s{T4}')
        for j in range(8):
            r = RQ + 32 * u + 4 * j
            a(f's_add_u32 s{S_TMP}, s{T0}, {j * 8 * 6144 + u * 2048}')
            a(f'buffer_load_dwordx4 v[{r}:{r+3}], v{vLD}, {srd(S_WQ if st == 0 else S_BSET)}, s{S_TMP} offen')
        vm.add(f'C{u}', 8)
    for u in range(3): rp_issue(0, u)
    a(f's_mov_b32 s{S_BSET}, s{P_BWQ}'); a(f's_mov_b32 s{S_BSET+1}, s{P_BWQ+1}')
    a(f's_mov_b32 s{S_BSET+2}, {1024 * 6144}')
    swz_regs(a, vWS, 128)
    a('v_lshlrev_b32 v14, 7, v12')
    a(f'v_lshl_add_u32 v{vPoll}, v13, 2, v14')
    a('v_lshlrev_b32 v14, 10, v12')
    a(f'v_lshl_add_u32 v{vSt}, v13, 4, v14')
    a('v_and_b32 v14, 3, v11'); a('v_lshlrev_b32 v14, 4, v14')
    a('v_lshrrev_b32 v15, 2, v11'); a('v_lshlrev_b32 v15, 9, v15')
    a('v_add_u32 v14, v14, v15')
    a('v_lshl_add_u32 v14, v10, 10, v14')
    a(f'v_add_u32 v{vStH}, {3 * 128 + 64}, v14')
    a(f's_lshl_b32 s{S_CSF}, s{S_GA}, 9')
    a(f's_lshl_b32 s{T4}, s{S_RBA}, 2'); a(f's_add_u32 s{S_CSF}, s{S_CSF}, s{T4}')
    a(f's_add_u32 s{S_CSF}, s{S_CSF}, {FC_OFF}')
    a('s_waitcnt lgkmcnt(0)')
    a(f's_add_u32 s{S_NONCE}, s{S_NONCE}, 256')
    a(f's_add_u32 s{S_TAG}, s{S_NONCE}, 1')
    a(f'v_lshlrev_b32 v15, 11, v10')
    a(f'v_lshl_add_u32 v19, v11, 4, v15')
    for j in range(4): a(f'v_mov_b32 v{240+j}, -1')
    a(f's_lshl_b32 s79, s{S_RBA}, 7')
    a(f's_sub_u32 s{T3}, s{S_RBA}, 1'); a(f's_max_i32 s{T3}, s{T3}, 0')
    a(f's_sub_u32 s{T3}, s{S_RBA}, s{T3}'); a(f's_lshl_b32 s{T3}, s{T3}, 7')
    a('v_and_b32 v14, 1, v12')
    a(f'v_mul_u32_u24 v14, s{T3}, v14')
    a('v_lshlrev_b32 v15, 2, v13')
    a('v_add_u32 v15, s79, v15')
    a('v_sub_u32 v29, v15, v14')
    a(f's_lshl_b32 s{T4}, s{S_GA}, 2'); a(f's_add_u32 s79, s79, s{T4}')
    a(f's_add_u32 s79, s79, {FL_OFF}')
    A, TT = 224, 232
    so = OPT.get('so'); sx = OPT.get('sx')
    WOR = 32
    vLD2 = 19
    def wo_issue(st):
        a(f's_lshl_b32 s{T0}, s{S_RBB}, 17')
        a(f's_lshl_b32 s{T4}, s{S_GB}, 7'); a(f's_add_u32 s{T0}, s{T0}, s{T4}')
        P = P_AWO if st == 0 else P_BWO
        a(f's_mov_b32 s{S_WO}, s{P}'); a(f's_mov_b32 s{S_WO+1}, s{P+1}')
        for j in range(8):
            r = WOR + 4 * j
            a(f's_add_u32 s{S_TMP}, s{T0}, {j * 8 * 2048}')
            a(f'buffer_load_dwordx4 v[{r}:{r+3}], v{vLD2}, {srd(S_WO)}, s{S_TMP} offen')
        vm.add('WO', 8)
    def wo_store(st):
        vm.wait(a, 'WO')
        a(f's_lshl_b32 s{T0}, s{S_GB}, 17')
        a(f's_lshl_b32 s{T4}, s{S_RBB}, 13'); a(f's_add_u32 s{T0}, s{T0}, s{T4}')
        a(f's_add_u32 s{T0}, s{T0}, {WOP_OFF + st * 2 * MB}')
        for j in range(8):
            r = WOR + 4 * j
            if j == 4: a(f's_add_u32 s{T0}, s{T0}, 4096')
            a(f'buffer_store_dwordx4 v[{r}:{r+3}], v{vWS[j & 1]}, {srd(S_WS)}, s{T0} offen offset:{(j % 4) * 1024} sc1')
        vm.add('WOS', 8)
    vNEG, vPollC = 240, 29
    S_CO, S_CX, S_CLF = 77, 78, 79
    def clear_list(L):
        o = [(S_CO, t * 32768, [0, 1024]) for t in range(8)] if so else []
        x = [(S_CX, q * 4096, [0, 1024, 2048, 3072]) for q in range(4)] if (sx and L < 3) else []
        out = []
        for b, c_, offs in o + x:
            for of in offs: out.append((b, c_, of))
        return out
    def clear_bases(L):
        a(f's_lshl_b32 s{T0}, s{S_RBA}, 18')
        a(f's_lshl_b32 s{T4}, s{S_GA}, 11'); a(f's_add_u32 s{S_CO}, s{T0}, s{T4}')
        a(f's_add_u32 s{S_CO}, s{S_CO}, {O_OFF + L * LSTRIDE}')
        a(f's_lshl_b32 s{T4}, s{S_GA}, 14'); a(f's_add_u32 s{S_CX}, s{T0}, s{T4}')
        a(f's_add_u32 s{S_CX}, s{S_CX}, {X_OFF + (L + 1) * LSTRIDE}')
    def clear_some(lst):
        last = None
        for b, c_, of in lst:
            if last != (b, c_):
                a(f's_add_u32 s{S_TMP}, s{b}, {c_}'); last = (b, c_)
            a(f'buffer_store_dwordx4 v[{vNEG}:{vNEG+3}], v{vT}, {srd(S_WS)}, s{S_TMP} offen offset:{of} sc1')
        if lst: vm.add('CL', len(lst))
    def clear_flag():
        vm.wait(a, 'CL')
        flag_store(a, S_CLF, S_TAG, 20); vm.add('F', 1)
    def clear_poll_issue():
        a(f's_mov_b32 s{T0}, {FL_OFF}')
        a(f'buffer_load_dword v30, v{vPollC}, {srd(S_WS)}, s{T0} offen sc1')
        vm.add('Q', 1)
    def clear_check():
        vm.wait(a, 'Q')
        ok = a.uniq('cl_ok')
        poll_test(a, S_TAG, 1, 30, False)
        a(f's_cbranch_scc1 {ok}')
        a(f's_mov_b32 s{T0}, {FL_OFF}')
        poll(a, S_TAG, [(vPollC, T0)], 30, 0x310)
        a.label(ok)
    def rp_dot(u):
        vm.wait(a, f'C{u}')
        R0 = RQ + 32 * u
        a('v_mov_b32 v20, 0x3f80'); a('v_mov_b32 v21, 0x3f800000')
        for e in range(8): a(f'v_mov_b32 v{A+e}, 0')
        for j in range(8):
            r = R0 + 4 * j
            for q in range(4):
                a(f'v_dot2c_f32_bf16 v{A+2*q}, v20, v{r+q}')
                a(f'v_dot2c_f32_bf16 v{A+2*q+1}, v21, v{r+q}')
    def rp_red(st, u):
        streams = []
        for e in range(8):
            v = A + e; t = TT + e; sq = []
            sq.append(f'v_add_f32_dpp v{v}, v{v}, v{v} row_ror:8 row_mask:0xf bank_mask:0xf')
            for sw in ('16', '32'):
                sq.append(f'v_mov_b32 v{t}, v{v}')
                sq.append(f'v_permlane{sw}_swap_b32 v{v}, v{t}')
                sq.append(f'v_add_f32 v{v}, v{v}, v{t}')
            streams.append(sq)
        for x in interleave(streams): a(x)
        a(f's_lshl_b32 s{T0}, s{S_GA}, 14')
        a(f's_lshl_b32 s{T4}, s{S_RBA}, 10'); a(f's_add_u32 s{T0}, s{T0}, s{T4}')
        a(f's_add_u32 s{T0}, s{T0}, {CSP_OFF + u * 256 + st * 262144}')
        a('v_lshlrev_b32 v20, 5, v11')
        a('s_mov_b64 exec, 0xff')
        for q in range(2):
            a(f'buffer_store_dwordx4 v[{A+4*q}:{A+4*q+3}], v20, {srd(S_WS)}, s{T0} offen offset:{16*q} sc1')
        a('s_mov_b64 exec, -1')
        vm.add(f'CS{u}', 2)
    def rp_store(st, u):
        vm.wait(a, f'C{u}')
        R0 = RQ + 32 * u
        a(f's_mul_i32 s{T0}, s{S_GA}, {16 * W_SLOT}')
        a(f's_mul_i32 s{T4}, s{S_RBA}, {W_SLOT}'); a(f's_add_u32 s{T0}, s{T0}, s{T4}')
        a(f's_add_u32 s{T0}, s{T0}, {WP_OFF + st * 6 * MB + u * 8192}')
        for j in range(8):
            r = R0 + 4 * j
            if j == 4: a(f's_add_u32 s{T0}, s{T0}, 4096')
            a(f'buffer_store_dwordx4 v[{r}:{r+3}], v{vWS[j & 1]}, {srd(S_WS)}, s{T0} offen offset:{(j % 4) * 1024} sc1')
        vm.add(f'RP{u}', 8)
    csmask = lane_mask(range(16), (0,))
    def cs_poll_off():
        a(f's_lshl_b32 s{T0}, s{S_GA}, 9'); a(f's_add_u32 s{T0}, s{T0}, {FC_OFF}')
    def cs_poll_issue():
        cs_poll_off()
        a(f'buffer_load_dword v{vX}, v{vPoll}, {srd(S_WS)}, s{T0} offen sc1')
        vm.add('X', 1)
    def cs_check(plus, code):
        vm.wait(a, 'X')
        ok = a.uniq('cs_ok')
        a(f's_add_u32 s{T1}, s{S_NONCE}, {plus}')
        set_mask(a, csmask)
        poll_test(a, T1, 1, vX, True)
        a(f's_cbranch_scc1 {ok}')
        cs_poll_off()
        poll(a, T1, [(vPoll, T0)], vX, code, csmask)
        a.label(ok)
    def cs_flag(plus):
        a(f's_add_u32 s{T1}, s{S_NONCE}, {plus}')
        flag_store(a, S_CSF, T1, 20); vm.add('F', 1)
    SC = 32
    def cs_loads(lo, hi):
        a(f's_and_b32 s{T0}, s{S_L}, 1'); a(f's_lshl_b32 s{T0}, s{T0}, 18')
        a(f's_lshl_b32 s{T4}, s{S_GA}, 14'); a(f's_add_u32 s{T0}, s{T0}, s{T4}')
        a(f's_add_u32 s{T0}, s{T0}, {CSP_OFF}')
        for rb in range(lo, hi):
            if rb % 4 == 0: a(f's_add_u32 s{S_TMP}, s{T0}, {rb * 1024}')
            a(f'buffer_load_dwordx4 v[{SC+4*rb}:{SC+4*rb+3}], v{vT}, {srd(S_WS)}, s{S_TMP} offen offset:{(rb % 4) * 1024} sc1')
        vm.add('Y', hi - lo)
    def cs_process():
        vm.wait(a, 'Y')
        for rb in range(1, 16):
            for q in range(4): a(f'v_add_f32 v{SC+q}, v{SC+q}, v{SC+4*rb+q}')
        a(f's_and_b32 s{T0}, s{S_L}, 1'); a(f's_lshl_b32 s{T0}, s{T0}, 10'); a(f's_add_u32 s{T0}, s{T0}, {CS0}')
        a(f'v_add_u32 v20, s{T0}, v{vT}')
        a(f'ds_write_b128 v20, v[{SC}:{SC+3}]')
        a('s_waitcnt lgkmcnt(0)')
    SV = 32
    def stats_issue(part):
        a(f's_lshl_b32 s{T0}, s{S_L}, 18')
        a(f's_lshl_b32 s{T4}, s{S_RBA}, 14'); a(f's_add_u32 s{T1}, s{T0}, s{T4}')
        a(f's_add_u32 s{T1}, s{T1}, {S_OFF}')
        n = 0
        for j in range(4):
            a(f's_add_u32 s{S_TMP}, s{T1}, {j * 4096}')
            for q in (2 * part, 2 * part + 1):
                r = SV + 16 * q + 4 * j
                a(f'buffer_load_dwordx4 v[{r}:{r+3}], v{vSt}, {srd(S_WS)}, s{S_TMP} offen offset:{q * 256} sc1'); n += 1
        if part == 1:
            a(f's_sub_u32 s{T3}, s{S_RBA}, 1'); a(f's_max_i32 s{T3}, s{T3}, 0')
            a(f's_lshl_b32 s{T4}, s{T3}, 14'); a(f's_add_u32 s{T1}, s{T0}, s{T4}')
            for j in range(2):
                a(f's_add_u32 s{S_TMP}, s{T1}, {S_OFF + j * 8192}')
                r = SV + 64 + 4 * j
                a(f'buffer_load_dwordx4 v[{r}:{r+3}], v{vStH}, {srd(S_WS)}, s{S_TMP} offen sc1'); n += 1
        vm.add(f'S{part}', n)
    def stats_process(part):
        vm.wait(a, f'S{part}')
        groups = [(SV + 16 * q, 4, q) for q in (2 * part, 2 * part + 1)]
        if part == 1: groups.append((SV + 64, 2, 4))
        streams = []
        for R0, cnt, q in groups:
            for e in range(4):
                v = R0 + e; t = 104 + 4 * (q % 3) + e; sq = []
                for j in range(1, cnt): sq.append(f'v_add_f32 v{v}, v{v}, v{R0+4*j+e}')
                if q == 4: sq.append(f'v_add_f32_dpp v{v}, v{v}, v{v} row_ror:8 row_mask:0xf bank_mask:0xf')
                for sw in ('16', '32'):
                    sq.append(f'v_mov_b32 v{t}, v{v}')
                    sq.append(f'v_permlane{sw}_swap_b32 v{v}, v{t}')
                    sq.append(f'v_add_f32 v{v}, v{v}, v{t}')
                streams.append(sq)
        for x in interleave(streams): a(x)
        a(f's_mov_b32 s{T0}, 0x3a800000')
        streams = []
        for R0, cnt, q in groups:
            for rr in range(2):
                m, e2 = R0 + 2 * rr, R0 + 2 * rr + 1
                streams.append([f'v_mul_f32 v{m}, s{T0}, v{m}',
                                f'v_mul_f32 v{e2}, s{T0}, v{e2}',
                                f'v_fma_f32 v{e2}, -v{m}, v{m}, v{e2}',
                                f'v_max_f32 v{e2}, 0, v{e2}',
                                f'v_add_f32 v{e2}, 0x3727c5ac, v{e2}',
                                f'v_rsq_f32 v{e2}, v{e2}',
                                f'v_sub_f32 v{m}, 0, v{m}'])
        for x in interleave(streams): a(x)
        for R0, cnt, q in groups:
            a(f'v_mov_b32 v20, v{R0+1}'); a(f'v_mov_b32 v{R0+1}, v{R0+2}'); a(f'v_mov_b32 v{R0+2}, v20')
        a(f'v_lshlrev_b32 v20, 3, v13')
        a(f'v_add_u32 v20, {NM0}, v20')
        a(f'v_lshlrev_b32 v21, 3, v11')
        a(f'v_add_u32 v21, {NM0 + 512}, v21')
        for R0, cnt, q in groups:
            va = 20 if q < 4 else 21; off = 128 * q if q < 4 else 0
            a(f'ds_write_b64 v{va}, v[{R0}:{R0+1}] offset:{off}')
            a(f'ds_write_b64 v{va}, v[{R0+2}:{R0+3}] offset:{off + 1024}')
        a('s_waitcnt lgkmcnt(0)')
    xg1 = OPT.get('xg1', 4); xg2 = OPT.get('xg2', 10)
    def xpoll_addr():
        a(f's_lshl_b32 s{T0}, s{S_RBA}, 9'); a(f's_add_u32 s{T0}, s{T0}, {FX_OFF}')
        a(f's_sub_u32 s{T3}, s{S_RBA}, 1'); a(f's_max_i32 s{T3}, s{T3}, 0')
        a(f's_lshl_b32 s{T1}, s{T3}, 9'); a(f's_add_u32 s{T1}, s{T1}, {FX_OFF}')
    PV = 22
    def xpoll_issue():
        xpoll_addr(); poll_issue(a, [(vPoll, T0), (vPoll, T1)], PV); vm.add('P', 2)
    def xcheck(gs):
        vm.wait(a, 'P')
        ok = a.uniq('x_ok')
        set_mask(a, lane_mask(gs))
        poll_test(a, S_TAG, 2, PV, True)
        a(f's_cbranch_scc1 {ok}')
        xpoll_addr()
        poll(a, S_TAG, [(vPoll, T0), (vPoll, T1)], PV, 0x102, lane_mask(gs))
        a.label(ok)
    def split(lst, counts):
        out = []; i = 0
        for n in counts:
            out.append(lst[i:i+n]); i += n
        assert i >= len(lst), (i, len(lst))
        return out
    marks = so or sx
    def stages(L):
        work = {k: [] for k in range(17)}; pre = {k: [] for k in range(17)}
        cl = clear_list(L)
        if L == 0:
            sch = OPT.get('l0sch', {})
            for u in range(3):
                work[2 * u].append(lambda u=u: rp_dot(u))
                work[2 * u + 1].append(lambda u=u: rp_red(0, u))
            work[sch.get('woa', 0)].append(lambda: wo_issue(0))
            work[sch.get('woas', 5)].append(lambda: wo_store(0))
            ks = sch.get('clk', (1, 2, 3, 4, 6)); cn = sch.get('cln', (4, 6, 6, 6, 10))
            work[6].append(xpoll_issue)
            for k, part in zip(ks, split(cl, cn)): work[k].append(lambda part=part: clear_some(part))
            def flag1():
                vm.wait_any(a, ('CS2', 'WOS')); cs_flag(1)
            work[7].append(flag1)
            work[8].append(lambda: xcheck(order))
            work[8].append(lambda: stats_issue(0))
            work[9].append(cs_poll_issue)
            work[9].append(lambda: stats_issue(1))
            if marks: work[9].insert(0, clear_flag)
            work[10].append(lambda: stats_process(0))
            work[11].append(lambda: stats_process(1))
            work[11].append(lambda: cs_check(1, 0x300))
            work[11].append(lambda: cs_loads(0, 16))
            work[13].append(cs_process)
            kb = sch.get('cb', (12, 13, 14))
            for u in range(3): work[kb[u]].append(lambda u=u: rp_issue(1, u))
            work[15].append(lambda: wo_issue(1))
            if marks: work[14].append(clear_poll_issue)
        else:
            dist = OPT.get('pidist', 1 if sx else 2)
            work[xg1 - 2 - dist].append(xpoll_issue); pre[xg1 - 2].append(lambda: xcheck(order[:xg2]))
            work[xg2 - 2 - 2].append(xpoll_issue); pre[xg2 - 2].append(lambda: xcheck(order))
            parts = split(cl, (4, 4, 6, 5, 5, 4, 4))
            for k in range(7): work[k].append(lambda part=parts[k]: clear_some(part))
            if marks: work[8].append(clear_flag)
            ss = OPT.get('s_stats', 9)
            work[ss].append(lambda: stats_issue(0)); work[ss + 1].append(lambda: stats_issue(1))
            work[12].append(lambda: stats_process(0)); work[13].append(lambda: stats_process(1))
            if L == 1:
                work[0].insert(0, lambda: cs_loads(0, 16)); work[2].insert(0, cs_process)
                for u in range(3):
                    work[3 + u].append(lambda u=u: rp_issue(0, u))
                    work[6 + u].append(lambda u=u: rp_store(0, u))
                def flag3():
                    vm.wait(a, 'RP2'); cs_flag(3)
                work[11].append(flag3)
            if marks: work[14].append(clear_poll_issue)
        if marks: work[0].insert(0, lambda: clear_bases(L))
        for k in range(17):
            for f in pre[k]: f()
            if k and k < 16: l0st(a, L == OPT.get('l0st'), k - 1, vm, static=True)
            a('s_barrier')
            for f in work[k]: f()
    def tail(L):
        ST.put(a, 2)
        if L == 0:
            rp_dot(0); rp_red(1, 0)
        a('s_barrier')
        if L == 0:
            rp_store(1, 0)
            rp_dot(1); rp_red(1, 1); rp_store(1, 1)
        if marks: clear_check()
        ST.put(a, 5)
        a('s_barrier')
        if L == 0:
            rp_dot(2); rp_red(1, 2); rp_store(1, 2)
            wo_store(1)
        if L == 1: cs_poll_issue()
        if not so: a('s_barrier')
        if L == 0:
            a('s_waitcnt vmcnt(0)'); vm.clear()
            cs_flag(2)
        if not so: a('s_barrier')
        if L == 3:
            if not sx: a('s_barrier')
            return
        a(f's_add_u32 s{S_L}, s{S_L}, 1')
        if L == 0:
            a(f's_add_u32 s{T1}, s{S_NONCE}, 2')
            cs_poll_off()
            poll(a, T1, [(vPoll, T0)], vX, 0x301, csmask)
        if L == 1: cs_check(3, 0x302)
        a(f's_add_u32 s{S_TAG}, s{S_TAG}, 1')
        a('s_barrier')
        ST.put(a, 0)
        a('s_barrier')
    for L in range(4):
        stages(L)
        tail(L)
    ST.cyc(a, 61)
    ST.flush(a)
    l0st_flush(a)
    a('s_endpgm')

def build(opts):
    OPT.clear(); OPT.update(opts)
    set_lds_map(OPT.get('nw', 4))
    a = Asm()
    kname = NAME + '_kernel'
    a.raw(f'.globl {kname}')
    a.raw('.p2align 8')
    a.raw(f'.type {kname},@function')
    a.label(kname)
    a('s_cmp_ge_u32 s2, 256')
    a('s_cbranch_scc1 k_done')
    a(f's_load_dwordx2 s[{S_AX}:{S_AX+1}], s[0:1], {K_AX}')
    a(f's_load_dwordx2 s[{P_AWQ}:{P_AWQ+1}], s[0:1], {K_AWQKV}')
    a(f's_load_dwordx2 s[{P_AWO}:{P_AWO+1}], s[0:1], {K_AWO}')
    a(f's_load_dwordx2 s[{P_BWQ}:{P_BWQ+1}], s[0:1], {K_BWQKV}')
    a(f's_load_dwordx2 s[{P_BWO}:{P_BWO+1}], s[0:1], {K_BWO}')
    a(f's_load_dwordx2 s[{S_OUT}:{S_OUT+1}], s[0:1], {K_OUT}')
    a(f's_load_dwordx2 s[{S_DBG}:{S_DBG+1}], s[0:1], {K_DBG}')
    a(f's_load_dwordx2 s[{S_WS}:{S_WS+1}], s[0:1], {K_WS}')
    if OPT.get('stamps'):
        a(f'v_mov_b32 v{V_ST}, 0')
    a(f's_and_b32 s{T0}, s2, 7')
    a(f's_lshr_b32 s{T1}, s2, 3')
    if OPT.get('map', 'same') == 'old':
        a(f's_and_b32 s{S_RBA}, s{T0}, 1'); a(f's_lshl_b32 s{S_RBA}, s{S_RBA}, 3')
        a(f's_and_b32 s{T2}, s{T1}, 7'); a(f's_add_u32 s{S_RBA}, s{S_RBA}, s{T2}')
        a(f's_lshr_b32 s{S_GA}, s{T0}, 1'); a(f's_lshl_b32 s{S_GA}, s{S_GA}, 2')
        a(f's_lshr_b32 s{T2}, s{T1}, 3'); a(f's_add_u32 s{S_GA}, s{S_GA}, s{T2}')
    else:
        a(f's_and_b32 s{S_RBA}, s{T0}, 3'); a(f's_lshl_b32 s{S_RBA}, s{S_RBA}, 2')
        a(f's_and_b32 s{T2}, s{T1}, 3'); a(f's_add_u32 s{S_RBA}, s{S_RBA}, s{T2}')
        a(f's_lshr_b32 s{S_GA}, s{T0}, 2'); a(f's_lshl_b32 s{S_GA}, s{S_GA}, 3')
        a(f's_lshr_b32 s{T2}, s{T1}, 2'); a(f's_add_u32 s{S_GA}, s{S_GA}, s{T2}')
    a(f's_and_b32 s{S_RBB}, s{T0}, 3'); a(f's_lshl_b32 s{S_RBB}, s{S_RBB}, 2')
    a(f's_and_b32 s{T2}, s{T1}, 3'); a(f's_add_u32 s{S_RBB}, s{S_RBB}, s{T2}')
    a(f's_lshr_b32 s{S_GB}, s{T0}, 2'); a(f's_lshl_b32 s{S_GB}, s{S_GB}, 3')
    a(f's_lshr_b32 s{T2}, s{T1}, 2'); a(f's_add_u32 s{S_GB}, s{S_GB}, s{T2}')
    a('v_lshrrev_b32 v1, 6, v0')
    a(f'v_readfirstlane_b32 s{S_WAVE}, v1')
    a(f's_lshr_b32 s{S_H}, s{S_WAVE}, 1')
    a(f's_and_b32 s{S_H}, s{S_H}, 1')
    a(f's_mov_b32 s{S_L}, 0')
    a('s_waitcnt lgkmcnt(0)')
    make_srd(a, S_WS, 256 * MB if OPT.get('stamps') else WS_USED)
    make_srd(a, S_AX, 4 * MB); make_srd(a, S_OUT, 4 * MB); make_srd(a, S_DBG, 256)
    for p in (P_AWQ, P_BWQ, P_AWO, P_BWO): a(f's_and_b32 s{p+1}, s{p+1}, 0xffff')
    a(f's_mov_b32 s{S_WQ+2}, {1024 * 6144}'); a(f's_mov_b32 s{S_WQ+3}, {SRD3}')
    a(f's_mov_b32 s{S_WO+2}, {1024 * 2048}'); a(f's_mov_b32 s{S_WO+3}, {SRD3}')
    set_layer_srds(a)
    ST.put(a, 0, False); ST.cyc(a, 60)
    a(f's_mov_b32 s{T0}, {E_OFF}')
    a(f's_load_dword s{S_NONCE}, s[{S_WS}:{S_WS+1}], s{T0}')
    for w in range(4, 8):
        a(f's_cmp_eq_u32 s{S_WAVE}, {w}'); a(f's_cbranch_scc1 prod_w{w-4}')
    c = consumer_regs()
    if OPT.get('prio'): a(f's_setprio {OPT["prio"]}')
    if OPT.get('stamps'): a(f's_mov_b32 s{S_NFIX}, 0')
    consumer_prologue(a, c)
    a(f's_bitcmp1_b32 s{S_WAVE}, 0')
    a('s_cbranch_scc1 a_cons_p1')
    a_consumer(a, c, 0)
    a_consumer(a, c, 1)
    b_consumer(a, c)
    for p in range(3): loader(a, p)
    service(a)
    a.label('k_done')
    a('s_endpgm')
    n = a.pad_hazards()
    hdr = open(f'cdna_kernels/{NAME}.s.ref').read().split('\n')
    lines = [l for l in hdr if l.startswith(';') and '@launch' not in l and 'Override launch' not in l and 'grid=ceil' not in l]
    lines = lines[:11]
    lines.append(f'; @launch grid=(256,1,1) block=(512,1,1) lds={LDS_SIZE}')
    out = '\n'.join(lines) + '\n.amdgcn_target "amdgcn-amd-amdhsa--gfx950"\n.text\n' + a.text()
    out += f'''.section .rodata,"a"
.p2align 6
.amdhsa_kernel {kname}
  .amdhsa_next_free_vgpr 256
  .amdhsa_next_free_sgpr 102
  .amdhsa_accum_offset 256
  .amdhsa_group_segment_fixed_size 0
  .amdhsa_kernarg_size 72
  .amdhsa_float_denorm_mode_32 3
  .amdhsa_user_sgpr_count 2
  .amdhsa_user_sgpr_kernarg_segment_ptr 1
  .amdhsa_system_sgpr_workgroup_id_x 1
.end_amdhsa_kernel
'''
    return out, n, c.top

if __name__ == '__main__':
    opts = {}
    for kv in sys.argv[2:]:
        k, v = kv.split('='); opts[k] = eval(v)
    out, n, top = build(opts)
    open(sys.argv[1], 'w').write(out)
    print('written', sys.argv[1], 'nops inserted:', n, 'bytes', len(out), 'consumer vgpr top', top)
```

```python
import sys
sys.path.insert(0, 'work')
from asmlib import Asm

NAME = 'interleave_layers__sliding_local_dilated__sliding_local_dilated__prompt'
MB = 1 << 20
K_AX, K_AWQKV, K_AWO, K_BX, K_BWQKV, K_BWO, K_OUT, K_DBG, K_WS = 0, 8, 16, 24, 32, 40, 48, 56, 64
SRD3 = 0x00020000
X_OFF, O_OFF, LSTRIDE = 0, 16 * MB, 4 * MB
S_OFF, S_LSTRIDE = 32 * MB, 256 * 1024
CSP_OFF = 33 * MB
FX_OFF = 34 * MB
FO_OFF = FX_OFF + 8192
FC_OFF = FX_OFF + 16384
E_OFF = FX_OFF + 32768
WP_OFF = 40 * MB
WOP_OFF = 52 * MB
FL_OFF = FX_OFF + 24576
WS_USED = 56 * MB
ST_OFF = 200 * MB
A_SLOT, W_SLOT = 18432, 24576
W0 = 3 * A_SLOT
NW = 3
def set_lds_map(nw):
    global NW, HALO0, NM0, RS0, CS0, NONCE0, LDS_SIZE
    NW = nw
    HALO0 = max(131072, W0 + nw * W_SLOT)
    NM0 = HALO0 + 4096
    RS0 = NM0 + 1024
    CS0 = RS0 + 1024
    NONCE0 = CS0 + 2048
    LDS_SIZE = NONCE0 + 256
set_lds_map(3)
S_WS, S_WQ, S_WO, S_AX, S_OUT, S_DBG = 4, 8, 12, 16, 20, 24
P_AWQ, P_BWQ, P_AWO, P_BWO = 28, 30, 32, 34
S_RBA, S_GA, S_RBB, S_GB, S_WAVE, S_H, S_L, S_NONCE, S_TAG = 36, 37, 38, 39, 40, 41, 42, 43, 44
T0, T1, T2, T3, T4, T5 = 45, 46, 47, 48, 49, 50
S_TMP = 51
S_C0 = 52
S_SLOTA, S_SLOTW, S_CNT, S_KA, S_KW, S_SPIN = 58, 59, 60, 61, 62, 63
S_SEL, S_VAL, S_VAL0 = 64, 72, 80
S_M1, S_M2, S_M3, S_DIAG = 88, 90, 92, 94
S_PB = 64
S_TB, S_HB, S_SB, S_SH = 70, 71, 72, 73
S_FLAGAT = 53 + 2
S_ST = 96
SPIN_MAX = 20000

OPT = {}

class Regs:
    def __init__(self, start, limit): self.n = start; self.limit = limit
    def get(self, k=1, align=1):
        self.n = (self.n + align - 1) // align * align
        r = self.n; self.n += k
        assert self.n <= self.limit, 'out of registers'
        return r

def cvt(dst, s0, s1): return f'v_cvt_pk_bf16_f32 v{dst}, v{s0}, v{s1}'
def mfma(d, A, B, c=None):
    cs = '0' if c is None else f'v[{c}:{c+3}]'
    return f'v_mfma_f32_16x16x32_bf16 v[{d}:{d+3}], v[{A}:{A+3}], v[{B}:{B+3}], {cs}'
def srd(r): return f's[{r}:{r+3}]'

def interleave(lists):
    out = []
    n = max(len(x) for x in lists)
    for i in range(n):
        for x in lists:
            if i < len(x): out.append(x[i])
    return out

def make_srd(a, r, size):
    a(f's_and_b32 s{r+1}, s{r+1}, 0xffff')
    a(f's_mov_b32 s{r+2}, {size}')
    a(f's_mov_b32 s{r+3}, {SRD3}')

V_ST = 8
class Stamps:
    n_per_layer = 12
    def put(self, a, idx, per_layer=True):
        if not OPT.get('stamps'): return
        a(f's_memrealtime s[{S_ST}:{S_ST+1}]')
        a('s_waitcnt lgkmcnt(0)')
        if per_layer:
            a(f's_mul_i32 s{S_ST+1}, s{S_L}, {self.n_per_layer}')
            a(f's_add_u32 s{S_ST+1}, s{S_ST+1}, {idx + 4}')
            a(f's_mov_b32 m0, s{S_ST+1}')
            a(f'v_writelane_b32 v{V_ST}, s{S_ST}, m0')
        else:
            a(f'v_writelane_b32 v{V_ST}, s{S_ST}, {idx}')
    def cycl(self, a, idx):
        if not OPT.get('stamps'): return
        a(f's_memtime s[{S_ST}:{S_ST+1}]')
        a('s_waitcnt lgkmcnt(0)')
        a(f's_mul_i32 s{S_ST+1}, s{S_L}, {self.n_per_layer}')
        a(f's_add_u32 s{S_ST+1}, s{S_ST+1}, {idx + 4}')
        a(f's_mov_b32 m0, s{S_ST+1}')
        a(f'v_writelane_b32 v{V_ST}, s{S_ST}, m0')
    def cyc(self, a, idx):
        if not OPT.get('stamps'): return
        a(f's_memtime s[{S_ST}:{S_ST+1}]')
        a('s_waitcnt lgkmcnt(0)')
        a(f'v_writelane_b32 v{V_ST}, s{S_ST}, {idx}')
    def flush(self, a):
        if not OPT.get('stamps'): return
        a(f's_lshl_b32 s{T0}, s2, 3')
        a(f's_add_u32 s{T0}, s{T0}, s{S_WAVE}')
        a(f's_lshl_b32 s{T0}, s{T0}, 8')
        a(f's_add_u32 s{T0}, s{T0}, {ST_OFF}')
        a('v_and_b32 v1, 63, v0')
        a('v_lshlrev_b32 v1, 2, v1')
        a(f'buffer_store_dword v{V_ST}, v1, {srd(S_WS)}, s{T0} offen')
        a('s_waitcnt vmcnt(0)')
ST = Stamps()

S_MK = 98
def lane_mask(gs, lines=(0, 1, 2, 3)):
    return sum(1 << (16 * w + g) for w in lines for g in gs)
def set_mask(a, m):
    a(f's_mov_b32 s{S_MK}, {m & 0xffffffff}'); a(f's_mov_b32 s{S_MK+1}, {m >> 32}')
def poll_issue(a, loads, vt):
    for n, (va, so) in enumerate(loads):
        a(f'buffer_load_dword v{vt+n}, v{va}, {srd(S_WS)}, s{so} offen sc1')
def poll_test(a, tag, nloads, vt, masked):
    for n in range(nloads):
        a(f'v_subrev_u32 v{vt+n}, s{tag}, v{vt+n}')
    if nloads == 2:
        a(f'v_max_u32 v{vt}, v{vt}, v{vt+1}')
    a(f'v_cmp_gt_u32 vcc, 8, v{vt}')
    if masked:
        a(f's_and_b64 s[{S_MK+2}:{S_MK+3}], vcc, s[{S_MK}:{S_MK+1}]')
        a(f's_cmp_eq_u64 s[{S_MK+2}:{S_MK+3}], s[{S_MK}:{S_MK+1}]')
    else:
        a('s_cmp_eq_u64 vcc, -1')
def poll(a, tag, loads, vt, code, mask=None):
    lp = a.uniq('poll'); dn = a.uniq('polled')
    if mask is not None: set_mask(a, mask)
    a(f's_mov_b32 s{S_SPIN}, 0')
    a.label(lp)
    poll_issue(a, loads, vt)
    a('s_waitcnt vmcnt(0)')
    poll_test(a, tag, len(loads), vt, mask is not None)
    a(f's_cbranch_scc1 {dn}')
    a(f's_add_u32 s{S_SPIN}, s{S_SPIN}, 1')
    a(f's_cmp_lt_u32 s{S_SPIN}, {SPIN_MAX}')
    a(f's_cbranch_scc1 {lp}')
    a(f'v_mov_b32 v{vt}, {code}')
    a(f's_mov_b32 s{S_SPIN}, 16')
    a(f'buffer_store_dword v{vt}, off, {srd(S_DBG)}, s{S_SPIN}')
    a.label(dn)

def order_b():
    late = OPT.get('late', [3, 11])
    o = [(4 + n) % 16 for n in range(16)]
    return [g for g in o if g not in late] + list(late)
def order_a():
    return OPT.get('order_a', [4, 5, 6, 7, 12, 13, 14, 15, 0, 8, 1, 9, 2, 10, 3, 11])
def set_ga(a):
    if OPT.get('rot', False):
        a(f's_add_u32 s{S_GA}, s{S_GB}, s{S_L}'); a(f's_and_b32 s{S_GA}, s{S_GA}, 7')
        a(f's_and_b32 s{T4}, s{S_GB}, 8'); a(f's_or_b32 s{S_GA}, s{S_GA}, s{T4}')

def flag_store(a, soff, tag, vt):
    a(f'v_mov_b32 v{vt}, s{tag}')
    a('s_mov_b64 exec, 1')
    a(f'buffer_store_dword v{vt}, off, {srd(S_WS)}, s{soff} sc1')
    a('s_mov_b64 exec, -1')

def set_layer_srds(a):
    a(f's_bitcmp1_b32 s{S_L}, 0')
    a(f's_cselect_b32 s{S_WQ}, s{P_BWQ}, s{P_AWQ}')
    a(f's_cselect_b32 s{S_WQ+1}, s{P_BWQ+1}, s{P_AWQ+1}')
    a(f's_cselect_b32 s{S_WO}, s{P_BWO}, s{P_AWO}')
    a(f's_cselect_b32 s{S_WO+1}, s{P_BWO+1}, s{P_AWO+1}')

class C: pass
def consumer_regs():
    c = C()
    R = Regs(10, 256)
    c.acc = {}
    for u in range(3):
        for f in range(2):
            for t in range(4): c.acc[u, f, t] = R.get(4, 4)
    c.accH = [R.get(4, 4), R.get(4, 4)]
    c.buf = []
    for b in range(2):
        d = {}
        for u in range(3):
            for f in range(2): d['w', u, f] = R.get(4, 4)
        for t in range(5): d['t', t] = R.get(4, 4)
        c.buf.append(d)
    c.buf0 = c.buf[0]['w', 0, 0]; c.buf1 = c.buf[1]['w', 0, 0]
    c.xr = {(tt, P): R.get(4, 4) for tt in range(2) for P in range(2)}
    c.M1 = [R.get(), R.get()]
    c.vXrow = R.get(); c.vFrag = R.get(); c.vStat = R.get()
    c.vWB = [R.get() for _ in range(4)]
    c.vWBh = [R.get() for _ in range(4)]
    c.vI = R.get()
    c.Vp = [R.get(10, 2), R.get(10, 2)]
    c.vA, c.vW0, c.vW1, c.vAb, c.vW0b, c.vW1b, c.tmp, c.lane = 1, 2, 3, 4, 5, 6, 7, 9
    c.vA0b, c.vA1b, c.vA1 = 10, 11, 254
    assert R.n <= 254
    c.top = R.n
    return c

def stats_and_store(a, c, store_x=True, b3=False):
    tb = c.buf0
    ones = tb; D = [tb + 4, tb + 8, tb + 12, tb + 16]
    for j in range(4): a(f'v_mov_b32 v{ones+j}, 0x3f803f80')
    if store_x:
        for tt in range(2):
            for P in range(2):
                r = c.xr[tt, P]
                a(f'buffer_store_dwordx4 v[{r}:{r+3}], v{c.vFrag}, {srd(S_WS)}, s{T0} offen offset:{2048*tt + 1024*P} sc1')
    if b3: a('s_barrier')
    for P in range(2):
        for tt in range(2):
            r = c.xr[tt, P]
            a(mfma(D[2*tt], ones, r, None if P == 0 else D[2*tt]))
            a(mfma(D[2*tt+1], r, r, None if P == 0 else D[2*tt+1]))
    for tt in range(2):
        s, g = D[2*tt], D[2*tt+1]
        a(f'v_cndmask_b32 v{s+1}, v{g}, v{g+1}, s[{S_M1}:{S_M1+1}]')
        a(f'v_cndmask_b32 v{s+1}, v{s+1}, v{g+2}, s[{S_M2}:{S_M2+1}]')
        a(f'v_cndmask_b32 v{s+1}, v{s+1}, v{g+3}, s[{S_M3}:{S_M3+1}]')
    a(f's_mov_b64 exec, s[{S_DIAG}:{S_DIAG+1}]')
    for tt in range(2):
        s = D[2*tt]
        a(f'buffer_store_dwordx2 v[{s}:{s+1}], v{c.vStat}, {srd(S_WS)}, s{T2} offen offset:{128*tt} sc1')
    a('s_mov_b64 exec, -1')

def swap_xr(a, c):
    for tt in range(2):
        for P in range(2):
            r = c.xr[tt, P]
            a(f'v_permlane16_swap_b32 v{r}, v{r+2}')
            a(f'v_permlane16_swap_b32 v{r+1}, v{r+3}')

def x_dst_offsets(a, Lreg_plus):
    a(f's_add_u32 s{T3}, s{S_L}, {Lreg_plus}')
    a(f's_lshl_b32 s{T0}, s{T3}, 22')
    a(f's_lshl_b32 s{T4}, s{S_RBB}, 18'); a(f's_add_u32 s{T0}, s{T0}, s{T4}')
    a(f's_lshl_b32 s{T4}, s{S_GB}, 14'); a(f's_add_u32 s{T0}, s{T0}, s{T4}')
    a(f's_lshl_b32 s{T4}, s{S_WAVE}, 12'); a(f's_add_u32 s{T0}, s{T0}, s{T4}')
    if X_OFF: a(f's_add_u32 s{T0}, s{T0}, {X_OFF}')
    a(f's_lshl_b32 s{T2}, s{T3}, 18')
    a(f's_lshl_b32 s{T4}, s{S_RBB}, 14'); a(f's_add_u32 s{T2}, s{T2}, s{T4}')
    a(f's_lshl_b32 s{T4}, s{S_GB}, 10'); a(f's_add_u32 s{T2}, s{T2}, s{T4}')
    a(f's_lshl_b32 s{T4}, s{S_WAVE}, 8'); a(f's_add_u32 s{T2}, s{T2}, s{T4}')
    a(f's_add_u32 s{T2}, s{T2}, {S_OFF}')

def xflag_off(a, dst):
    a(f's_lshl_b32 s{dst}, s{S_RBB}, 9')
    a(f's_lshl_b32 s{T4}, s{S_WAVE}, 7'); a(f's_add_u32 s{dst}, s{dst}, s{T4}')
    a(f's_lshl_b32 s{T4}, s{S_GB}, 2'); a(f's_add_u32 s{dst}, s{dst}, s{T4}')
    a(f's_add_u32 s{dst}, s{dst}, {FX_OFF}')

def row_offsets(a):
    a(f's_lshl_b32 s{T0}, s{S_RBB}, 7')
    a(f's_and_b32 s{T4}, s{S_WAVE}, 1'); a(f's_lshl_b32 s{T4}, s{T4}, 6'); a(f's_add_u32 s{T0}, s{T0}, s{T4}')
    a(f's_lshr_b32 s{T4}, s{S_WAVE}, 1'); a(f's_add_u32 s{T0}, s{T0}, s{T4}')
    a(f's_lshl_b32 s{T0}, s{T0}, 11')
    a(f's_lshl_b32 s{T4}, s{S_GB}, 7'); a(f's_add_u32 s{T0}, s{T0}, s{T4}')
    a(f's_add_u32 s{T1}, s{T0}, 65536')

def consumer_prologue(a, c):
    L = c.lane; tA, tB, tC, tD = c.buf0, c.buf0 + 1, c.buf0 + 2, c.buf0 + 3
    a(f'v_and_b32 v{L}, 63, v0')
    a(f'v_and_b32 v{c.vI}, 15, v{L}')
    a(f'v_lshrrev_b32 v{tB}, 4, v{L}')
    a(f'v_and_b32 v{tC}, 1, v{tB}'); a(f'v_lshlrev_b32 v{tC}, 1, v{tC}')
    a(f'v_lshrrev_b32 v{tD}, 1, v{tB}'); a(f'v_add_u32 v{tC}, v{tC}, v{tD}')
    a(f'v_lshlrev_b32 v{c.vXrow}, 4, v{tC}')
    a(f'v_lshl_add_u32 v{c.vXrow}, v{c.vI}, 12, v{c.vXrow}')
    a(f'v_lshlrev_b32 v{c.vFrag}, 8, v{tC}')
    a(f'v_lshl_add_u32 v{c.vFrag}, v{c.vI}, 4, v{c.vFrag}')
    a(f'v_lshlrev_b32 v{c.vStat}, 3, v{c.vI}')
    a(f'v_lshlrev_b32 v{c.vAb}, 4, v{L}')
    row_offsets(a)
    for tt in range(2):
        for P in range(2):
            r = c.xr[tt, P]
            a(f'buffer_load_dwordx4 v[{r}:{r+3}], v{c.vXrow}, {srd(S_AX)}, s{T0 if tt == 0 else T1} offen offset:{64*P}')
    a(f'v_lshrrev_b32 v{tC}, 2, v{c.vI}')
    a(f'v_lshl_add_u32 v{tD}, v{tB}, 3, v{tC}')
    a(f'v_lshlrev_b32 v{c.vW0b}, 7, v{tD}')
    a(f'v_and_b32 v{tD}, 3, v{c.vI}')
    a(f'v_lshl_add_u32 v{c.vW0b}, v{tD}, 3, v{c.vW0b}')
    a(f'v_lshrrev_b32 v{tC}, 1, v{tC}')
    a(f'v_and_b32 v{tD}, 1, v{tB}')
    a(f'v_lshl_add_u32 v{tC}, v{tD}, 1, v{tC}')
    for f in range(4):
        a(f'v_xor_b32 v{tD}, {f}, v{tC}')
        a(f'v_lshl_add_u32 v{c.vWB[f]}, v{tD}, 5, v{c.vW0b}')
        a(f'v_add_u32 v{c.vWBh[f]}, 0x10000, v{c.vWB[f]}')
    a(f's_lshl_b32 s{T0}, s{S_H}, 1')
    a(f'v_xor_b32 v{tC}, s{T0}, v{tC}')
    a(f'v_xor_b32 v{tD}, 1, v{tC}')
    a(f'v_lshl_add_u32 v{c.vW1b}, v{tD}, 5, v{c.vW0b}')
    a(f'v_lshl_add_u32 v{c.vW0b}, v{tC}, 5, v{c.vW0b}')
    vK, tmpv = tA, tD
    a(f'v_lshlrev_b32 v{vK}, 2, v{tB}')
    for r in range(4):
        sel = S_SEL + 2*r; val = S_VAL + 2*r; val0 = S_VAL0 + 2*r
        a(f'v_add_u32 v{tmpv}, {r}, v{vK}')
        a(f'v_cmp_le_u32 s[{sel}:{sel+1}], v{tmpv}, v{c.vI}')
        a(f'v_sub_u32 v{tmpv}, v{c.vI}, v{tmpv}')
        a(f'v_and_b32 v{tmpv}, 15, v{tmpv}')
        a(f'v_cmp_gt_u32 s[{val}:{val+1}], 8, v{tmpv}')
        a(f's_and_b64 s[{val0}:{val0+1}], s[{val}:{val+1}], s[{sel}:{sel+1}]')
        a(f's_cmp_eq_u32 s{S_RBA}, 0')
        a(f's_cselect_b64 s[{val0}:{val0+1}], s[{val0}:{val0+1}], s[{val}:{val+1}]')
    a(f'v_mov_b32 v{tC}, 0xffff'); a(f'v_mov_b32 v{tA}, 0xffff0000')
    for j in range(2):
        s0 = S_SEL + 4*j; s1 = s0 + 2
        a(f'v_cndmask_b32 v{c.M1[j]}, 0, v{tC}, s[{s0}:{s0+1}]')
        a(f'v_cndmask_b32 v{tmpv}, 0, v{tA}, s[{s1}:{s1+1}]')
        a(f'v_or_b32 v{c.M1[j]}, v{c.M1[j]}, v{tmpv}')
    a(f'v_and_b32 v{tC}, 3, v{c.vI}')
    a(f'v_cmp_eq_u32 s[{S_M1}:{S_M1+1}], 1, v{tC}')
    a(f'v_cmp_eq_u32 s[{S_M2}:{S_M2+1}], 2, v{tC}')
    a(f'v_cmp_eq_u32 s[{S_M3}:{S_M3+1}], 3, v{tC}')
    a(f'v_lshrrev_b32 v{tC}, 2, v{c.vI}')
    a(f'v_cmp_eq_u32 s[{S_DIAG}:{S_DIAG+1}], v{tC}, v{tB}')
    a(f's_mov_b32 s{S_C0+2}, 0x3e8293ee')
    a(f's_mov_b32 s{S_C0+1}, 0xffff0000')
    a(f'v_lshrrev_b32 v{tC}, 1, v{c.vI}')
    a(f'v_xor_b32 v{tC}, v{tC}, v{tB}')
    a(f'v_lshlrev_b32 v{tC}, 4, v{tC}')
    a(f'v_lshl_add_u32 v{c.vA0b}, v{c.vI}, 7, v{tC}')
    a(f'v_xor_b32 v{c.vA1b}, 64, v{c.vA0b}')
    x_dst_offsets(a, 0)
    xflag_off(a, T5)
    a(f's_mov_b32 s{S_FLAGAT}, 2')
    a('s_waitcnt vmcnt(0)')
    ST.put(a, 1, False)
    stats_and_store(a, c, store_x=False)
    swap_xr(a, c)
    a('s_waitcnt lgkmcnt(0)')
    a(f's_add_u32 s{S_NONCE}, s{S_NONCE}, 256')
    a(f's_add_u32 s{S_TAG}, s{S_NONCE}, 1')
    ST.put(a, 2, False)

def x_poll_offs(a):
    a(f's_lshl_b32 s{T0}, s{S_RBA}, 9'); a(f's_add_u32 s{T0}, s{T0}, {FX_OFF}')
    a(f's_sub_u32 s{T3}, s{S_RBA}, 1'); a(f's_max_i32 s{T3}, s{T3}, 0')
    a(f's_lshl_b32 s{T1}, s{T3}, 9'); a(f's_add_u32 s{T1}, s{T1}, {FX_OFF}')
def o_poll_offs(a):
    a(f's_lshl_b32 s{T0}, s{S_RBB}, 9'); a(f's_add_u32 s{T0}, s{T0}, {FO_OFF}')
def pre_poll(a, c, kind):
    sk = a.uniq('prepoll_skip'); pv = c.buf1
    a(f's_cmp_lg_u32 s{S_WAVE}, 0')
    a(f's_cbranch_scc1 {sk}')
    a(f'v_lshrrev_b32 v{pv}, 4, v{c.lane}')
    a(f'v_lshlrev_b32 v{pv}, 7, v{pv}')
    a(f'v_lshl_add_u32 v{pv}, v{c.vI}, 2, v{pv}')
    if kind == 'x':
        x_poll_offs(a); poll_issue(a, [(pv, T0), (pv, T1)], pv + 1)
    else:
        o_poll_offs(a); poll_issue(a, [(pv, T0)], pv + 1)
    a.label(sk)
def finish_poll(a, c, kind, mask, code):
    sk = a.uniq('poll_skip'); pv = c.buf1
    a(f's_cmp_lg_u32 s{S_WAVE}, 0')
    a(f's_cbranch_scc1 {sk}')
    n = 2 if kind == 'x' else 1
    if OPT.get('prepoll'):
        set_mask(a, mask)
        poll_test(a, S_TAG, n, pv + 1, True)
        a(f's_cbranch_scc1 {sk}')
    a(f'v_lshrrev_b32 v{pv}, 4, v{c.lane}')
    a(f'v_lshlrev_b32 v{pv}, 7, v{pv}')
    a(f'v_lshl_add_u32 v{pv}, v{c.vI}, 2, v{pv}')
    if kind == 'x':
        x_poll_offs(a); poll(a, S_TAG, [(pv, T0), (pv, T1)], pv + 1, code, mask)
    else:
        o_poll_offs(a); poll(a, S_TAG, [(pv, T0)], pv + 1, code, mask)
    a.label(sk)

def poll_addr(a, c):
    a(f'v_lshrrev_b32 v{c.buf0}, 4, v{c.lane}')
    a(f'v_lshlrev_b32 v{c.buf0}, 7, v{c.buf0}')
    a(f'v_lshl_add_u32 v{c.buf0}, v{c.vI}, 2, v{c.buf0}')

def a_consumer(a, c, par):
    acc, accH, buf = c.acc, c.accH, c.buf
    vA, vW0, vW1, vA1 = c.vA, c.vW0, c.vW1, c.vA1
    tag = f'p{par}'
    a.label(f'a_cons_{tag}')
    for k, r in list(acc.items()) + [(0, accH[0]), (1, accH[1])]:
        for j in range(0, 4): a(f'v_mov_b32 v{r+j}, 0')
    a(f's_mov_b32 s{S_SLOTA}, 0'); a(f's_mov_b32 s{S_SLOTW}, {W0}')
    a(f'v_mov_b32 v{vA}, v{c.vA0b}')
    a(f'v_mov_b32 v{vA1}, v{c.vA1b}')
    a(f'v_add_u32 v{vW0}, s{S_SLOTW}, v{c.vW0b}')
    a(f'v_add_u32 v{vW1}, s{S_SLOTW}, v{c.vW1b}')
    def reads(b, ks):
        d = buf[b]; out = []
        for u in range(3):
            for f in range(2):
                vW = vW0 if f == 0 else vW1
                for j in range(2):
                    r = d['w', u, f] + 2 * j
                    out.append(f'ds_read_b64_tr_b16 v[{r}:{r+1}], v{vW} offset:{u*8192 + ks*4096 + j*512}')
        for t in range(5):
            tau = par * 4 + t if t < 4 else 8
            r = d['t', t]
            out.append(f'ds_read_b128 v[{r}:{r+3}], v{vA if ks == 0 else vA1} offset:{tau*2048}')
        wq = out[0:4]; wk = out[4:8]; wv = out[8:12]; tt = out[12:17]
        return wq[0:2] + tt[0:4] + wq[2:4] + wk + wv + tt[4:5]
    def mfmas(b, halo_first=False):
        d = buf[b]; out = []; h = []
        for u in range(3):
            for f in range(2):
                for t in range(4):
                    cc = acc[u, f, t]; w = d['w', u, f]; x = d['t', t]
                    A, B = (w, x) if u < 2 else (x, w)
                    out.append(mfma(cc, A, B, cc))
        for f in range(2):
            cc = accH[f]; x = d['t', 4]
            A, B = (d['w', 1, f], x) if par == 0 else (x, d['w', 2, f])
            h.append(mfma(cc, A, B, cc))
        return h + out if halo_first else out + h
    def step(ms, fill, late=()):
        fl = list(fill) + list(late)
        for i, x in enumerate(ms):
            a(x)
            if i < len(fl): a(fl[i])
        for x in fl[len(ms):]: a(x)
    adv = [f's_add_u32 s{S_SLOTA}, s{S_SLOTA}, {A_SLOT}',
           f's_add_u32 s{S_SLOTW}, s{S_SLOTW}, {W_SLOT}',
           f's_cmp_eq_u32 s{S_SLOTA}, {3 * A_SLOT}',
           f's_cselect_b32 s{S_SLOTA}, 0, s{S_SLOTA}'] + ([
           f's_cmp_eq_u32 s{S_SLOTW}, {W0 + NW * W_SLOT}'] if NW != 3 else []) + [
           f's_cselect_b32 s{S_SLOTW}, {W0}, s{S_SLOTW}',
           f'v_add_u32 v{vA}, s{S_SLOTA}, v{c.vA0b}',
           f'v_add_u32 v{vA1}, s{S_SLOTA}, v{c.vA1b}',
           f'v_add_u32 v{vW0}, s{S_SLOTW}, v{c.vW0b}',
           f'v_add_u32 v{vW1}, s{S_SLOTW}, v{c.vW1b}']
    a(f's_mov_b32 s{S_CNT}, 0')
    a(f's_cmp_eq_u32 s{S_L}, 0')
    a(f's_cbranch_scc1 a_first_{tag}')
    if not OPT.get('sx'):
        finish_poll(a, c, 'x', lane_mask(order_a()[:OPT.get('xg1', 4)]), 0x101)
        a('s_barrier')
    a.label(f'a_first_{tag}')
    ST.put(a, 0)
    a('s_barrier')
    ST.put(a, 1); ST.cycl(a, 10)
    for x in reads(0, 0): a(x)
    a('s_waitcnt lgkmcnt(0)')
    lp = f'ac_loop_{tag}'
    a.label(lp)
    step(mfmas(0), reads(1, 1), adv)
    a('s_waitcnt lgkmcnt(0)')
    a('s_barrier')
    step(mfmas(1), reads(0, 0), [f's_cmp_eq_u32 s{S_CNT}, s{S_FLAGAT}', f's_cbranch_scc1 a_flag_{tag}\na_flag_back_{tag}:',
                                 f's_add_u32 s{S_CNT}, s{S_CNT}, 1', f's_cmp_lt_u32 s{S_CNT}, 15'])
    a('s_waitcnt lgkmcnt(0)')
    a(f's_cbranch_scc1 {lp}')
    a(f's_branch a_last_{tag}')
    a.label(f'a_flag_{tag}')
    a('s_waitcnt vmcnt(0)')
    flag_store(a, T5, S_TAG, c.tmp)
    a(f's_branch a_flag_back_{tag}')
    a.label(f'a_last_{tag}')
    step(mfmas(0), reads(1, 1))
    b0 = c.buf0
    colst = [b0 + 2*t for t in range(5)]
    csq = [b0 + 12, b0 + 16]; csk = [b0 + 20, b0 + 24]; csv = b0 + 10
    v4 = {0: (b0 + 28, b0 + 32), 1: (b0 + 36, b0 + 40)}
    b1 = c.buf1
    v4.update({2: (b1, b1 + 4), 3: (b1 + 8, b1 + 12), 4: (b1 + 16, b1 + 20)})
    vS, vS4, vC4, vC = vA, vW0, vW1, c.tmp
    pre = [f's_and_b32 s{T0}, s{S_L}, 1',
           f's_lshl_b32 s{T0}, s{T0}, 10',
           f's_lshl_b32 s{T1}, s{S_H}, 7',
           f's_add_u32 s{T0}, s{T0}, s{T1}',
           f's_add_u32 s{T0}, s{T0}, {CS0}',
           f'v_lshlrev_b32 v{vS}, 2, v{c.vI}',
           f'v_and_b32 v{vS4}, 0x30, v{c.lane}',
           f'v_add_u32 v{vC4}, s{T0}, v{vS4}',
           f'v_add_u32 v{vC}, s{T0}, v{vS}',
           f'v_add_u32 v{vS}, {NM0}, v{vS}',
           f'v_add_u32 v{vS4}, {NM0}, v{vS4}']
    for x in pre: a(x)
    a('s_waitcnt lgkmcnt(0)')
    a('s_barrier')
    def tile_of(t): return par * 4 + t if t < 4 else 8
    rd = []
    htile = 4
    if par == 0:
        rd += [f'ds_read_b32 v{colst[4]}, v{vS} offset:{8*64}', f'ds_read_b32 v{colst[4]+1}, v{vS} offset:{8*64 + 1024}']
    for f in range(2): rd.append(f'ds_read_b128 v[{csk[f]}:{csk[f]+3}], v{vC4} offset:{256 + 64*f}')
    for f in range(2): rd.append(f'ds_read_b32 v{csv+f}, v{vC} offset:{512 + 64*f}')
    v4order = [4, 0, 1, 2, 3] if par == 1 else [0, 1, 2, 3]
    slots = [v4[0], v4[1], v4[2], v4[3], v4[4]]
    v4m = {t: slots[n] for n, t in enumerate(v4order)}
    def v4read(t):
        return [f'ds_read_b128 v[{v4m[t][0]}:{v4m[t][0]+3}], v{vS4} offset:{tile_of(t)*64}',
                f'ds_read_b128 v[{v4m[t][1]}:{v4m[t][1]+3}], v{vS4} offset:{tile_of(t)*64 + 1024}']
    for t in v4order[:2]: rd += v4read(t)
    for t in range(4):
        rd += [f'ds_read_b32 v{colst[t]}, v{vS} offset:{tile_of(t)*64}', f'ds_read_b32 v{colst[t]+1}, v{vS} offset:{tile_of(t)*64 + 1024}']
    for f in range(2): rd.append(f'ds_read_b128 v[{csq[f]}:{csq[f]+3}], v{vC4} offset:{64*f}')
    step(mfmas(1, True), rd)
    for t in v4order[2:4]:
        for x in v4read(t): a(x)
    ST.put(a, 2); ST.cycl(a, 11)
    def fix_col(r, cs, pair, scale):
        o = []
        for j in (0, 2):
            o.append(f'v_pk_fma_f32 v[{r+j}:{r+j+1}], v[{cs+j}:{cs+j+1}], v[{pair}:{pair+1}], v[{r+j}:{r+j+1}] op_sel_hi:[1,0,1]')
        if scale:
            for j in (0, 2):
                o.append(f'v_pk_mul_f32 v[{r+j}:{r+j+1}], v[{r+j}:{r+j+1}], v[{pair}:{pair+1}] op_sel:[0,1] op_sel_hi:[1,1]')
        return o
    def fix_row(r, f, t):
        nm, rs = v4m[t]; o = []
        for j in (0, 2):
            sel = 'op_sel_hi:[1,0,1]' if f == 0 else 'op_sel:[0,1,0] op_sel_hi:[1,1,1]'
            o.append(f'v_pk_fma_f32 v[{r+j}:{r+j+1}], v[{nm+j}:{nm+j+1}], v[{csv}:{csv+1}], v[{r+j}:{r+j+1}] {sel}')
        for j in (0, 2):
            o.append(f'v_pk_mul_f32 v[{r+j}:{r+j+1}], v[{r+j}:{r+j+1}], v[{rs+j}:{rs+j+1}]')
        return o
    a('s_waitcnt lgkmcnt(0)')
    H = accH[0]
    hs = []
    for f in range(2):
        s = fix_col(accH[f], csk[f], colst[4], True) if par == 0 else fix_row(accH[f], f, 4)
        hs.append(s)
    for x in interleave(hs): a(x)
    a(cvt(H, accH[0], accH[0] + 1)); a(cvt(H + 1, accH[0] + 2, accH[0] + 3))
    a(cvt(H + 2, accH[1], accH[1] + 1)); a(cvt(H + 3, accH[1] + 2, accH[1] + 3))
    vH = vA
    a(f'v_lshlrev_b32 v{vH}, 4, v{c.lane}')
    a(f's_lshl_b32 s{T0}, s{S_H}, 11')
    a(f's_add_u32 s{T0}, s{T0}, {HALO0}')
    a(f'v_add_u32 v{vH}, s{T0}, v{vH}')
    a(f'ds_write_b128 v{vH}, v[{H}:{H+3}] offset:{0 if par == 0 else 1024}')
    for t in v4order[4:]:
        for x in v4read(t): a(x)
    Qp = [acc[0, 0, t] for t in range(4)]
    Kp = [accH[1]] + [acc[1, 0, t] for t in range(4)]
    Vp = c.Vp
    streams = []
    for t in range(4):
        s = []
        for f in range(2): s += fix_col(acc[1, f, t], csk[f], colst[t], True)
        q = acc[1, 0, t]; q1 = acc[1, 1, t]
        s += [cvt(q, q, q + 1), cvt(q + 1, q + 2, q + 3), cvt(q + 2, q1, q1 + 1), cvt(q + 3, q1 + 2, q1 + 3)]
        for f in range(2): s += fix_col(acc[0, f, t], csq[f], colst[t], False)
        q = acc[0, 0, t]; q1 = acc[0, 1, t]
        s += [cvt(q, q, q + 1), cvt(q + 1, q + 2, q + 3), cvt(q + 2, q1, q1 + 1), cvt(q + 3, q1 + 2, q1 + 3)]
        s.append(f'v_mul_f32 v{colst[t]+1}, s{S_C0+2}, v{colst[t]+1}')
        streams.append(s)
    for x in interleave(streams): a(x)
    if OPT.get('dump'):
        dk = a.uniq('dump_skip')
        a(f's_cmp_lg_u32 s{S_L}, 0'); a(f's_cbranch_scc1 {dk}')
        a(f's_lshl_b32 s{T0}, s2, 2'); a(f's_add_u32 s{T0}, s{T0}, s{S_WAVE}'); a(f's_mul_i32 s{T0}, s{T0}, 16384'); a(f's_add_u32 s{T0}, s{T0}, {64 * MB}')
        a(f'v_lshlrev_b32 v{vW0}, 2, v{c.lane}')
        regs = [acc[1, 0, t] + j for t in range(4) for j in range(4)] + [acc[0, 0, t] + j for t in range(4) for j in range(4)] + [colst[t] + j for t in range(4) for j in range(2)]
        regs += [acc[2, f, t] + j for f in range(2) for t in range(4) for j in range(4)][:24]
        for n, r in enumerate(regs):
            if n % 16 == 0 and n: a(f's_add_u32 s{T0}, s{T0}, 4096')
            a(f'buffer_store_dword v{r}, v{vW0}, {srd(S_WS)}, s{T0} offen offset:{(n % 16) * 256}')
        a('s_waitcnt vmcnt(0)')
        a.label(dk)
    a('s_waitcnt lgkmcnt(0)')
    a('s_barrier')
    if par == 0:
        a(f'v_xor_b32 v{vW0}, {8*16}, v{vH}')
        a(f'v_xor_b32 v{vW1}, {32*16}, v{vH}')
        vKH, vVH = vW0, vW1
    else:
        vKH = vVH = vH
    a(f'ds_read_b128 v[{Kp[0]}:{Kp[0]+3}], v{vKH}')
    a(f'ds_read_b64 v[{Vp[0]}:{Vp[0]+1}], v{vVH} offset:1024')
    a(f'ds_read_b64 v[{Vp[1]}:{Vp[1]+1}], v{vVH} offset:1032')
    S0 = [acc[0, 1, t] for t in range(4)]; S1 = [acc[1, 1, t] for t in range(4)]
    smm = []
    for t in range(4): smm.append(mfma(S1[t], Kp[t+1], Qp[t]))
    for t in range(1, 4): smm.append(mfma(S0[t], Kp[t], Qp[t]))
    vfix = []
    for t in range(4):
        for f in range(2):
            r = acc[2, f, t]
            vfix.append(fix_row(r, f, t) + [cvt(Vp[f] + 2 + 2*t, r, r + 1), cvt(Vp[f] + 3 + 2*t, r + 2, r + 3)])
    vf = interleave(vfix[0:4]) + interleave(vfix[4:8])
    n = 0
    for x in smm:
        a(x)
        for y in vf[n:n+2]: a(y)
        n += 2
    for y in vf[n:]: a(y)
    a('s_waitcnt lgkmcnt(0)')
    a(mfma(S0[0], Kp[0], Qp[0]))
    vNEG = c.tmp
    a(f'v_mov_b32 v{vNEG}, 0xf149f2ca')
    streams = []
    for t in range(4):
        s = []
        m = S0[t]; tp = acc[1, 0, t]; Pop = acc[2, 0, t]; cq = colst[t] + 1
        Ob = [acc[0, 0, t], S1[t]]
        val = (S_VAL0 if t == 0 else S_VAL)
        for r in range(4):
            s.append(f'v_cndmask_b32 v{m+r}, v{S0[t]+r}, v{S1[t]+r}, s[{S_SEL+2*r}:{S_SEL+2*r+1}]')
        for r in range(4):
            s.append(f'v_cndmask_b32 v{m+r}, v{vNEG}, v{m+r}, s[{val+2*r}:{val+2*r+1}]')
        mx, t2 = tp, tp + 1
        s.append(f'v_max3_f32 v{mx}, v{m}, v{m+1}, v{m+2}')
        s.append(f'v_max_f32 v{mx}, v{mx}, v{m+3}')
        for sw in ('16', '32'):
            s.append(f'v_mov_b32 v{t2}, v{mx}')
            s.append(f'v_permlane{sw}_swap_b32 v{mx}, v{t2}')
            s.append(f'v_max_f32 v{mx}, v{mx}, v{t2}')
        s.append(f'v_mul_f32 v{mx}, v{mx}, v{cq}')
        for r in range(4): s.append(f'v_fma_f32 v{m+r}, v{m+r}, v{cq}, -v{mx}')
        for r in range(4): s.append(f'v_exp_f32 v{m+r}, v{m+r}')
        sm = tp
        s.append(f'v_add_f32 v{sm}, v{m}, v{m+1}')
        s.append(f'v_add_f32 v{t2}, v{m+2}, v{m+3}')
        s.append(f'v_add_f32 v{sm}, v{sm}, v{t2}')
        for sw in ('16', '32'):
            s.append(f'v_mov_b32 v{t2}, v{sm}')
            s.append(f'v_permlane{sw}_swap_b32 v{sm}, v{t2}')
            s.append(f'v_add_f32 v{sm}, v{sm}, v{t2}')
        s.append(f'v_rcp_f32 v{sm}, v{sm}')
        for r in range(4): s.append(f'v_mul_f32 v{m+r}, v{m+r}, v{sm}')
        s.append(cvt(tp + 2, m, m + 1)); s.append(cvt(tp + 3, m + 2, m + 3))
        for j in range(2):
            s.append(f'v_bfi_b32 v{Pop+j}, v{c.M1[j]}, 0, v{tp+2+j}')
            s.append(f'v_and_b32 v{Pop+2+j}, v{c.M1[j]}, v{tp+2+j}')
        for f in range(2):
            s.append(mfma(Ob[f], Vp[f] + 2*t, Pop))
        o = tp
        s.append(cvt(o, Ob[0], Ob[0] + 1)); s.append(cvt(o + 1, Ob[0] + 2, Ob[0] + 3))
        s.append(cvt(o + 2, Ob[1], Ob[1] + 1)); s.append(cvt(o + 3, Ob[1] + 2, Ob[1] + 3))
        s.append(f'v_permlane16_swap_b32 v{o}, v{o+2}')
        s.append(f'v_permlane16_swap_b32 v{o+1}, v{o+3}')
        s.append(f'buffer_store_dwordx4 v[{o}:{o+3}], v{c.vFrag}, {srd(S_WS)}, s{T0 + t} offen sc1')
        streams.append(s)
    a(f's_lshl_b32 s{T0}, s{S_L}, 22')
    a(f's_lshl_b32 s{T4}, s{S_RBA}, 18'); a(f's_add_u32 s{T0}, s{T0}, s{T4}')
    a(f's_lshl_b32 s{T4}, s{S_GA}, 11'); a(f's_add_u32 s{T0}, s{T0}, s{T4}')
    a(f's_lshl_b32 s{T4}, s{S_H}, 10'); a(f's_add_u32 s{T0}, s{T0}, s{T4}')
    a(f's_add_u32 s{T0}, s{T0}, {O_OFF + par * 4 * 32768}')
    for t in range(1, 4): a(f's_add_u32 s{T0+t}, s{T0}, {32768*t}')
    for x in interleave(streams): a(x)
    ST.put(a, 3)
    if not OPT.get('so'):
        a(f's_lshl_b32 s{T5}, s{S_RBA}, 9')
        a(f's_lshl_b32 s{T4}, s{S_WAVE}, 7'); a(f's_add_u32 s{T5}, s{T5}, s{T4}')
        a(f's_lshl_b32 s{T4}, s{S_GA}, 2'); a(f's_add_u32 s{T5}, s{T5}, s{T4}')
        a(f's_add_u32 s{T5}, s{T5}, {FO_OFF}')
        a('s_waitcnt vmcnt(0)')
        flag_store(a, T5, S_TAG, c.tmp)
        ST.put(a, 4)
    a('s_branch b_cons')

DEPTH = 16
S_LINK, S_ANY, S_NFIX = 12, 14, 15
SLOT_S = [28, 29, 30, 31, 32, 33, 34, 35, 8, 9, 10, 11]
def b_consumer(a, c):
    so = OPT.get('so'); sx = OPT.get('sx')
    NR = OPT.get('nr', 9) if so else DEPTH
    R = Regs(10, 204)
    acc = {(f, t): R.get(4, 4) for f in range(4) for t in range(2)}
    wb = [[R.get(4, 4) for f in range(4)] for b in range(2)]
    ring = [[R.get(4, 4) for t in range(2)] for d in range(NR)]
    vW = c.vWB; vWh = c.vWBh
    order = order_b()
    heads = [2 * g + j for g in order for j in range(2)]
    a.label('b_cons')
    for tt in range(2):
        for f in range(4):
            x = c.xr[tt, f >> 1] + 2 * (f & 1); r = acc[f, tt]
            for j in range(2):
                a(f'v_lshlrev_b32 v{r+2*j}, 16, v{x+j}')
                a(f'v_and_b32 v{r+2*j+1}, s{S_C0+1}, v{x+j}')
    a(f's_lshl_b32 s{S_KA}, s{S_L}, 22')
    a(f's_lshl_b32 s{T4}, s{S_RBB}, 18'); a(f's_add_u32 s{S_KA}, s{S_KA}, s{T4}')
    a(f's_lshl_b32 s{T4}, s{S_WAVE}, 16'); a(f's_add_u32 s{S_KA}, s{S_KA}, s{T4}')
    a(f's_add_u32 s{S_KA}, s{S_KA}, {O_OFF}')
    a(f's_add_u32 s{S_KW}, s{S_KA}, 32768')
    if so:
        vAb2 = R.get(); vM = R.get(); vM2 = R.get()
        a(f'v_add_u32 v{vAb2}, 32768, v{c.vAb}')
    def slot_loads(d):
        return [f'buffer_load_dwordx4 v[{ring[d][t]}:{ring[d][t]+3}], v{(c.vAb, vAb2)[t]}, {srd(S_WS)}, s{SLOT_S[d]} offen sc1' for t in range(2)]
    def tok_load(n):
        o = []; hd = heads[n]
        if so:
            return [f's_add_u32 s{SLOT_S[n % NR]}, s{S_KA}, {hd * 1024}'] + slot_loads(n % NR)
        if n % 2 == 0:
            o += [f's_add_u32 s{T0}, s{S_KA}, {(hd >> 2) * 4096}', f's_add_u32 s{T1}, s{S_KW}, {(hd >> 2) * 4096}']
        for t in range(2):
            r = ring[n % NR][t]
            o.append(f'buffer_load_dwordx4 v[{r}:{r+3}], v{c.vAb}, {srd(S_WS)}, s{T0 + t} offen offset:{1024*(hd & 3)} sc1')
        return o
    def mark_test(d, vm_):
        p, q = ring[d]
        if OPT.get('sochk', 'full') == 'one':
            return [f'v_max_u32 v{vm_}, v{p}, v{q}', f'v_cmp_eq_u32 vcc, -1, v{vm_}']
        return [f'v_max3_u32 v{vm_}, v{p}, v{p+1}, v{p+2}', f'v_max3_u32 v{vm_+0}, v{vm_}, v{p+3}, v{q}',
                f'v_max3_u32 v{vm_}, v{vm_}, v{q+1}, v{q+2}', f'v_max_u32 v{vm_}, v{vm_}, v{q+3}',
                f'v_cmp_eq_u32 vcc, -1, v{vm_}']
    stubs = []
    def fix_branch(n):
        stubs.append(n)
        return f's_cbranch_vccnz so_stub_{n}\nso_back_{n}:'
    def wreads(n):
        b = n & 1; out = []; hd = heads[n]
        for f in range(4):
            for j in range(2):
                r = wb[b][f] + 2*j
                out.append(f'ds_read_b64_tr_b16 v[{r}:{r+1}], v{(vW if hd < 16 else vWh)[f]} offset:{(hd % 16)*4096 + j*512}')
        return out
    if so:
        w_ = OPT.get('so_wait', 0)
        if w_ is not None: a(f's_waitcnt vmcnt({w_})')
        ST.put(a, 4)
    else:
        finish_poll(a, c, 'o', lane_mask(order[:DEPTH // 2]), 0x200)
    a('s_barrier')
    ST.put(a, 5)
    D0 = min(NR, OPT.get('d0', 8))
    for n in range(D0):
        for x in tok_load(n): a(x)
    if so:
        for n in range(D0, NR): a(tok_load(n)[0])
    ptr = D0
    for x in wreads(0): a(x)
    nlate = len(OPT.get('late', [3, 11]))
    if so:
        a(f's_waitcnt vmcnt({2 * (D0 - 1)})')
        for x in mark_test(0, vM): a(x)
        a(fix_branch(0))
    for n in range(32):
        b = n & 1
        nxt = wreads(n + 1) if n + 1 < 32 else []
        later = ptr - n - 1
        a(f's_waitcnt lgkmcnt(0)' if so else f's_waitcnt vmcnt({2*later}) lgkmcnt(0)')
        if n == 0: ST.put(a, 6)
        ms = []
        for f in range(4):
            for t in range(2):
                cc = acc[f, t]; w = wb[b][f]; x = ring[n % NR][t]
                ms.append(mfma(cc, w, x, cc))
        new = min(32, n + NR, ptr + OPT.get('brate', 1))
        gaps = [[] for _ in range(8)]
        br = OPT.get('br', (0, 0, 1, 1, 2, 2, 3, 3))
        bl = OPT.get('bl', (3, 4) if so else (4, 6))
        items = []
        for m in range(ptr, new):
            pre = ['s_barrier'] if (not so and (m == DEPTH or m == 32 - 2 * nlate)) else []
            tl = tok_load(m)
            items.append(pre + tl[:-1]); items.append(tl[-1:])
        if len(items) > len(bl): bl = (4, 5, 6, 7, 7, 7, 7, 7)
        for i, x in enumerate(nxt): gaps[br[i]].append(x)
        for k, it in enumerate(items): gaps[bl[k]] += it
        if so and n + 1 < 32:
            mt = mark_test((n + 1) % NR, vM)
            g0 = OPT.get('cg', 5)
            gaps[g0].append(f's_waitcnt vmcnt({2 * (new - n - 2)})')
            if len(mt) == 2:
                gaps[g0].append(mt[0]); gaps[g0 + 1].append(mt[1])
            else:
                gaps[g0] += mt[0:2]; gaps[g0 + 1] += mt[2:5]
            gaps[7].append(fix_branch(n + 1))
        if n == 31 and sx:
            pass
        for i, m in enumerate(ms):
            a(m)
            for x in gaps[i]: a(x)
        ptr = new
    if not sx: a('s_barrier')
    ST.put(a, 7)
    x_dst_offsets(a, 1)
    for tt in range(2):
        for f in range(4):
            x = c.xr[tt, f >> 1] + 2 * (f & 1); r = acc[f, tt]
            a(cvt(x, r, r + 1)); a(cvt(x + 1, r + 2, r + 3))
    swap_xr(a, c)
    a(f's_cmp_eq_u32 s{S_L}, 3')
    a('s_cbranch_scc1 b_final')
    stats_and_store(a, c, b3=sx)
    swap_xr(a, c)
    xflag_off(a, T5)
    a(f's_add_u32 s{S_L}, s{S_L}, 1')
    a(f's_add_u32 s{S_TAG}, s{S_TAG}, 1')
    set_ga(a)
    ST.put(a, 8 - 12)
    a(f's_mov_b32 s{S_FLAGAT}, -1')
    a(f'v_mov_b32 v{c.vA0b}, v{c.vAb}')
    a(f'v_add_u32 v{c.vA1b}, 1024, v{c.vAb}')
    if sx:
        a(f's_waitcnt vmcnt({OPT.get("sx_wait", 2)})')
        a('s_barrier')
    a('s_waitcnt vmcnt(0)')
    flag_store(a, T5, S_TAG, c.tmp)
    ST.put(a, 9 - 12)
    a(f's_bitcmp1_b32 s{S_WAVE}, 0')
    a('s_cbranch_scc1 a_cons_p1')
    a('s_branch a_cons_p0')
    if so:
        for n in stubs:
            a.label(f'so_stub_{n}')
            a(f's_call_b64 s[{S_LINK}:{S_LINK+1}], so_fix')
            a(f's_branch so_back_{n}')
        a.label('so_fix')
        a(f's_mov_b32 s{S_SPIN}, 0')
        if OPT.get('stamps'): a(f's_add_u32 s{S_NFIX}, s{S_NFIX}, 1')
        a.label('so_fix_loop')
        a('s_waitcnt vmcnt(0)')
        a(f's_mov_b32 s{S_ANY}, 0')
        for d in range(NR):
            sk = f'so_fix_ok_{d}'
            for x in mark_test(d, vM2): a(x)
            a(f's_cbranch_vccz {sk}')
            for x in slot_loads(d): a(x)
            a(f's_mov_b32 s{S_ANY}, 1')
            a.label(sk)
        a(f's_cmp_eq_u32 s{S_ANY}, 0')
        a('s_cbranch_scc1 so_fix_done')
        if OPT.get('stamps'): a(f's_add_u32 s{S_NFIX}, s{S_NFIX}, 65536')
        a(f's_add_u32 s{S_SPIN}, s{S_SPIN}, 1')
        a(f's_cmp_lt_u32 s{S_SPIN}, {SPIN_MAX}')
        a('s_cbranch_scc1 so_fix_loop')
        a(f'v_mov_b32 v{vM2}, 0x210')
        a(f's_mov_b32 s{S_SPIN}, 16')
        a(f'buffer_store_dword v{vM2}, off, {srd(S_DBG)}, s{S_SPIN}')
        a('s_waitcnt vmcnt(0)')
        a.label('so_fix_done')
        a('s_nop 4')
        a(f's_setpc_b64 s[{S_LINK}:{S_LINK+1}]')
    a.label('b_final')
    a(f's_or_b32 s{T4}, s2, s{S_WAVE}')
    a(f's_cmp_lg_u32 s{T4}, 0')
    a('s_cbranch_scc1 b_final_rows')
    a(f's_mov_b32 s{T5}, {E_OFF}')
    flag_store(a, T5, S_NONCE, c.tmp)
    a.label('b_final_rows')
    row_offsets(a)
    for tt in range(2):
        for P in range(2):
            r = c.xr[tt, P]
            a(f'buffer_store_dwordx4 v[{r}:{r+3}], v{c.vXrow}, {srd(S_OUT)}, s{T0 if tt == 0 else T1} offen offset:{64*P}')
    ST.put(a, 8)
    if OPT.get('stamps'): a('s_waitcnt vmcnt(0)')
    ST.put(a, 9)
    ST.cyc(a, 61)
    if OPT.get('stamps') and OPT.get('so'): a(f'v_writelane_b32 v{V_ST}, s{S_NFIX}, 59')
    ST.flush(a)
    a('s_endpgm')

class VM:
    def __init__(self): self.q = []; self.nt = 0; self.nw = 0
    def add(self, name, n): self.q.append([name, n])
    def wait(self, a, name):
        if not any(nm == name for nm, n in self.q): return
        idx = max(i for i, (nm, n) in enumerate(self.q) if nm == name)
        later = sum(n for nm, n in self.q[idx+1:])
        assert later <= 63
        a(f's_waitcnt vmcnt({later})')
        self.q = self.q[idx+1:]
    def wait_any(self, a, names):
        idxs = [i for i, (nm, n) in enumerate(self.q) if nm in names]
        if not idxs: return
        idx = max(idxs)
        later = sum(n for nm, n in self.q[idx+1:])
        assert later <= 63
        a(f's_waitcnt vmcnt({later})')
        self.q = self.q[idx+1:]
    def clear(self): self.q = []

def lane_consts(a):
    a('v_and_b32 v9, 63, v0')
    a('v_lshrrev_b32 v10, 3, v9')
    a('v_and_b32 v11, 7, v9')
    a('v_lshrrev_b32 v12, 4, v9')
    a('v_and_b32 v13, 15, v9')
    a('v_lshlrev_b32 v1, 4, v9')
def swz_regs(a, dst, row):
    for par in range(2):
        a('v_and_b32 v14, 1, v12')
        a(f'v_or_b32 v14, {2*par}, v14')
        a('v_lshlrev_b32 v14, 1, v14')
        a('v_xor_b32 v14, v14, v11')
        a('v_lshlrev_b32 v14, 4, v14')
        if row == 6144:
            a('v_mul_u32_u24 v15, 6144, v10')
            a(f'v_add_u32 v{dst[par]}, v14, v15')
        else:
            a(f'v_lshl_add_u32 v{dst[par]}, v10, {row.bit_length() - 1}, v14')

WO_AVAIL = {13: list(range(54, 78)), 14: list(range(18, 36)) + list(range(78, 102)),
            15: list(range(36, 54)) + list(range(102, 126)), 16: list(range(0, 18)) + [126, 127]}
S_WOB = 75
def wo_base(a):
    a(f's_and_b32 s{S_WOB}, s{S_L}, 1'); a(f's_lshl_b32 s{S_WOB}, s{S_WOB}, 21')
    a(f's_lshl_b32 s{T4}, s{S_GB}, 17'); a(f's_add_u32 s{S_WOB}, s{S_WOB}, s{T4}')
    a(f's_add_u32 s{S_WOB}, s{S_WOB}, {WOP_OFF}')
def wo_pieces(a, p, k, vT):
    lst = WO_AVAIL[k]; n = len(lst)
    mine = lst[p * n // 3:(p + 1) * n // 3]
    i = 0
    while i < len(mine):
        j = i
        while j + 1 < len(mine) and mine[j + 1] == mine[j] + 1 and j + 1 - i < 4: j += 1
        a(f's_mov_b32 m0, {mine[i] * 1024}')
        a(f's_add_u32 s{S_TMP}, s{S_WOB}, {mine[i] * 1024}')
        for q in range(j + 1 - i):
            a(f'buffer_load_dwordx4 v{vT}, {srd(S_WS)}, s{S_TMP} offen offset:{1024 * q} lds')
        i = j + 1
    return len(mine)

def l0st(a, first, s, vm, static=False):
    Lw = OPT.get('l0st')
    if Lw is None: return
    if static:
        if not first: return
    elif first != (Lw == 0): return
    def st2(idx):
        sk = a.uniq('st2_skip')
        a(f's_cmp_lg_u32 s{S_L}, {Lw}'); a(f's_cbranch_scc1 {sk}')
        a(f's_memrealtime s[{S_ST}:{S_ST+1}]'); a('s_waitcnt lgkmcnt(0)'); a(f'v_writelane_b32 v24, s{S_ST}, {idx}')
        a.label(sk)
    st2(s)
    vm.wait_any(a, (f'W{s+1}',)); st2(16 + s)
    vm.wait_any(a, (f'T{s+1}',)); st2(32 + s)
def l0st_flush(a):
    if OPT.get('l0st') is not None:
        a(f's_add_u32 s{T0}, s{T0}, {1 << 20}')
        a(f'buffer_store_dword v24, v1, {srd(S_WS)}, s{T0} offen')
        a('s_waitcnt vmcnt(0)')

def loader(a, p):
    vT, vHalo, vPoll = 1, 2, 5
    vW = [3, 4]
    vTL = [6, 7]
    NW0 = OPT.get('nw0', NW)
    tagn = f'w{p}'
    a.label(f'prod_{tagn}')
    if OPT.get('lprio'): a(f's_setprio {OPT["lprio"]}')
    lane_consts(a)
    if OPT.get('stamps'): a('s_mov_b32 s76, 0')
    swz_regs(a, vW, 6144)
    for half in range(2):
        a(f'v_or_b32 v14, {4*half}, v12')
        a('v_xor_b32 v14, v14, v11')
        a('v_lshlrev_b32 v14, 4, v14')
        a(f'v_lshl_add_u32 v{vTL[half]}, v10, 12, v14')
    order = order_a()
    vm = VM()
    def adv_w():
        a(f's_add_u32 s{S_SLOTW}, s{S_SLOTW}, {W_SLOT}')
        a(f's_cmp_eq_u32 s{S_SLOTW}, {W0 + NW * W_SLOT}')
        a(f's_cselect_b32 s{S_SLOTW}, {W0}, s{S_SLOTW}')
    def adv_t():
        a(f's_add_u32 s{S_SLOTA}, s{S_SLOTA}, {A_SLOT}')
        a(f's_cmp_eq_u32 s{S_SLOTA}, {3 * A_SLOT}')
        a(f's_cselect_b32 s{S_SLOTA}, 0, s{S_SLOTA}')
    def reset_w():
        vm.nw = 0
        a(f's_mov_b32 s{S_SLOTW}, {W0}')
    def issue_W(name, first):
        kw = order[vm.nw]; vm.nw += 1
        if first:
            for pp in range(8):
                a(f's_add_u32 m0, s{S_SLOTW}, {p * 8192 + pp * 1024}')
                a(f's_add_u32 s{S_TMP}, s{S_PB}, {kw * 64 * 6144 + pp * 8 * 6144}')
                a(f'buffer_load_dwordx4 v{vW[pp & 1]}, {srd(S_WQ)}, s{S_TMP} offen {OPT.get("wmod", "")} lds')
        else:
            for base in (0, 4096):
                a(f's_add_u32 m0, s{S_SLOTW}, {p * 8192 + base}')
                a(f's_add_u32 s{S_TMP}, s{S_PB}, {kw * W_SLOT + base}')
                for j in range(4):
                    a(f'buffer_load_dwordx4 v{vT}, {srd(S_WS)}, s{S_TMP} offen offset:{1024*j} {OPT.get("wmod", "")} lds')
        adv_w()
        vm.add(name, 8)
    def T_loads(k, first, slot):
        def m0(off):
            a(f's_add_u32 m0, s{S_SLOTA}, {off}' if slot is None else f's_mov_b32 m0, {slot + off}')
        if first:
            for tau in range(3 * p, 3 * p + 3):
                for half in range(2):
                    m0(tau * 2048 + half * 1024)
                    if tau < 8:
                        row = (tau & 3) * 32 + (tau >> 2) + 16 * half
                        a(f's_add_u32 s{S_TMP}, s{S_TB}, {row * 2048 + k * 128}')
                    else:
                        a(f's_add_u32 s{S_TMP}, s{S_HB}, {(112 + half) * 2048 + k * 128}')
                    a(f'buffer_load_dwordx4 v{vTL[half]}, {srd(S_AX)}, s{S_TMP} offen lds')
        else:
            groups = ((0, 4), (4096, 2)) if p < 2 else ((0, 4),)
            for base, cnt in groups:
                m0(p * 6144 + base)
                a(f's_add_u32 s{S_TMP}, s{S_TB}, {k * 16384 + p * 6144 + base}')
                for j in range(cnt):
                    a(f'buffer_load_dwordx4 v{vT}, {srd(S_WS)}, s{S_TMP} offen offset:{1024*j} sc1 lds')
            if p == 2:
                m0(16384)
                a(f's_add_u32 s{S_TMP}, s{S_HB}, {k * 16384}')
                for ks in range(2):
                    a(f'buffer_load_dwordx4 v{vHalo}, {srd(S_WS)}, s{S_TMP} offen offset:{1024*ks} sc1 lds')
    def issue_T(name, first):
        k = order[vm.nt]; vm.nt += 1
        T_loads(k, first, None)
        adv_t()
        vm.add(name, 6)
    S_NRT = 76
    def check_T(n):
        slot = (n % 3) * A_SLOT; RD = 32; vM = 30
        lp = a.uniq('tchk'); ok = a.uniq('tchk_ok')
        a(f's_mov_b32 s{S_SPIN}, 0')
        a.label(lp)
        for j in range(6):
            a(f'ds_read_b128 v[{RD+4*j}:{RD+4*j+3}], v{vT} offset:{slot + p * 6144 + j * 1024}')
        regs = list(range(RD, RD + 24))
        if OPT.get('sxchk', 'full') == 'one': regs = regs[0::4]
        a('s_waitcnt lgkmcnt(0)')
        h = len(regs) // 2
        ch = []
        for c_, part in enumerate((regs[:h], regs[h:])):
            v = vM + c_; q = [f'v_max3_u32 v{v}, v{part[0]}, v{part[1]}, v{part[2]}']
            rest = part[3:]
            while len(rest) >= 2:
                q.append(f'v_max3_u32 v{v}, v{v}, v{rest[0]}, v{rest[1]}'); rest = rest[2:]
            if rest: q.append(f'v_max_u32 v{v}, v{v}, v{rest[0]}')
            ch.append(q)
        for x in interleave(ch): a(x)
        a(f'v_max_u32 v{vM}, v{vM}, v{vM+1}')
        a(f'v_cmp_eq_u32 vcc, -1, v{vM}')
        a(f's_cbranch_vccz {ok}')
        if OPT.get('stamps'): a(f's_add_u32 s{S_NRT}, s{S_NRT}, {1 << (8 * n)}')
        T_loads(order[n], False, slot)
        a('s_waitcnt vmcnt(0)')
        a(f's_add_u32 s{S_SPIN}, s{S_SPIN}, 1')
        a(f's_cmp_lt_u32 s{S_SPIN}, {SPIN_MAX}')
        a(f's_cbranch_scc1 {lp}')
        a(f'v_mov_b32 v{vM}, 0x110')
        a(f's_mov_b32 s{S_SPIN}, 16')
        a(f'buffer_store_dword v{vM}, off, {srd(S_DBG)}, s{S_SPIN}')
        a('s_waitcnt vmcnt(0)')
        a.label(ok)
    sx = OPT.get('sx'); so = OPT.get('so'); NS = OPT.get('xg1', 4)
    def stages(first):
        wo_base(a)
        for s in range(15):
            l0st(a, first, s, vm)
            vm.wait_any(a, (f'T{s+1}', f'W{s+1}'))
            if sx and not first and s + 1 < NS: check_T(s + 1)
            a('s_barrier')
            if s + 3 <= 15: issue_T(f'T{s+3}', first)
            if s + NW <= 15: issue_W(f'W{s+NW}', first)
            if s + 1 >= 13: vm.add(f'O{s+1}', wo_pieces(a, p, s + 1, vT))
        a('s_barrier')
        wo_pieces(a, p, 16, vT)
    a(f's_lshl_b32 s{S_PB}, s{S_GA}, 7')
    if p: a(f's_add_u32 s{S_PB}, s{S_PB}, {p * 2048}')
    a(f's_lshl_b32 s{S_TB}, s{S_RBA}, 18')
    a(f's_sub_u32 s{T3}, s{S_RBA}, 1'); a(f's_max_i32 s{T3}, s{T3}, 0')
    a(f's_lshl_b32 s{S_HB}, s{T3}, 18')
    reset_w()
    a(f's_mov_b32 s{S_SLOTA}, 0'); vm.nt = 0
    issue_W('W0', True); issue_T('T0', True); issue_W('W1', True); issue_T('T1', True); issue_T('T2', True)
    for n in range(2, NW): issue_W(f'W{n}', True)
    a('v_lshlrev_b32 v14, 8, v12')
    a('v_or_b32 v15, 8, v13')
    a('v_lshl_add_u32 v14, v15, 4, v14')
    a('v_lshrrev_b32 v15, 3, v13')
    a('v_lshlrev_b32 v15, 13, v15')
    a('v_add_u32 v14, v14, v15')
    a(f'v_add_u32 v{vHalo}, {3 * 2048}, v14')
    if p == 0:
        a('v_lshlrev_b32 v14, 7, v12')
        a(f'v_lshl_add_u32 v{vPoll}, v13, 2, v14')
        a('s_waitcnt lgkmcnt(0)')
        a(f's_add_u32 s{S_NONCE}, s{S_NONCE}, 256')
        a(f's_add_u32 s{S_TAG}, s{S_NONCE}, 1')
    vm.wait_any(a, ('T0', 'W0'))
    ST.put(a, 1)
    a('s_barrier')
    stages(True)
    a(f's_branch prod_tail_{tagn}')
    a.label(f'prod_layer_{tagn}')
    vm.clear()
    a(f's_lshl_b32 s{T0}, s{S_L}, 22')
    a(f's_lshl_b32 s{T4}, s{S_RBA}, 18')
    a(f's_add_u32 s{S_TB}, s{T0}, s{T4}')
    a(f's_sub_u32 s{T3}, s{S_RBA}, 1'); a(f's_max_i32 s{T3}, s{T3}, 0')
    a(f's_lshl_b32 s{T4}, s{T3}, 18')
    a(f's_add_u32 s{S_HB}, s{T0}, s{T4}')
    if X_OFF:
        a(f's_add_u32 s{S_TB}, s{S_TB}, {X_OFF}'); a(f's_add_u32 s{S_HB}, s{S_HB}, {X_OFF}')
    a(f's_mov_b32 s{S_SLOTA}, 0'); vm.nt = 0; vm.nw = NW0
    for n in range(NW0): vm.add(f'W{n}', 8)
    ST.put(a, 0)
    a('s_barrier')
    issue_T('T0', False); issue_T('T1', False)
    for n in range(NW0, NW): issue_W(f'W{n}', False)
    issue_T('T2', False)
    vm.wait(a, 'T0')
    if sx: check_T(0)
    ST.put(a, 1)
    a('s_barrier')
    stages(False)
    a.label(f'prod_tail_{tagn}')
    ST.put(a, 2)
    a('s_barrier')
    a('s_waitcnt vmcnt(0)')
    ST.put(a, 5)
    a('s_barrier')
    if not so:
        order2 = order_b(); nlate = len(OPT.get('late', [3, 11]))
        if p == 0:
            a(f's_lshl_b32 s{T0}, s{S_RBB}, 9'); a(f's_add_u32 s{T0}, s{T0}, {FO_OFF}')
            poll(a, S_TAG, [(vPoll, T0)], 20, 0x201, lane_mask(order2[:16 - nlate]))
        a('s_barrier')
        if p == 0:
            poll(a, S_TAG, [(vPoll, T0)], 20, 0x202, lane_mask(order2))
        a('s_barrier')
    a(f's_cmp_eq_u32 s{S_L}, 3')
    a(f's_cbranch_scc1 prod_end_{tagn}')
    a(f's_add_u32 s{S_L}, s{S_L}, 1')
    if p == 0: a(f's_add_u32 s{S_TAG}, s{S_TAG}, 1')
    a(f's_and_b32 s{T0}, s{S_L}, 1'); a(f's_mul_i32 s{T0}, s{T0}, {6 * MB}')
    a(f's_mul_i32 s{T4}, s{S_GA}, {16 * W_SLOT}'); a(f's_add_u32 s{T0}, s{T0}, s{T4}')
    a(f's_add_u32 s{S_PB}, s{T0}, {WP_OFF + p * 8192}')
    a('s_barrier')
    reset_w()
    for n in range(NW0): issue_W(f'W{n}', False)
    a(f's_branch prod_layer_{tagn}')
    a.label(f'prod_end_{tagn}')
    if not sx: a('s_barrier')
    ST.cyc(a, 61)
    if OPT.get('stamps'): a(f'v_writelane_b32 v{V_ST}, s{S_NRT}, 59')
    ST.flush(a)
    l0st_flush(a)
    a('s_endpgm')

def service(a):
    vT, vPoll, vSt, vStH = 1, 5, 2, 3
    vWS = [6, 7]
    vLD = 18
    vX = 25
    S_CSF = 74
    S_BSET = S_OUT
    a.label('prod_w3')
    if OPT.get('sprio'): a(f's_setprio {OPT["sprio"]}')
    lane_consts(a)
    a('v_mul_u32_u24 v15, 6144, v10')
    a(f'v_lshl_add_u32 v{vLD}, v11, 4, v15')
    vm = VM()
    order = order_a()
    RQ = 128
    def rp_issue(st, u):
        a(f's_mul_i32 s{T0}, s{S_RBA}, {64 * 6144}')
        a(f's_lshl_b32 s{T4}, s{S_GA}, 7'); a(f's_add_u32 s{T0}, s{T0}, s{T4}')
        for j in range(8):
            r = RQ + 32 * u + 4 * j
            a(f's_add_u32 s{S_TMP}, s{T0}, {j * 8 * 6144 + u * 2048}')
            a(f'buffer_load_dwordx4 v[{r}:{r+3}], v{vLD}, {srd(S_WQ if st == 0 else S_BSET)}, s{S_TMP} offen')
        vm.add(f'C{u}', 8)
    for u in range(3): rp_issue(0, u)
    a(f's_mov_b32 s{S_BSET}, s{P_BWQ}'); a(f's_mov_b32 s{S_BSET+1}, s{P_BWQ+1}')
    a(f's_mov_b32 s{S_BSET+2}, {1024 * 6144}')
    swz_regs(a, vWS, 128)
    a('v_lshlrev_b32 v14, 7, v12')
    a(f'v_lshl_add_u32 v{vPoll}, v13, 2, v14')
    a('v_lshlrev_b32 v14, 10, v12')
    a(f'v_lshl_add_u32 v{vSt}, v13, 4, v14')
    a('v_and_b32 v14, 3, v11'); a('v_lshlrev_b32 v14, 4, v14')
    a('v_lshrrev_b32 v15, 2, v11'); a('v_lshlrev_b32 v15, 9, v15')
    a('v_add_u32 v14, v14, v15')
    a('v_lshl_add_u32 v14, v10, 10, v14')
    a(f'v_add_u32 v{vStH}, {3 * 128 + 64}, v14')
    a(f's_lshl_b32 s{S_CSF}, s{S_GA}, 9')
    a(f's_lshl_b32 s{T4}, s{S_RBA}, 2'); a(f's_add_u32 s{S_CSF}, s{S_CSF}, s{T4}')
    a(f's_add_u32 s{S_CSF}, s{S_CSF}, {FC_OFF}')
    a('s_waitcnt lgkmcnt(0)')
    a(f's_add_u32 s{S_NONCE}, s{S_NONCE}, 256')
    a(f's_add_u32 s{S_TAG}, s{S_NONCE}, 1')
    a(f'v_lshlrev_b32 v15, 11, v10')
    a(f'v_lshl_add_u32 v19, v11, 4, v15')
    for j in range(4): a(f'v_mov_b32 v{240+j}, -1')
    a(f's_lshl_b32 s79, s{S_RBA}, 7')
    a(f's_sub_u32 s{T3}, s{S_RBA}, 1'); a(f's_max_i32 s{T3}, s{T3}, 0')
    a(f's_sub_u32 s{T3}, s{S_RBA}, s{T3}'); a(f's_lshl_b32 s{T3}, s{T3}, 7')
    a('v_and_b32 v14, 1, v12')
    a(f'v_mul_u32_u24 v14, s{T3}, v14')
    a('v_lshlrev_b32 v15, 2, v13')
    a('v_add_u32 v15, s79, v15')
    a('v_sub_u32 v29, v15, v14')
    a(f's_lshl_b32 s{T4}, s{S_GA}, 2'); a(f's_add_u32 s79, s79, s{T4}')
    a(f's_add_u32 s79, s79, {FL_OFF}')
    A, TT = 224, 232
    so = OPT.get('so'); sx = OPT.get('sx')
    SEL, vNM, vNMH, vCS = 244, 26, 27, 28
    a('v_and_b32 v14, 1, v11'); a('v_lshlrev_b32 v14, 4, v14')
    a('v_mov_b32 v15, 0x3f80'); a('v_lshlrev_b32 v14, v14, v15')
    a('v_lshrrev_b32 v15, 1, v11')
    for q in range(4):
        a(f'v_cmp_eq_u32 vcc, {q}, v15'); a(f'v_cndmask_b32 v{SEL+q}, 0, v14, vcc')
    a('v_and_b32 v14, 1, v12'); a('v_lshlrev_b32 v14, 4, v14')
    a(f'v_lshl_add_u32 v{vCS}, v11, 5, v14')
    a(f'v_lshlrev_b32 v{vNM}, 3, v9'); a(f'v_add_u32 v{vNM}, {NM0}, v{vNM}')
    a('v_lshrrev_b32 v14, 5, v9'); a('v_lshlrev_b32 v14, 2, v14')
    a('v_lshl_add_u32 v14, v11, 3, v14'); a(f'v_add_u32 v{vNMH}, {NM0 + 512}, v14')
    WOR = 32
    vLD2 = 19
    def wo_issue(st):
        a(f's_lshl_b32 s{T0}, s{S_RBB}, 17')
        a(f's_lshl_b32 s{T4}, s{S_GB}, 7'); a(f's_add_u32 s{T0}, s{T0}, s{T4}')
        P = P_AWO if st == 0 else P_BWO
        a(f's_mov_b32 s{S_WO}, s{P}'); a(f's_mov_b32 s{S_WO+1}, s{P+1}')
        for j in range(8):
            r = WOR + 4 * j
            a(f's_add_u32 s{S_TMP}, s{T0}, {j * 8 * 2048}')
            a(f'buffer_load_dwordx4 v[{r}:{r+3}], v{vLD2}, {srd(S_WO)}, s{S_TMP} offen')
        vm.add('WO', 8)
    def wo_store(st):
        vm.wait(a, 'WO')
        a(f's_lshl_b32 s{T0}, s{S_GB}, 17')
        a(f's_lshl_b32 s{T4}, s{S_RBB}, 13'); a(f's_add_u32 s{T0}, s{T0}, s{T4}')
        a(f's_add_u32 s{T0}, s{T0}, {WOP_OFF + st * 2 * MB}')
        for j in range(8):
            r = WOR + 4 * j
            if j == 4: a(f's_add_u32 s{T0}, s{T0}, 4096')
            a(f'buffer_store_dwordx4 v[{r}:{r+3}], v{vWS[j & 1]}, {srd(S_WS)}, s{T0} offen offset:{(j % 4) * 1024} sc1')
        vm.add('WOS', 8)
    vNEG, vPollC = 240, 29
    S_CO, S_CX, S_CLF = 77, 78, 79
    def clear_list(L):
        o = [(S_CO, t * 32768, [0, 1024]) for t in range(8)] if so else []
        x = [(S_CX, q * 4096, [0, 1024, 2048, 3072]) for q in range(4)] if (sx and L < 3) else []
        out = []
        for b, c_, offs in o + x:
            for of in offs: out.append((b, c_, of))
        return out
    def clear_bases(L):
        a(f's_lshl_b32 s{T0}, s{S_RBA}, 18')
        a(f's_lshl_b32 s{T4}, s{S_GA}, 11'); a(f's_add_u32 s{S_CO}, s{T0}, s{T4}')
        a(f's_add_u32 s{S_CO}, s{S_CO}, {O_OFF + L * LSTRIDE}')
        a(f's_lshl_b32 s{T4}, s{S_GA}, 14'); a(f's_add_u32 s{S_CX}, s{T0}, s{T4}')
        a(f's_add_u32 s{S_CX}, s{S_CX}, {X_OFF + (L + 1) * LSTRIDE}')
    def clear_some(lst):
        last = None
        for b, c_, of in lst:
            if last != (b, c_):
                a(f's_add_u32 s{S_TMP}, s{b}, {c_}'); last = (b, c_)
            a(f'buffer_store_dwordx4 v[{vNEG}:{vNEG+3}], v{vT}, {srd(S_WS)}, s{S_TMP} offen offset:{of} sc1')
        if lst: vm.add('CL', len(lst))
    def clear_flag():
        vm.wait(a, 'CL')
        flag_store(a, S_CLF, S_TAG, 20); vm.add('F', 1)
    def clear_poll_issue():
        a(f's_mov_b32 s{T0}, {FL_OFF}')
        a(f'buffer_load_dword v30, v{vPollC}, {srd(S_WS)}, s{T0} offen sc1')
        vm.add('Q', 1)
    def clear_check():
        vm.wait(a, 'Q')
        ok = a.uniq('cl_ok')
        poll_test(a, S_TAG, 1, 30, False)
        a(f's_cbranch_scc1 {ok}')
        a(f's_mov_b32 s{T0}, {FL_OFF}')
        poll(a, S_TAG, [(vPollC, T0)], 30, 0x310)
        a.label(ok)
    def rp_dot(u):
        vm.wait(a, f'C{u}')
        R0 = RQ + 32 * u
        a('v_mov_b32 v20, 0x3f80'); a('v_mov_b32 v21, 0x3f800000')
        for e in range(8): a(f'v_mov_b32 v{A+e}, 0')
        for j in range(8):
            r = R0 + 4 * j
            for q in range(4):
                a(f'v_dot2c_f32_bf16 v{A+2*q}, v20, v{r+q}')
                a(f'v_dot2c_f32_bf16 v{A+2*q+1}, v21, v{r+q}')
    def rp_red(st, u):
        streams = []
        for e in range(8):
            v = A + e; t = TT + e; sq = []
            sq.append(f'v_add_f32_dpp v{v}, v{v}, v{v} row_ror:8 row_mask:0xf bank_mask:0xf')
            for sw in ('16', '32'):
                sq.append(f'v_mov_b32 v{t}, v{v}')
                sq.append(f'v_permlane{sw}_swap_b32 v{v}, v{t}')
                sq.append(f'v_add_f32 v{v}, v{v}, v{t}')
            streams.append(sq)
        for x in interleave(streams): a(x)
        a(f's_lshl_b32 s{T0}, s{S_GA}, 14')
        a(f's_lshl_b32 s{T4}, s{S_RBA}, 10'); a(f's_add_u32 s{T0}, s{T0}, s{T4}')
        a(f's_add_u32 s{T0}, s{T0}, {CSP_OFF + u * 256 + st * 262144}')
        a('v_lshlrev_b32 v20, 5, v11')
        a('s_mov_b64 exec, 0xff')
        for q in range(2):
            a(f'buffer_store_dwordx4 v[{A+4*q}:{A+4*q+3}], v20, {srd(S_WS)}, s{T0} offen offset:{16*q} sc1')
        a('s_mov_b64 exec, -1')
        vm.add(f'CS{u}', 2)
    def rp_cs(st, u):
        if st in OPT.get('csdot', ()) or (st, u) in OPT.get('csdot', ()):
            rp_dot(u); rp_red(st, u); return
        vm.wait(a, f'C{u}')
        R0 = RQ + 32 * u
        for j in range(8): a(mfma(A, SEL, R0 + 4 * j, None if j == 0 else A))
        a(f's_lshl_b32 s{T0}, s{S_GA}, 14')
        a(f's_lshl_b32 s{T4}, s{S_RBA}, 10'); a(f's_add_u32 s{T0}, s{T0}, s{T4}')
        a(f's_add_u32 s{T0}, s{T0}, {CSP_OFF + u * 256 + st * 262144}')
        for r in range(4): a(f'v_add_f32_dpp v{A+r}, v{A+r}, v{A+r} row_ror:8 row_mask:0xf bank_mask:0xf')
        m = OPT.get('csmask', 0)
        if m: a('s_mov_b64 exec, 0x00ff00ff')
        a(f'buffer_store_dwordx4 v[{A}:{A+3}], v{vCS}, {srd(S_WS)}, s{T0} offen sc1')
        if m: a('s_mov_b64 exec, -1')
        if m == 2: a('s_nop 7')
        vm.add(f'CS{u}', 1)
    def rp_store(st, u):
        vm.wait(a, f'C{u}')
        R0 = RQ + 32 * u
        a(f's_mul_i32 s{T0}, s{S_GA}, {16 * W_SLOT}')
        a(f's_mul_i32 s{T4}, s{S_RBA}, {W_SLOT}'); a(f's_add_u32 s{T0}, s{T0}, s{T4}')
        a(f's_add_u32 s{T0}, s{T0}, {WP_OFF + st * 6 * MB + u * 8192}')
        for j in range(8):
            r = R0 + 4 * j
            if j == 4: a(f's_add_u32 s{T0}, s{T0}, 4096')
            a(f'buffer_store_dwordx4 v[{r}:{r+3}], v{vWS[j & 1]}, {srd(S_WS)}, s{T0} offen offset:{(j % 4) * 1024} sc1')
        vm.add(f'RP{u}', 8)
    csmask = lane_mask(range(16), (0,))
    def cs_poll_off():
        a(f's_lshl_b32 s{T0}, s{S_GA}, 9'); a(f's_add_u32 s{T0}, s{T0}, {FC_OFF}')
    def cs_poll_issue():
        cs_poll_off()
        a(f'buffer_load_dword v{vX}, v{vPoll}, {srd(S_WS)}, s{T0} offen sc1')
        vm.add('X', 1)
    def cs_check(plus, code):
        vm.wait(a, 'X')
        ok = a.uniq('cs_ok')
        a(f's_add_u32 s{T1}, s{S_NONCE}, {plus}')
        set_mask(a, csmask)
        poll_test(a, T1, 1, vX, True)
        a(f's_cbranch_scc1 {ok}')
        cs_poll_off()
        poll(a, T1, [(vPoll, T0)], vX, code, csmask)
        a.label(ok)
    def cs_flag(plus):
        a(f's_add_u32 s{T1}, s{S_NONCE}, {plus}')
        flag_store(a, S_CSF, T1, 20); vm.add('F', 1)
    def cs_loads(lo, hi, SC=32):
        a(f's_and_b32 s{T0}, s{S_L}, 1'); a(f's_lshl_b32 s{T0}, s{T0}, 18')
        a(f's_lshl_b32 s{T4}, s{S_GA}, 14'); a(f's_add_u32 s{T0}, s{T0}, s{T4}')
        a(f's_add_u32 s{T0}, s{T0}, {CSP_OFF}')
        for rb in range(lo, hi):
            if rb % 4 == 0: a(f's_add_u32 s{S_TMP}, s{T0}, {rb * 1024}')
            a(f'buffer_load_dwordx4 v[{SC+4*rb}:{SC+4*rb+3}], v{vT}, {srd(S_WS)}, s{S_TMP} offen offset:{(rb % 4) * 1024} sc1')
        vm.add('Y', hi - lo)
    def cs_process(SC=32, part=None):
        vm.wait(a, 'Y')
        if part is None: rbs = range(1, 16)
        elif part == 0: rbs = range(8, 16)
        else: rbs = range(0)
        if part == 0:
            for rb in rbs:
                for q in range(4): a(f'v_add_f32 v{SC+4*(rb-8)+q}, v{SC+4*(rb-8)+q}, v{SC+4*rb+q}')
            return
        if part == 1: rbs = range(1, 8)
        for rb in rbs:
            for q in range(4): a(f'v_add_f32 v{SC+q}, v{SC+q}, v{SC+4*rb+q}')
        a(f's_and_b32 s{T0}, s{S_L}, 1'); a(f's_lshl_b32 s{T0}, s{T0}, 10'); a(f's_add_u32 s{T0}, s{T0}, {CS0}')
        a(f'v_add_u32 v20, s{T0}, v{vT}')
        a(f'ds_write_b128 v20, v[{SC}:{SC+3}]')
        a('s_waitcnt lgkmcnt(0)')
    SV = 32
    def stats_issue(part):
        a(f's_lshl_b32 s{T0}, s{S_L}, 18')
        a(f's_lshl_b32 s{T4}, s{S_RBA}, 14'); a(f's_add_u32 s{T1}, s{T0}, s{T4}')
        a(f's_add_u32 s{T1}, s{T1}, {S_OFF}')
        n = 0
        for j in range(4):
            a(f's_add_u32 s{S_TMP}, s{T1}, {j * 4096}')
            for q in (2 * part, 2 * part + 1):
                r = SV + 16 * q + 4 * j
                a(f'buffer_load_dwordx4 v[{r}:{r+3}], v{vSt}, {srd(S_WS)}, s{S_TMP} offen offset:{q * 256} sc1'); n += 1
        if part == 1:
            a(f's_sub_u32 s{T3}, s{S_RBA}, 1'); a(f's_max_i32 s{T3}, s{T3}, 0')
            a(f's_lshl_b32 s{T4}, s{T3}, 14'); a(f's_add_u32 s{T1}, s{T0}, s{T4}')
            for j in range(2):
                a(f's_add_u32 s{S_TMP}, s{T1}, {S_OFF + j * 8192}')
                r = SV + 64 + 4 * j
                a(f'buffer_load_dwordx4 v[{r}:{r+3}], v{vStH}, {srd(S_WS)}, s{S_TMP} offen sc1'); n += 1
        vm.add(f'S{part}', n)
    def stats_process(part):
        vm.wait(a, f'S{part}')
        groups = [(SV + 16 * q, 4, q) for q in (2 * part, 2 * part + 1)]
        if part == 1: groups.append((SV + 64, 2, 4))
        streams = []
        for R0, cnt, q in groups:
            for e in range(4):
                v = R0 + e; t = 104 + 4 * (q % 3) + e; sq = []
                for j in range(1, cnt): sq.append(f'v_add_f32 v{v}, v{v}, v{R0+4*j+e}')
                if q == 4: sq.append(f'v_add_f32_dpp v{v}, v{v}, v{v} row_ror:8 row_mask:0xf bank_mask:0xf')
                for sw in ('16', '32'):
                    sq.append(f'v_mov_b32 v{t}, v{v}')
                    sq.append(f'v_permlane{sw}_swap_b32 v{v}, v{t}')
                    sq.append(f'v_add_f32 v{v}, v{v}, v{t}')
                streams.append(sq)
        for x in interleave(streams): a(x)
        a(f's_mov_b32 s{T0}, 0x3a800000')
        streams = []
        for R0, cnt, q in groups:
            for rr in range(2):
                m, e2 = R0 + 2 * rr, R0 + 2 * rr + 1
                streams.append([f'v_mul_f32 v{m}, s{T0}, v{m}',
                                f'v_mul_f32 v{e2}, s{T0}, v{e2}',
                                f'v_fma_f32 v{e2}, -v{m}, v{m}, v{e2}',
                                f'v_max_f32 v{e2}, 0, v{e2}',
                                f'v_add_f32 v{e2}, 0x3727c5ac, v{e2}',
                                f'v_rsq_f32 v{e2}, v{e2}',
                                f'v_sub_f32 v{m}, 0, v{m}'])
        for x in interleave(streams): a(x)
        for R0, cnt, q in groups:
            a(f'v_mov_b32 v20, v{R0+1}'); a(f'v_mov_b32 v{R0+1}, v{R0+2}'); a(f'v_mov_b32 v{R0+2}, v20')
        a(f'v_lshlrev_b32 v20, 3, v13')
        a(f'v_add_u32 v20, {NM0}, v20')
        a(f'v_lshlrev_b32 v21, 3, v11')
        a(f'v_add_u32 v21, {NM0 + 512}, v21')
        for R0, cnt, q in groups:
            va = 20 if q < 4 else 21; off = 128 * q if q < 4 else 0
            a(f'ds_write_b64 v{va}, v[{R0}:{R0+1}] offset:{off}')
            a(f'ds_write_b64 v{va}, v[{R0+2}:{R0+3}] offset:{off + 1024}')
        a('s_waitcnt lgkmcnt(0)')
    def st_add(qs):
        vm.wait(a, f'S{qs[0] >> 1}')
        for j in range(1, 4):
            for q in qs:
                for e in range(4): a(f'v_add_f32 v{SV+16*q+e}, v{SV+16*q+e}, v{SV+16*q+4*j+e}')
    def st_tr(es):
        streams = []
        for e in es:
            r = [SV + 16 * q + e for q in range(4)]
            streams.append([f'v_permlane32_swap_b32 v{r[0]}, v{r[2]}', f'v_permlane32_swap_b32 v{r[1]}, v{r[3]}',
                            f'v_add_f32 v{r[0]}, v{r[0]}, v{r[2]}', f'v_add_f32 v{r[1]}, v{r[1]}, v{r[3]}',
                            f'v_permlane16_swap_b32 v{r[0]}, v{r[1]}', f'v_add_f32 v{r[0]}, v{r[0]}, v{r[1]}'])
        for x in interleave(streams): a(x)
    def ln_terms(m, e2, nm, rs):
        return [f'v_mul_f32 v{m}, s{T0}, v{m}',
                f'v_mul_f32 v{e2}, s{T0}, v{e2}',
                f'v_fma_f32 v{e2}, -v{m}, v{m}, v{e2}',
                f'v_max_f32 v{e2}, 0, v{e2}',
                f'v_add_f32 v{e2}, 0x3727c5ac, v{e2}',
                f'v_rsq_f32 v{rs}, v{e2}',
                f'v_sub_f32 v{nm}, 0, v{m}']
    def st_post():
        a(f's_mov_b32 s{T0}, 0x3a800000')
        for x in interleave([ln_terms(SV, SV + 1, SV + 6, SV + 4), ln_terms(SV + 2, SV + 3, SV + 7, SV + 5)]): a(x)
        a(f'ds_write_b64 v{vNM}, v[{SV+6}:{SV+7}]')
        a(f'ds_write_b64 v{vNM}, v[{SV+4}:{SV+5}] offset:1024')
        a('s_waitcnt lgkmcnt(0)')
    HV = SV + 64
    def st_halo(part):
        if part == 0:
            vm.wait(a, 'S1')
            for e in range(4): a(f'v_add_f32 v{HV+e}, v{HV+e}, v{HV+4+e}')
            return
        if part == 1:
            a(f'v_permlane32_swap_b32 v{HV}, v{HV+2}'); a(f'v_permlane32_swap_b32 v{HV+1}, v{HV+3}')
            a(f'v_add_f32 v{HV}, v{HV}, v{HV+2}'); a(f'v_add_f32 v{HV+1}, v{HV+1}, v{HV+3}')
            a(f'v_mov_b32 v{HV+2}, v{HV}'); a(f'v_mov_b32 v{HV+3}, v{HV+1}')
            a(f'v_permlane16_swap_b32 v{HV}, v{HV+2}'); a(f'v_permlane16_swap_b32 v{HV+1}, v{HV+3}')
            a(f'v_add_f32 v{HV}, v{HV}, v{HV+2}'); a(f'v_add_f32 v{HV+1}, v{HV+1}, v{HV+3}')
            for e in range(2): a(f'v_add_f32_dpp v{HV+e}, v{HV+e}, v{HV+e} row_ror:8 row_mask:0xf bank_mask:0xf')
            return
        a(f's_mov_b32 s{T0}, 0x3a800000')
        for x in ln_terms(HV, HV + 1, HV + 2, HV + 3): a(x)
        a('s_mov_b32 exec_lo, 0xff'); a('s_mov_b32 exec_hi, 0xff')
        a(f'ds_write_b32 v{vNMH}, v{HV+2}')
        a(f'ds_write_b32 v{vNMH}, v{HV+3} offset:1024')
        a('s_mov_b64 exec, -1')
        a('s_waitcnt lgkmcnt(0)')
    def stats_sched(work, ss):
        work[ss].append(lambda: stats_issue(0)); work[ss + 1].append(lambda: stats_issue(1))
        k0 = OPT.get('s_proc', 11)
        work[k0].append(lambda: st_add((0, 1)))
        work[k0 + 1].append(lambda: st_add((2, 3))); work[k0 + 1].append(lambda: st_halo(0))
        work[k0 + 2].append(lambda: st_tr((0, 1, 2, 3)))
        work[k0 + 3].append(st_post); work[k0 + 3].append(lambda: st_halo(1))
        work[k0 + 4].append(lambda: st_halo(2))
    xg1 = OPT.get('xg1', 4); xg2 = OPT.get('xg2', 10)
    def xpoll_addr():
        a(f's_lshl_b32 s{T0}, s{S_RBA}, 9'); a(f's_add_u32 s{T0}, s{T0}, {FX_OFF}')
        a(f's_sub_u32 s{T3}, s{S_RBA}, 1'); a(f's_max_i32 s{T3}, s{T3}, 0')
        a(f's_lshl_b32 s{T1}, s{T3}, 9'); a(f's_add_u32 s{T1}, s{T1}, {FX_OFF}')
    PV = 22
    def xpoll_issue():
        xpoll_addr(); poll_issue(a, [(vPoll, T0), (vPoll, T1)], PV); vm.add('P', 2)
    def xcheck(gs):
        vm.wait(a, 'P')
        ok = a.uniq('x_ok')
        set_mask(a, lane_mask(gs))
        poll_test(a, S_TAG, 2, PV, True)
        a(f's_cbranch_scc1 {ok}')
        xpoll_addr()
        poll(a, S_TAG, [(vPoll, T0), (vPoll, T1)], PV, 0x102, lane_mask(gs))
        a.label(ok)
    def split(lst, counts):
        out = []; i = 0
        for n in counts:
            out.append(lst[i:i+n]); i += n
        assert i >= len(lst), (i, len(lst))
        return out
    marks = so or sx
    def stages(L):
        work = {k: [] for k in range(17)}; pre = {k: [] for k in range(17)}
        cl = clear_list(L)
        if L == 0:
            sch = OPT.get('l0sch', {})
            for u in range(3): work[sch.get('csa', (0, 1, 2))[u]].append(lambda u=u: rp_cs(0, u))
            work[sch.get('woa', 0)].append(lambda: wo_issue(0))
            work[sch.get('woas', 3)].append(lambda: wo_store(0))
            ks = sch.get('clk', (1, 2, 4, 5, 6)); cn = sch.get('cln', (4, 4, 8, 8, 8))
            for k, part in zip(ks, split(cl, cn)): work[k].append(lambda part=part: clear_some(part))
            def flag1():
                vm.wait_any(a, ('CS2', 'WOS')); cs_flag(1)
            f1 = sch.get('f1', 4)
            work[f1].insert(0, flag1)
            work[f1 + 1].append(cs_poll_issue)
            work[f1 + 2].insert(0, lambda: cs_check(1, 0x300))
            work[f1 + 2].insert(1, lambda: cs_loads(0, 16, RQ))
            work[6].append(xpoll_issue)
            work[f1 + 3].append(lambda: cs_process(RQ, 0))
            work[f1 + 4].append(lambda: cs_process(RQ, 1))
            pre[8].append(lambda: xcheck(order))
            if marks: work[8].insert(0, clear_flag)
            stats_sched(work, 8)
            kb = sch.get('cb', (12, 13, 14))
            for u in range(3): work[kb[u]].append(lambda u=u: rp_issue(1, u))
            work[15].append(lambda: wo_issue(1))
            if marks: work[14].append(clear_poll_issue)
        else:
            dist = OPT.get('pidist', 1 if sx else 2)
            work[xg1 - 2 - dist].append(xpoll_issue); pre[xg1 - 2].append(lambda: xcheck(order[:xg2]))
            work[xg2 - 2 - 2].append(xpoll_issue); pre[xg2 - 2].append(lambda: xcheck(order))
            parts = split(cl, (4, 4, 6, 5, 5, 4, 4))
            for k in range(7): work[k].append(lambda part=parts[k]: clear_some(part))
            if marks: work[8].append(clear_flag)
            stats_sched(work, OPT.get('s_stats', 9))
            if L == 1:
                work[0].insert(0, lambda: cs_loads(0, 16)); work[2].insert(0, lambda: cs_process(32, 0)); work[7].insert(0, lambda: cs_process(32, 1))
                for u in range(3):
                    work[3 + u].append(lambda u=u: rp_issue(0, u))
                    work[6 + u].append(lambda u=u: rp_store(0, u))
                def flag3():
                    vm.wait(a, 'RP2'); cs_flag(3)
                work[11].append(flag3)
            if marks: work[14].append(clear_poll_issue)
        if marks: work[0].insert(0, lambda: clear_bases(L))
        for k in range(17):
            for f in pre[k]: f()
            if k and k < 16: l0st(a, L == OPT.get('l0st'), k - 1, vm, static=True)
            a('s_barrier')
            for f in work[k]: f()
    def tail(L):
        ST.put(a, 2)
        nb = OPT.get('tailnb', 2)
        if L == 0:
            for u in range(nb): rp_cs(1, u)
        a('s_barrier')
        if L == 0:
            for u in range(nb, 3): rp_cs(1, u)
            rp_store(1, 0); rp_store(1, 1)
        if marks: clear_check()
        ST.put(a, 5)
        a('s_barrier')
        if L == 0:
            rp_store(1, 2)
            wo_store(1)
        if L == 1: cs_poll_issue()
        if not so: a('s_barrier')
        if L == 0:
            a('s_waitcnt vmcnt(0)'); vm.clear()
            cs_flag(2)
        if not so: a('s_barrier')
        if L == 3:
            if not sx: a('s_barrier')
            return
        a(f's_add_u32 s{S_L}, s{S_L}, 1')
        if L == 0:
            a(f's_add_u32 s{T1}, s{S_NONCE}, 2')
            cs_poll_off()
            poll(a, T1, [(vPoll, T0)], vX, 0x301, csmask)
        if L == 1: cs_check(3, 0x302)
        a(f's_add_u32 s{S_TAG}, s{S_TAG}, 1')
        a('s_barrier')
        ST.put(a, 0)
        a('s_barrier')
    for L in range(4):
        stages(L)
        tail(L)
    ST.cyc(a, 61)
    ST.flush(a)
    l0st_flush(a)
    a('s_endpgm')

def build(opts):
    OPT.clear(); OPT.update(opts)
    set_lds_map(OPT.get('nw', 4))
    a = Asm()
    kname = NAME + '_kernel'
    a.raw(f'.globl {kname}')
    a.raw('.p2align 8')
    a.raw(f'.type {kname},@function')
    a.label(kname)
    a('s_cmp_ge_u32 s2, 256')
    a('s_cbranch_scc1 k_done')
    a(f's_load_dwordx2 s[{S_AX}:{S_AX+1}], s[0:1], {K_AX}')
    a(f's_load_dwordx2 s[{P_AWQ}:{P_AWQ+1}], s[0:1], {K_AWQKV}')
    a(f's_load_dwordx2 s[{P_AWO}:{P_AWO+1}], s[0:1], {K_AWO}')
    a(f's_load_dwordx2 s[{P_BWQ}:{P_BWQ+1}], s[0:1], {K_BWQKV}')
    a(f's_load_dwordx2 s[{P_BWO}:{P_BWO+1}], s[0:1], {K_BWO}')
    a(f's_load_dwordx2 s[{S_OUT}:{S_OUT+1}], s[0:1], {K_OUT}')
    a(f's_load_dwordx2 s[{S_DBG}:{S_DBG+1}], s[0:1], {K_DBG}')
    a(f's_load_dwordx2 s[{S_WS}:{S_WS+1}], s[0:1], {K_WS}')
    if OPT.get('stamps'):
        a(f'v_mov_b32 v{V_ST}, 0')
    a(f's_and_b32 s{T0}, s2, 7')
    a(f's_lshr_b32 s{T1}, s2, 3')
    if OPT.get('map', 'same') == 'old':
        a(f's_and_b32 s{S_RBA}, s{T0}, 1'); a(f's_lshl_b32 s{S_RBA}, s{S_RBA}, 3')
        a(f's_and_b32 s{T2}, s{T1}, 7'); a(f's_add_u32 s{S_RBA}, s{S_RBA}, s{T2}')
        a(f's_lshr_b32 s{S_GA}, s{T0}, 1'); a(f's_lshl_b32 s{S_GA}, s{S_GA}, 2')
        a(f's_lshr_b32 s{T2}, s{T1}, 3'); a(f's_add_u32 s{S_GA}, s{S_GA}, s{T2}')
    else:
        a(f's_and_b32 s{S_RBA}, s{T0}, 3'); a(f's_lshl_b32 s{S_RBA}, s{S_RBA}, 2')
        a(f's_and_b32 s{T2}, s{T1}, 3'); a(f's_add_u32 s{S_RBA}, s{S_RBA}, s{T2}')
        a(f's_lshr_b32 s{S_GA}, s{T0}, 2'); a(f's_lshl_b32 s{S_GA}, s{S_GA}, 3')
        a(f's_lshr_b32 s{T2}, s{T1}, 2'); a(f's_add_u32 s{S_GA}, s{S_GA}, s{T2}')
    a(f's_and_b32 s{S_RBB}, s{T0}, 3'); a(f's_lshl_b32 s{S_RBB}, s{S_RBB}, 2')
    a(f's_and_b32 s{T2}, s{T1}, 3'); a(f's_add_u32 s{S_RBB}, s{S_RBB}, s{T2}')
    a(f's_lshr_b32 s{S_GB}, s{T0}, 2'); a(f's_lshl_b32 s{S_GB}, s{S_GB}, 3')
    a(f's_lshr_b32 s{T2}, s{T1}, 2'); a(f's_add_u32 s{S_GB}, s{S_GB}, s{T2}')
    a('v_lshrrev_b32 v1, 6, v0')
    a(f'v_readfirstlane_b32 s{S_WAVE}, v1')
    a(f's_lshr_b32 s{S_H}, s{S_WAVE}, 1')
    a(f's_and_b32 s{S_H}, s{S_H}, 1')
    a(f's_mov_b32 s{S_L}, 0')
    a('s_waitcnt lgkmcnt(0)')
    make_srd(a, S_WS, 256 * MB if (OPT.get('stamps') or OPT.get('dump')) else WS_USED)
    make_srd(a, S_AX, 4 * MB); make_srd(a, S_OUT, 4 * MB); make_srd(a, S_DBG, 256)
    for p in (P_AWQ, P_BWQ, P_AWO, P_BWO): a(f's_and_b32 s{p+1}, s{p+1}, 0xffff')
    a(f's_mov_b32 s{S_WQ+2}, {1024 * 6144}'); a(f's_mov_b32 s{S_WQ+3}, {SRD3}')
    a(f's_mov_b32 s{S_WO+2}, {1024 * 2048}'); a(f's_mov_b32 s{S_WO+3}, {SRD3}')
    set_layer_srds(a)
    ST.put(a, 0, False); ST.cyc(a, 60)
    a(f's_mov_b32 s{T0}, {E_OFF}')
    a(f's_load_dword s{S_NONCE}, s[{S_WS}:{S_WS+1}], s{T0}')
    for w in range(4, 8):
        a(f's_cmp_eq_u32 s{S_WAVE}, {w}'); a(f's_cbranch_scc1 prod_w{w-4}')
    c = consumer_regs()
    if OPT.get('prio'): a(f's_setprio {OPT["prio"]}')
    if OPT.get('stamps'): a(f's_mov_b32 s{S_NFIX}, 0')
    consumer_prologue(a, c)
    a(f's_bitcmp1_b32 s{S_WAVE}, 0')
    a('s_cbranch_scc1 a_cons_p1')
    a_consumer(a, c, 0)
    a_consumer(a, c, 1)
    b_consumer(a, c)
    for p in range(3): loader(a, p)
    service(a)
    a.label('k_done')
    a('s_endpgm')
    n = a.pad_hazards()
    hdr = open(f'cdna_kernels/{NAME}.s.ref').read().split('\n')
    lines = [l for l in hdr if l.startswith(';') and '@launch' not in l and 'Override launch' not in l and 'grid=ceil' not in l]
    lines = lines[:11]
    lines.append(f'; @launch grid=(256,1,1) block=(512,1,1) lds={LDS_SIZE}')
    out = '\n'.join(lines) + '\n.amdgcn_target "amdgcn-amd-amdhsa--gfx950"\n.text\n' + a.text()
    out += f'''.section .rodata,"a"
.p2align 6
.amdhsa_kernel {kname}
  .amdhsa_next_free_vgpr 256
  .amdhsa_next_free_sgpr 102
  .amdhsa_accum_offset 256
  .amdhsa_group_segment_fixed_size 0
  .amdhsa_kernarg_size 72
  .amdhsa_float_denorm_mode_32 3
  .amdhsa_user_sgpr_count 2
  .amdhsa_user_sgpr_kernarg_segment_ptr 1
  .amdhsa_system_sgpr_workgroup_id_x 1
.end_amdhsa_kernel
'''
    return out, n, c.top

if __name__ == '__main__':
    opts = {}
    for kv in sys.argv[2:]:
        k, v = kv.split('='); opts[k] = eval(v)
    out, n, top = build(opts)
    open(sys.argv[1], 'w').write(out)
    print('written', sys.argv[1], 'nops inserted:', n, 'bytes', len(out), 'consumer vgpr top', top)
```

```python
import sys
sys.path.insert(0, 'work')
from asmlib import Asm

NAME = 'interleave_layers__sliding_local_dilated__sliding_local_dilated__prompt'
MB = 1 << 20
K_AX, K_AWQKV, K_AWO, K_BX, K_BWQKV, K_BWO, K_OUT, K_DBG, K_WS = 0, 8, 16, 24, 32, 40, 48, 56, 64
SRD3 = 0x00020000
X_OFF, O_OFF, LSTRIDE = 0, 16 * MB, 4 * MB
S_OFF, S_LSTRIDE = 32 * MB, 256 * 1024
CSP_OFF = 33 * MB
FX_OFF = 34 * MB
FO_OFF = FX_OFF + 8192
FC_OFF = FX_OFF + 16384
E_OFF = FX_OFF + 32768
WP_OFF = 40 * MB
WOP_OFF = 52 * MB
FL_OFF = FX_OFF + 24576
WS_USED = 56 * MB
ST_OFF = 200 * MB
A_SLOT, W_SLOT = 18432, 24576
W0 = 3 * A_SLOT
NW = 3
def set_lds_map(nw):
    global NW, HALO0, NM0, RS0, CS0, NONCE0, LDS_SIZE
    NW = nw
    HALO0 = max(131072, W0 + nw * W_SLOT)
    NM0 = HALO0 + 4096
    RS0 = NM0 + 1024
    CS0 = RS0 + 1024
    NONCE0 = CS0 + 2048
    LDS_SIZE = NONCE0 + 256
set_lds_map(3)
S_WS, S_WQ, S_WO, S_AX, S_OUT, S_DBG = 4, 8, 12, 16, 20, 24
P_AWQ, P_BWQ, P_AWO, P_BWO = 28, 30, 32, 34
S_RBA, S_GA, S_RBB, S_GB, S_WAVE, S_H, S_L, S_NONCE, S_TAG = 36, 37, 38, 39, 40, 41, 42, 43, 44
T0, T1, T2, T3, T4, T5 = 45, 46, 47, 48, 49, 50
S_TMP = 51
S_C0 = 52
S_SLOTA, S_SLOTW, S_CNT, S_KA, S_KW, S_SPIN = 58, 59, 60, 61, 62, 63
S_SEL, S_VAL, S_VAL0 = 64, 72, 80
S_M1, S_M2, S_M3, S_DIAG = 88, 90, 92, 94
S_PB = 64
S_TB, S_HB, S_SB, S_SH = 70, 71, 72, 73
S_FLAGAT = 53 + 2
S_ST = 96
SPIN_MAX = 20000

OPT = {}

class Regs:
    def __init__(self, start, limit): self.n = start; self.limit = limit
    def get(self, k=1, align=1):
        self.n = (self.n + align - 1) // align * align
        r = self.n; self.n += k
        assert self.n <= self.limit, 'out of registers'
        return r

def cvt(dst, s0, s1): return f'v_cvt_pk_bf16_f32 v{dst}, v{s0}, v{s1}'
def mfma(d, A, B, c=None):
    cs = '0' if c is None else f'v[{c}:{c+3}]'
    return f'v_mfma_f32_16x16x32_bf16 v[{d}:{d+3}], v[{A}:{A+3}], v[{B}:{B+3}], {cs}'
def srd(r): return f's[{r}:{r+3}]'

def interleave(lists):
    out = []
    n = max(len(x) for x in lists)
    for i in range(n):
        for x in lists:
            if i < len(x): out.append(x[i])
    return out

def make_srd(a, r, size):
    a(f's_and_b32 s{r+1}, s{r+1}, 0xffff')
    a(f's_mov_b32 s{r+2}, {size}')
    a(f's_mov_b32 s{r+3}, {SRD3}')

V_ST = 8
class Stamps:
    n_per_layer = 12
    def put(self, a, idx, per_layer=True):
        if not OPT.get('stamps'): return
        a(f's_memrealtime s[{S_ST}:{S_ST+1}]')
        a('s_waitcnt lgkmcnt(0)')
        if per_layer:
            a(f's_mul_i32 s{S_ST+1}, s{S_L}, {self.n_per_layer}')
            a(f's_add_u32 s{S_ST+1}, s{S_ST+1}, {idx + 4}')
            a(f's_mov_b32 m0, s{S_ST+1}')
            a(f'v_writelane_b32 v{V_ST}, s{S_ST}, m0')
        else:
            a(f'v_writelane_b32 v{V_ST}, s{S_ST}, {idx}')
    def cycl(self, a, idx):
        if not OPT.get('stamps'): return
        a(f's_memtime s[{S_ST}:{S_ST+1}]')
        a('s_waitcnt lgkmcnt(0)')
        a(f's_mul_i32 s{S_ST+1}, s{S_L}, {self.n_per_layer}')
        a(f's_add_u32 s{S_ST+1}, s{S_ST+1}, {idx + 4}')
        a(f's_mov_b32 m0, s{S_ST+1}')
        a(f'v_writelane_b32 v{V_ST}, s{S_ST}, m0')
    def cyc(self, a, idx):
        if not OPT.get('stamps'): return
        a(f's_memtime s[{S_ST}:{S_ST+1}]')
        a('s_waitcnt lgkmcnt(0)')
        a(f'v_writelane_b32 v{V_ST}, s{S_ST}, {idx}')
    def flush(self, a):
        if not OPT.get('stamps'): return
        a(f's_lshl_b32 s{T0}, s2, 3')
        a(f's_add_u32 s{T0}, s{T0}, s{S_WAVE}')
        a(f's_lshl_b32 s{T0}, s{T0}, 8')
        a(f's_add_u32 s{T0}, s{T0}, {ST_OFF}')
        a('v_and_b32 v1, 63, v0')
        a('v_lshlrev_b32 v1, 2, v1')
        a(f'buffer_store_dword v{V_ST}, v1, {srd(S_WS)}, s{T0} offen')
        a('s_waitcnt vmcnt(0)')
ST = Stamps()

S_MK = 98
def lane_mask(gs, lines=(0, 1, 2, 3)):
    return sum(1 << (16 * w + g) for w in lines for g in gs)
def set_mask(a, m):
    a(f's_mov_b32 s{S_MK}, {m & 0xffffffff}'); a(f's_mov_b32 s{S_MK+1}, {m >> 32}')
def poll_issue(a, loads, vt):
    for n, (va, so) in enumerate(loads):
        a(f'buffer_load_dword v{vt+n}, v{va}, {srd(S_WS)}, s{so} offen sc1')
def poll_test(a, tag, nloads, vt, masked):
    for n in range(nloads):
        a(f'v_subrev_u32 v{vt+n}, s{tag}, v{vt+n}')
    if nloads == 2:
        a(f'v_max_u32 v{vt}, v{vt}, v{vt+1}')
    a(f'v_cmp_gt_u32 vcc, 8, v{vt}')
    if masked:
        a(f's_and_b64 s[{S_MK+2}:{S_MK+3}], vcc, s[{S_MK}:{S_MK+1}]')
        a(f's_cmp_eq_u64 s[{S_MK+2}:{S_MK+3}], s[{S_MK}:{S_MK+1}]')
    else:
        a('s_cmp_eq_u64 vcc, -1')
def poll(a, tag, loads, vt, code, mask=None):
    lp = a.uniq('poll'); dn = a.uniq('polled')
    if mask is not None: set_mask(a, mask)
    a(f's_mov_b32 s{S_SPIN}, 0')
    a.label(lp)
    poll_issue(a, loads, vt)
    a('s_waitcnt vmcnt(0)')
    poll_test(a, tag, len(loads), vt, mask is not None)
    a(f's_cbranch_scc1 {dn}')
    a(f's_add_u32 s{S_SPIN}, s{S_SPIN}, 1')
    a(f's_cmp_lt_u32 s{S_SPIN}, {SPIN_MAX}')
    a(f's_cbranch_scc1 {lp}')
    a(f'v_mov_b32 v{vt}, {code}')
    a(f's_mov_b32 s{S_SPIN}, 16')
    a(f'buffer_store_dword v{vt}, off, {srd(S_DBG)}, s{S_SPIN}')
    a.label(dn)

def order_b():
    late = OPT.get('late', [3, 11])
    o = [(4 + n) % 16 for n in range(16)]
    return [g for g in o if g not in late] + list(late)
def order_a():
    return OPT.get('order_a', [4, 5, 6, 7, 12, 13, 14, 15, 0, 8, 1, 9, 2, 10, 3, 11])
def set_ga(a):
    if OPT.get('rot', False):
        a(f's_add_u32 s{S_GA}, s{S_GB}, s{S_L}'); a(f's_and_b32 s{S_GA}, s{S_GA}, 7')
        a(f's_and_b32 s{T4}, s{S_GB}, 8'); a(f's_or_b32 s{S_GA}, s{S_GA}, s{T4}')

def flag_store(a, soff, tag, vt):
    a(f'v_mov_b32 v{vt}, s{tag}')
    a('s_mov_b64 exec, 1')
    a(f'buffer_store_dword v{vt}, off, {srd(S_WS)}, s{soff} sc1')
    a('s_mov_b64 exec, -1')

def set_layer_srds(a):
    a(f's_bitcmp1_b32 s{S_L}, 0')
    a(f's_cselect_b32 s{S_WQ}, s{P_BWQ}, s{P_AWQ}')
    a(f's_cselect_b32 s{S_WQ+1}, s{P_BWQ+1}, s{P_AWQ+1}')
    a(f's_cselect_b32 s{S_WO}, s{P_BWO}, s{P_AWO}')
    a(f's_cselect_b32 s{S_WO+1}, s{P_BWO+1}, s{P_AWO+1}')

class C: pass
def consumer_regs():
    c = C()
    R = Regs(10, 256)
    c.acc = {}
    for u in range(3):
        for f in range(2):
            for t in range(4): c.acc[u, f, t] = R.get(4, 4)
    c.accH = [R.get(4, 4), R.get(4, 4)]
    c.buf = []
    for b in range(2):
        d = {}
        for u in range(3):
            for f in range(2): d['w', u, f] = R.get(4, 4)
        for t in range(5): d['t', t] = R.get(4, 4)
        c.buf.append(d)
    c.buf0 = c.buf[0]['w', 0, 0]; c.buf1 = c.buf[1]['w', 0, 0]
    c.xr = {(tt, P): R.get(4, 4) for tt in range(2) for P in range(2)}
    c.M1 = [R.get(), R.get()]
    c.vXrow = R.get(); c.vFrag = R.get(); c.vStat = R.get()
    c.vWB = [R.get() for _ in range(4)]
    c.vWBh = [R.get() for _ in range(4)]
    c.vI = R.get()
    c.Vp = [R.get(10, 2), R.get(10, 2)]
    c.vA, c.vW0, c.vW1, c.vAb, c.vW0b, c.vW1b, c.tmp, c.lane = 1, 2, 3, 4, 5, 6, 7, 9
    c.vA0b, c.vA1b, c.vA1 = 10, 11, 254
    assert R.n <= 254
    c.top = R.n
    return c

def stats_and_store(a, c, store_x=True, b3=False):
    tb = c.buf0
    ones = tb; D = [tb + 4, tb + 8, tb + 12, tb + 16]
    for j in range(4): a(f'v_mov_b32 v{ones+j}, 0x3f803f80')
    if store_x:
        for tt in range(2):
            for P in range(2):
                r = c.xr[tt, P]
                a(f'buffer_store_dwordx4 v[{r}:{r+3}], v{c.vFrag}, {srd(S_WS)}, s{T0} offen offset:{2048*tt + 1024*P} sc1')
    if b3: a('s_barrier')
    for P in range(2):
        for tt in range(2):
            r = c.xr[tt, P]
            a(mfma(D[2*tt], ones, r, None if P == 0 else D[2*tt]))
            a(mfma(D[2*tt+1], r, r, None if P == 0 else D[2*tt+1]))
    for tt in range(2):
        s, g = D[2*tt], D[2*tt+1]
        a(f'v_cndmask_b32 v{s+1}, v{g}, v{g+1}, s[{S_M1}:{S_M1+1}]')
        a(f'v_cndmask_b32 v{s+1}, v{s+1}, v{g+2}, s[{S_M2}:{S_M2+1}]')
        a(f'v_cndmask_b32 v{s+1}, v{s+1}, v{g+3}, s[{S_M3}:{S_M3+1}]')
    a(f's_mov_b64 exec, s[{S_DIAG}:{S_DIAG+1}]')
    for tt in range(2):
        s = D[2*tt]
        a(f'buffer_store_dwordx2 v[{s}:{s+1}], v{c.vStat}, {srd(S_WS)}, s{T2} offen offset:{128*tt} sc1')
    a('s_mov_b64 exec, -1')

def swap_xr(a, c):
    for tt in range(2):
        for P in range(2):
            r = c.xr[tt, P]
            a(f'v_permlane16_swap_b32 v{r}, v{r+2}')
            a(f'v_permlane16_swap_b32 v{r+1}, v{r+3}')

def x_dst_offsets(a, Lreg_plus):
    a(f's_add_u32 s{T3}, s{S_L}, {Lreg_plus}')
    a(f's_lshl_b32 s{T0}, s{T3}, 22')
    a(f's_lshl_b32 s{T4}, s{S_RBB}, 18'); a(f's_add_u32 s{T0}, s{T0}, s{T4}')
    a(f's_lshl_b32 s{T4}, s{S_GB}, 14'); a(f's_add_u32 s{T0}, s{T0}, s{T4}')
    a(f's_lshl_b32 s{T4}, s{S_WAVE}, 12'); a(f's_add_u32 s{T0}, s{T0}, s{T4}')
    if X_OFF: a(f's_add_u32 s{T0}, s{T0}, {X_OFF}')
    a(f's_lshl_b32 s{T2}, s{T3}, 18')
    a(f's_lshl_b32 s{T4}, s{S_RBB}, 14'); a(f's_add_u32 s{T2}, s{T2}, s{T4}')
    a(f's_lshl_b32 s{T4}, s{S_GB}, 10'); a(f's_add_u32 s{T2}, s{T2}, s{T4}')
    a(f's_lshl_b32 s{T4}, s{S_WAVE}, 8'); a(f's_add_u32 s{T2}, s{T2}, s{T4}')
    a(f's_add_u32 s{T2}, s{T2}, {S_OFF}')

def xflag_off(a, dst):
    a(f's_lshl_b32 s{dst}, s{S_RBB}, 9')
    a(f's_lshl_b32 s{T4}, s{S_WAVE}, 7'); a(f's_add_u32 s{dst}, s{dst}, s{T4}')
    a(f's_lshl_b32 s{T4}, s{S_GB}, 2'); a(f's_add_u32 s{dst}, s{dst}, s{T4}')
    a(f's_add_u32 s{dst}, s{dst}, {FX_OFF}')

def row_offsets(a):
    a(f's_lshl_b32 s{T0}, s{S_RBB}, 7')
    a(f's_and_b32 s{T4}, s{S_WAVE}, 1'); a(f's_lshl_b32 s{T4}, s{T4}, 6'); a(f's_add_u32 s{T0}, s{T0}, s{T4}')
    a(f's_lshr_b32 s{T4}, s{S_WAVE}, 1'); a(f's_add_u32 s{T0}, s{T0}, s{T4}')
    a(f's_lshl_b32 s{T0}, s{T0}, 11')
    a(f's_lshl_b32 s{T4}, s{S_GB}, 7'); a(f's_add_u32 s{T0}, s{T0}, s{T4}')
    a(f's_add_u32 s{T1}, s{T0}, 65536')

def consumer_prologue(a, c):
    L = c.lane; tA, tB, tC, tD = c.buf0, c.buf0 + 1, c.buf0 + 2, c.buf0 + 3
    a(f'v_and_b32 v{L}, 63, v0')
    a(f'v_and_b32 v{c.vI}, 15, v{L}')
    a(f'v_lshrrev_b32 v{tB}, 4, v{L}')
    a(f'v_and_b32 v{tC}, 1, v{tB}'); a(f'v_lshlrev_b32 v{tC}, 1, v{tC}')
    a(f'v_lshrrev_b32 v{tD}, 1, v{tB}'); a(f'v_add_u32 v{tC}, v{tC}, v{tD}')
    a(f'v_lshlrev_b32 v{c.vXrow}, 4, v{tC}')
    a(f'v_lshl_add_u32 v{c.vXrow}, v{c.vI}, 12, v{c.vXrow}')
    a(f'v_lshlrev_b32 v{c.vFrag}, 8, v{tC}')
    a(f'v_lshl_add_u32 v{c.vFrag}, v{c.vI}, 4, v{c.vFrag}')
    a(f'v_lshlrev_b32 v{c.vStat}, 3, v{c.vI}')
    a(f'v_lshlrev_b32 v{c.vAb}, 4, v{L}')
    row_offsets(a)
    for tt in range(2):
        for P in range(2):
            r = c.xr[tt, P]
            a(f'buffer_load_dwordx4 v[{r}:{r+3}], v{c.vXrow}, {srd(S_AX)}, s{T0 if tt == 0 else T1} offen offset:{64*P}')
    a(f'v_lshrrev_b32 v{tC}, 2, v{c.vI}')
    a(f'v_lshl_add_u32 v{tD}, v{tB}, 3, v{tC}')
    a(f'v_lshlrev_b32 v{c.vW0b}, 7, v{tD}')
    a(f'v_and_b32 v{tD}, 3, v{c.vI}')
    a(f'v_lshl_add_u32 v{c.vW0b}, v{tD}, 3, v{c.vW0b}')
    a(f'v_lshrrev_b32 v{tC}, 1, v{tC}')
    a(f'v_and_b32 v{tD}, 1, v{tB}')
    a(f'v_lshl_add_u32 v{tC}, v{tD}, 1, v{tC}')
    for f in range(4):
        a(f'v_xor_b32 v{tD}, {f}, v{tC}')
        a(f'v_lshl_add_u32 v{c.vWB[f]}, v{tD}, 5, v{c.vW0b}')
        a(f'v_add_u32 v{c.vWBh[f]}, 0x10000, v{c.vWB[f]}')
    a(f's_lshl_b32 s{T0}, s{S_H}, 1')
    a(f'v_xor_b32 v{tC}, s{T0}, v{tC}')
    a(f'v_xor_b32 v{tD}, 1, v{tC}')
    a(f'v_lshl_add_u32 v{c.vW1b}, v{tD}, 5, v{c.vW0b}')
    a(f'v_lshl_add_u32 v{c.vW0b}, v{tC}, 5, v{c.vW0b}')
    if OPT.get('wb128', 0) & 1:
        a(f's_lshl_b32 s{T0}, s{S_H}, 11'); a(f'v_add_u32 v{c.vW0b}, s{T0}, v{c.vAb}')
    if OPT.get('wb128', 0) & 2:
        for f in range(4):
            a(f'v_add_u32 v{c.vWB[f]}, {1024 * f}, v{c.vAb}'); a(f'v_add_u32 v{c.vWBh[f]}, 0x10000, v{c.vWB[f]}')
    vK, tmpv = tA, tD
    a(f'v_lshlrev_b32 v{vK}, 2, v{tB}')
    for r in range(4):
        sel = S_SEL + 2*r; val = S_VAL + 2*r; val0 = S_VAL0 + 2*r
        a(f'v_add_u32 v{tmpv}, {r}, v{vK}')
        a(f'v_cmp_le_u32 s[{sel}:{sel+1}], v{tmpv}, v{c.vI}')
        a(f'v_sub_u32 v{tmpv}, v{c.vI}, v{tmpv}')
        a(f'v_and_b32 v{tmpv}, 15, v{tmpv}')
        a(f'v_cmp_gt_u32 s[{val}:{val+1}], 8, v{tmpv}')
        a(f's_and_b64 s[{val0}:{val0+1}], s[{val}:{val+1}], s[{sel}:{sel+1}]')
        a(f's_cmp_eq_u32 s{S_RBA}, 0')
        a(f's_cselect_b64 s[{val0}:{val0+1}], s[{val0}:{val0+1}], s[{val}:{val+1}]')
    a(f'v_mov_b32 v{tC}, 0xffff'); a(f'v_mov_b32 v{tA}, 0xffff0000')
    for j in range(2):
        s0 = S_SEL + 4*j; s1 = s0 + 2
        a(f'v_cndmask_b32 v{c.M1[j]}, 0, v{tC}, s[{s0}:{s0+1}]')
        a(f'v_cndmask_b32 v{tmpv}, 0, v{tA}, s[{s1}:{s1+1}]')
        a(f'v_or_b32 v{c.M1[j]}, v{c.M1[j]}, v{tmpv}')
    a(f'v_and_b32 v{tC}, 3, v{c.vI}')
    a(f'v_cmp_eq_u32 s[{S_M1}:{S_M1+1}], 1, v{tC}')
    a(f'v_cmp_eq_u32 s[{S_M2}:{S_M2+1}], 2, v{tC}')
    a(f'v_cmp_eq_u32 s[{S_M3}:{S_M3+1}], 3, v{tC}')
    a(f'v_lshrrev_b32 v{tC}, 2, v{c.vI}')
    a(f'v_cmp_eq_u32 s[{S_DIAG}:{S_DIAG+1}], v{tC}, v{tB}')
    a(f's_mov_b32 s{S_C0+2}, 0x3e8293ee')
    a(f's_mov_b32 s{S_C0+1}, 0xffff0000')
    a(f'v_lshrrev_b32 v{tC}, 1, v{c.vI}')
    a(f'v_xor_b32 v{tC}, v{tC}, v{tB}')
    a(f'v_lshlrev_b32 v{tC}, 4, v{tC}')
    a(f'v_lshl_add_u32 v{c.vA0b}, v{c.vI}, 7, v{tC}')
    a(f'v_xor_b32 v{c.vA1b}, 64, v{c.vA0b}')
    x_dst_offsets(a, 0)
    xflag_off(a, T5)
    a(f's_mov_b32 s{S_FLAGAT}, 2')
    a('s_waitcnt vmcnt(0)')
    ST.put(a, 1, False)
    stats_and_store(a, c, store_x=False)
    swap_xr(a, c)
    a('s_waitcnt lgkmcnt(0)')
    a(f's_add_u32 s{S_NONCE}, s{S_NONCE}, 256')
    a(f's_add_u32 s{S_TAG}, s{S_NONCE}, 1')
    ST.put(a, 2, False)

def x_poll_offs(a):
    a(f's_lshl_b32 s{T0}, s{S_RBA}, 9'); a(f's_add_u32 s{T0}, s{T0}, {FX_OFF}')
    a(f's_sub_u32 s{T3}, s{S_RBA}, 1'); a(f's_max_i32 s{T3}, s{T3}, 0')
    a(f's_lshl_b32 s{T1}, s{T3}, 9'); a(f's_add_u32 s{T1}, s{T1}, {FX_OFF}')
def o_poll_offs(a):
    a(f's_lshl_b32 s{T0}, s{S_RBB}, 9'); a(f's_add_u32 s{T0}, s{T0}, {FO_OFF}')
def pre_poll(a, c, kind):
    sk = a.uniq('prepoll_skip'); pv = c.buf1
    a(f's_cmp_lg_u32 s{S_WAVE}, 0')
    a(f's_cbranch_scc1 {sk}')
    a(f'v_lshrrev_b32 v{pv}, 4, v{c.lane}')
    a(f'v_lshlrev_b32 v{pv}, 7, v{pv}')
    a(f'v_lshl_add_u32 v{pv}, v{c.vI}, 2, v{pv}')
    if kind == 'x':
        x_poll_offs(a); poll_issue(a, [(pv, T0), (pv, T1)], pv + 1)
    else:
        o_poll_offs(a); poll_issue(a, [(pv, T0)], pv + 1)
    a.label(sk)
def finish_poll(a, c, kind, mask, code):
    sk = a.uniq('poll_skip'); pv = c.buf1
    a(f's_cmp_lg_u32 s{S_WAVE}, 0')
    a(f's_cbranch_scc1 {sk}')
    n = 2 if kind == 'x' else 1
    if OPT.get('prepoll'):
        set_mask(a, mask)
        poll_test(a, S_TAG, n, pv + 1, True)
        a(f's_cbranch_scc1 {sk}')
    a(f'v_lshrrev_b32 v{pv}, 4, v{c.lane}')
    a(f'v_lshlrev_b32 v{pv}, 7, v{pv}')
    a(f'v_lshl_add_u32 v{pv}, v{c.vI}, 2, v{pv}')
    if kind == 'x':
        x_poll_offs(a); poll(a, S_TAG, [(pv, T0), (pv, T1)], pv + 1, code, mask)
    else:
        o_poll_offs(a); poll(a, S_TAG, [(pv, T0)], pv + 1, code, mask)
    a.label(sk)

def poll_addr(a, c):
    a(f'v_lshrrev_b32 v{c.buf0}, 4, v{c.lane}')
    a(f'v_lshlrev_b32 v{c.buf0}, 7, v{c.buf0}')
    a(f'v_lshl_add_u32 v{c.buf0}, v{c.vI}, 2, v{c.buf0}')

def a_consumer(a, c, par):
    acc, accH, buf = c.acc, c.accH, c.buf
    vA, vW0, vW1, vA1 = c.vA, c.vW0, c.vW1, c.vA1
    tag = f'p{par}'
    a.label(f'a_cons_{tag}')
    for k, r in list(acc.items()) + [(0, accH[0]), (1, accH[1])]:
        for j in range(0, 4): a(f'v_mov_b32 v{r+j}, 0')
    a(f's_mov_b32 s{S_SLOTA}, 0'); a(f's_mov_b32 s{S_SLOTW}, {W0}')
    a(f'v_mov_b32 v{vA}, v{c.vA0b}')
    a(f'v_mov_b32 v{vA1}, v{c.vA1b}')
    a(f'v_add_u32 v{vW0}, s{S_SLOTW}, v{c.vW0b}')
    a(f'v_add_u32 v{vW1}, s{S_SLOTW}, v{c.vW1b}')
    def reads(b, ks):
        d = buf[b]; out = []
        for u in range(3):
            for f in range(2):
                vW = vW0 if f == 0 else vW1
                if OPT.get('wb128', 0) & 1:
                    r = d['w', u, f]
                    out.append(f'ds_read_b128 v[{r}:{r+3}], v{vW0} offset:{u*8192 + ks*4096 + f*1024}')
                    continue
                for j in range(2):
                    r = d['w', u, f] + 2 * j
                    out.append(f'ds_read_b64_tr_b16 v[{r}:{r+1}], v{vW} offset:{u*8192 + ks*4096 + j*512}')
        for t in range(5):
            tau = par * 4 + t if t < 4 else 8
            r = d['t', t]
            out.append(f'ds_read_b128 v[{r}:{r+3}], v{vA if ks == 0 else vA1} offset:{tau*2048}')
        if OPT.get('wb128', 0) & 1:
            wq = out[0:2]; wk = out[2:4]; wv = out[4:6]; tt = out[6:11]
            return wq[0:1] + tt[0:4] + wq[1:2] + wk + wv + tt[4:5]
        wq = out[0:4]; wk = out[4:8]; wv = out[8:12]; tt = out[12:17]
        return wq[0:2] + tt[0:4] + wq[2:4] + wk + wv + tt[4:5]
    def mfmas(b, halo_first=False):
        d = buf[b]; out = []; h = []
        for u in range(3):
            for f in range(2):
                for t in range(4):
                    cc = acc[u, f, t]; w = d['w', u, f]; x = d['t', t]
                    A, B = (w, x) if u < 2 else (x, w)
                    out.append(mfma(cc, A, B, cc))
        for f in range(2):
            cc = accH[f]; x = d['t', 4]
            A, B = (d['w', 1, f], x) if par == 0 else (x, d['w', 2, f])
            h.append(mfma(cc, A, B, cc))
        return h + out if halo_first else out + h
    def step(ms, fill, late=()):
        fl = list(fill) + list(late)
        for i, x in enumerate(ms):
            a(x)
            if i < len(fl): a(fl[i])
        for x in fl[len(ms):]: a(x)
    adv = [f's_add_u32 s{S_SLOTA}, s{S_SLOTA}, {A_SLOT}',
           f's_add_u32 s{S_SLOTW}, s{S_SLOTW}, {W_SLOT}',
           f's_cmp_eq_u32 s{S_SLOTA}, {3 * A_SLOT}',
           f's_cselect_b32 s{S_SLOTA}, 0, s{S_SLOTA}'] + ([
           f's_cmp_eq_u32 s{S_SLOTW}, {W0 + NW * W_SLOT}'] if NW != 3 else []) + [
           f's_cselect_b32 s{S_SLOTW}, {W0}, s{S_SLOTW}',
           f'v_add_u32 v{vA}, s{S_SLOTA}, v{c.vA0b}',
           f'v_add_u32 v{vA1}, s{S_SLOTA}, v{c.vA1b}',
           f'v_add_u32 v{vW0}, s{S_SLOTW}, v{c.vW0b}',
           f'v_add_u32 v{vW1}, s{S_SLOTW}, v{c.vW1b}']
    a(f's_mov_b32 s{S_CNT}, 0')
    a(f's_cmp_eq_u32 s{S_L}, 0')
    a(f's_cbranch_scc1 a_first_{tag}')
    if not OPT.get('sx'):
        finish_poll(a, c, 'x', lane_mask(order_a()[:OPT.get('xg1', 4)]), 0x101)
        a('s_barrier')
    a.label(f'a_first_{tag}')
    ST.put(a, 0)
    a('s_barrier')
    ST.put(a, 1); ST.cycl(a, 10)
    for x in reads(0, 0): a(x)
    a('s_waitcnt lgkmcnt(0)')
    lp = f'ac_loop_{tag}'
    a.label(lp)
    step(mfmas(0), reads(1, 1), adv)
    a('s_waitcnt lgkmcnt(0)')
    a('s_barrier')
    step(mfmas(1), reads(0, 0), [f's_cmp_eq_u32 s{S_CNT}, s{S_FLAGAT}', f's_cbranch_scc1 a_flag_{tag}\na_flag_back_{tag}:',
                                 f's_add_u32 s{S_CNT}, s{S_CNT}, 1', f's_cmp_lt_u32 s{S_CNT}, 15'])
    a('s_waitcnt lgkmcnt(0)')
    a(f's_cbranch_scc1 {lp}')
    a(f's_branch a_last_{tag}')
    a.label(f'a_flag_{tag}')
    a('s_waitcnt vmcnt(0)')
    flag_store(a, T5, S_TAG, c.tmp)
    a(f's_branch a_flag_back_{tag}')
    a.label(f'a_last_{tag}')
    step(mfmas(0), reads(1, 1))
    b0 = c.buf0
    colst = [b0 + 2*t for t in range(5)]
    csq = [b0 + 12, b0 + 16]; csk = [b0 + 20, b0 + 24]; csv = b0 + 10
    v4 = {0: (b0 + 28, b0 + 32), 1: (b0 + 36, b0 + 40)}
    b1 = c.buf1
    v4.update({2: (b1, b1 + 4), 3: (b1 + 8, b1 + 12), 4: (b1 + 16, b1 + 20)})
    vS, vS4, vC4, vC = vA, vW0, vW1, c.tmp
    pre = [f's_and_b32 s{T0}, s{S_L}, 1',
           f's_lshl_b32 s{T0}, s{T0}, 10',
           f's_lshl_b32 s{T1}, s{S_H}, 7',
           f's_add_u32 s{T0}, s{T0}, s{T1}',
           f's_add_u32 s{T0}, s{T0}, {CS0}',
           f'v_lshlrev_b32 v{vS}, 2, v{c.vI}',
           f'v_and_b32 v{vS4}, 0x30, v{c.lane}',
           f'v_add_u32 v{vC4}, s{T0}, v{vS4}',
           f'v_add_u32 v{vC}, s{T0}, v{vS}',
           f'v_add_u32 v{vS}, {NM0}, v{vS}',
           f'v_add_u32 v{vS4}, {NM0}, v{vS4}']
    for x in pre: a(x)
    a('s_waitcnt lgkmcnt(0)')
    a('s_barrier')
    def tile_of(t): return par * 4 + t if t < 4 else 8
    rd = []
    htile = 4
    if par == 0:
        rd += [f'ds_read_b32 v{colst[4]}, v{vS} offset:{8*64}', f'ds_read_b32 v{colst[4]+1}, v{vS} offset:{8*64 + 1024}']
    for f in range(2): rd.append(f'ds_read_b128 v[{csk[f]}:{csk[f]+3}], v{vC4} offset:{256 + 64*f}')
    for f in range(2): rd.append(f'ds_read_b32 v{csv+f}, v{vC} offset:{512 + 64*f}')
    v4order = [4, 0, 1, 2, 3] if par == 1 else [0, 1, 2, 3]
    slots = [v4[0], v4[1], v4[2], v4[3], v4[4]]
    v4m = {t: slots[n] for n, t in enumerate(v4order)}
    def v4read(t):
        return [f'ds_read_b128 v[{v4m[t][0]}:{v4m[t][0]+3}], v{vS4} offset:{tile_of(t)*64}',
                f'ds_read_b128 v[{v4m[t][1]}:{v4m[t][1]+3}], v{vS4} offset:{tile_of(t)*64 + 1024}']
    for t in v4order[:2]: rd += v4read(t)
    for t in range(4):
        rd += [f'ds_read_b32 v{colst[t]}, v{vS} offset:{tile_of(t)*64}', f'ds_read_b32 v{colst[t]+1}, v{vS} offset:{tile_of(t)*64 + 1024}']
    for f in range(2): rd.append(f'ds_read_b128 v[{csq[f]}:{csq[f]+3}], v{vC4} offset:{64*f}')
    step(mfmas(1, True), rd)
    for t in v4order[2:4]:
        for x in v4read(t): a(x)
    ST.put(a, 2); ST.cycl(a, 11)
    def fix_col(r, cs, pair, scale):
        o = []
        for j in (0, 2):
            o.append(f'v_pk_fma_f32 v[{r+j}:{r+j+1}], v[{cs+j}:{cs+j+1}], v[{pair}:{pair+1}], v[{r+j}:{r+j+1}] op_sel_hi:[1,0,1]')
        if scale:
            if OPT.get('nopk'):
                for j in range(4): o.append(f'v_mul_f32 v{r+j}, v{r+j}, v{pair+1}')
            else:
                for j in (0, 2):
                    o.append(f'v_pk_mul_f32 v[{r+j}:{r+j+1}], v[{pair}:{pair+1}], v[{r+j}:{r+j+1}] op_sel:[1,0] op_sel_hi:[1,1]')
        return o
    def fix_row(r, f, t):
        nm, rs = v4m[t]; o = []
        for j in (0, 2):
            if f == 1 and OPT.get('nopk'):
                for e in range(2): o.append(f'v_fma_f32 v{r+j+e}, v{nm+j+e}, v{csv+1}, v{r+j+e}')
                continue
            if f == 0: o.append(f'v_pk_fma_f32 v[{r+j}:{r+j+1}], v[{nm+j}:{nm+j+1}], v[{csv}:{csv+1}], v[{r+j}:{r+j+1}] op_sel_hi:[1,0,1]')
            else: o.append(f'v_pk_fma_f32 v[{r+j}:{r+j+1}], v[{csv}:{csv+1}], v[{nm+j}:{nm+j+1}], v[{r+j}:{r+j+1}] op_sel:[1,0,0] op_sel_hi:[1,1,1]')
        for j in (0, 2):
            o.append(f'v_pk_mul_f32 v[{r+j}:{r+j+1}], v[{r+j}:{r+j+1}], v[{rs+j}:{rs+j+1}]')
        return o
    a('s_waitcnt lgkmcnt(0)')
    H = accH[0]
    hs = []
    for f in range(2):
        s = fix_col(accH[f], csk[f], colst[4], True) if par == 0 else fix_row(accH[f], f, 4)
        hs.append(s)
    for x in interleave(hs): a(x)
    a(cvt(H, accH[0], accH[0] + 1)); a(cvt(H + 1, accH[0] + 2, accH[0] + 3))
    a(cvt(H + 2, accH[1], accH[1] + 1)); a(cvt(H + 3, accH[1] + 2, accH[1] + 3))
    vH = vA
    a(f'v_lshlrev_b32 v{vH}, 4, v{c.lane}')
    a(f's_lshl_b32 s{T0}, s{S_H}, 11')
    a(f's_add_u32 s{T0}, s{T0}, {HALO0}')
    a(f'v_add_u32 v{vH}, s{T0}, v{vH}')
    a(f'ds_write_b128 v{vH}, v[{H}:{H+3}] offset:{0 if par == 0 else 1024}')
    for t in v4order[4:]:
        for x in v4read(t): a(x)
    Qp = [acc[0, 0, t] for t in range(4)]
    Kp = [accH[1]] + [acc[1, 0, t] for t in range(4)]
    Vp = c.Vp
    streams = []
    for t in range(4):
        s = []
        for f in range(2): s += fix_col(acc[1, f, t], csk[f], colst[t], True)
        q = acc[1, 0, t]; q1 = acc[1, 1, t]
        s += [cvt(q, q, q + 1), cvt(q + 1, q + 2, q + 3), cvt(q + 2, q1, q1 + 1), cvt(q + 3, q1 + 2, q1 + 3)]
        for f in range(2): s += fix_col(acc[0, f, t], csq[f], colst[t], False)
        q = acc[0, 0, t]; q1 = acc[0, 1, t]
        s += [cvt(q, q, q + 1), cvt(q + 1, q + 2, q + 3), cvt(q + 2, q1, q1 + 1), cvt(q + 3, q1 + 2, q1 + 3)]
        s.append(f'v_mul_f32 v{colst[t]+1}, s{S_C0+2}, v{colst[t]+1}')
        streams.append(s)
    for x in interleave(streams): a(x)
    if OPT.get('dump'):
        dk = a.uniq('dump_skip')
        a(f's_cmp_lg_u32 s{S_L}, 0'); a(f's_cbranch_scc1 {dk}')
        a(f's_lshl_b32 s{T0}, s2, 2'); a(f's_add_u32 s{T0}, s{T0}, s{S_WAVE}'); a(f's_mul_i32 s{T0}, s{T0}, 16384'); a(f's_add_u32 s{T0}, s{T0}, {64 * MB}')
        a(f'v_lshlrev_b32 v{vW0}, 2, v{c.lane}')
        regs = [acc[1, 0, t] + j for t in range(4) for j in range(4)] + [acc[0, 0, t] + j for t in range(4) for j in range(4)] + [colst[t] + j for t in range(4) for j in range(2)]
        regs += [acc[2, f, t] + j for f in range(2) for t in range(4) for j in range(4)][:24]
        for n, r in enumerate(regs):
            if n % 16 == 0 and n: a(f's_add_u32 s{T0}, s{T0}, 4096')
            a(f'buffer_store_dword v{r}, v{vW0}, {srd(S_WS)}, s{T0} offen offset:{(n % 16) * 256}')
        a('s_waitcnt vmcnt(0)')
        a.label(dk)
    a('s_waitcnt lgkmcnt(0)')
    a('s_barrier')
    if par == 0:
        a(f'v_xor_b32 v{vW0}, {8*16}, v{vH}')
        a(f'v_xor_b32 v{vW1}, {32*16}, v{vH}')
        vKH, vVH = vW0, vW1
    else:
        vKH = vVH = vH
    a(f'ds_read_b128 v[{Kp[0]}:{Kp[0]+3}], v{vKH}')
    a(f'ds_read_b64 v[{Vp[0]}:{Vp[0]+1}], v{vVH} offset:1024')
    a(f'ds_read_b64 v[{Vp[1]}:{Vp[1]+1}], v{vVH} offset:1032')
    S0 = [acc[0, 1, t] for t in range(4)]; S1 = [acc[1, 1, t] for t in range(4)]
    smm = []
    for t in range(4): smm.append(mfma(S1[t], Kp[t+1], Qp[t]))
    for t in range(1, 4): smm.append(mfma(S0[t], Kp[t], Qp[t]))
    vfix = []
    for t in range(4):
        for f in range(2):
            r = acc[2, f, t]
            vfix.append(fix_row(r, f, t) + [cvt(Vp[f] + 2 + 2*t, r, r + 1), cvt(Vp[f] + 3 + 2*t, r + 2, r + 3)])
    vf = interleave(vfix[0:4]) + interleave(vfix[4:8])
    n = 0
    for x in smm:
        a(x)
        for y in vf[n:n+2]: a(y)
        n += 2
    for y in vf[n:]: a(y)
    a('s_waitcnt lgkmcnt(0)')
    a(mfma(S0[0], Kp[0], Qp[0]))
    vNEG = c.tmp
    a(f'v_mov_b32 v{vNEG}, 0xf149f2ca')
    streams = []
    for t in range(4):
        s = []
        m = S0[t]; tp = acc[1, 0, t]; Pop = acc[2, 0, t]; cq = colst[t] + 1
        Ob = [acc[0, 0, t], S1[t]]
        val = (S_VAL0 if t == 0 else S_VAL)
        for r in range(4):
            s.append(f'v_cndmask_b32 v{m+r}, v{S0[t]+r}, v{S1[t]+r}, s[{S_SEL+2*r}:{S_SEL+2*r+1}]')
        for r in range(4):
            s.append(f'v_cndmask_b32 v{m+r}, v{vNEG}, v{m+r}, s[{val+2*r}:{val+2*r+1}]')
        mx, t2 = tp, tp + 1
        s.append(f'v_max3_f32 v{mx}, v{m}, v{m+1}, v{m+2}')
        s.append(f'v_max_f32 v{mx}, v{mx}, v{m+3}')
        for sw in ('16', '32'):
            s.append(f'v_mov_b32 v{t2}, v{mx}')
            s.append(f'v_permlane{sw}_swap_b32 v{mx}, v{t2}')
            s.append(f'v_max_f32 v{mx}, v{mx}, v{t2}')
        s.append(f'v_mul_f32 v{mx}, v{mx}, v{cq}')
        for r in range(4): s.append(f'v_fma_f32 v{m+r}, v{m+r}, v{cq}, -v{mx}')
        for r in range(4): s.append(f'v_exp_f32 v{m+r}, v{m+r}')
        sm = tp
        s.append(f'v_add_f32 v{sm}, v{m}, v{m+1}')
        s.append(f'v_add_f32 v{t2}, v{m+2}, v{m+3}')
        s.append(f'v_add_f32 v{sm}, v{sm}, v{t2}')
        for sw in ('16', '32'):
            s.append(f'v_mov_b32 v{t2}, v{sm}')
            s.append(f'v_permlane{sw}_swap_b32 v{sm}, v{t2}')
            s.append(f'v_add_f32 v{sm}, v{sm}, v{t2}')
        s.append(f'v_rcp_f32 v{sm}, v{sm}')
        for r in range(4): s.append(f'v_mul_f32 v{m+r}, v{m+r}, v{sm}')
        s.append(cvt(tp + 2, m, m + 1)); s.append(cvt(tp + 3, m + 2, m + 3))
        for j in range(2):
            s.append(f'v_bfi_b32 v{Pop+j}, v{c.M1[j]}, 0, v{tp+2+j}')
            s.append(f'v_and_b32 v{Pop+2+j}, v{c.M1[j]}, v{tp+2+j}')
        for f in range(2):
            s.append(mfma(Ob[f], Vp[f] + 2*t, Pop))
        o = tp
        s.append(cvt(o, Ob[0], Ob[0] + 1)); s.append(cvt(o + 1, Ob[0] + 2, Ob[0] + 3))
        s.append(cvt(o + 2, Ob[1], Ob[1] + 1)); s.append(cvt(o + 3, Ob[1] + 2, Ob[1] + 3))
        s.append(f'v_permlane16_swap_b32 v{o}, v{o+2}')
        s.append(f'v_permlane16_swap_b32 v{o+1}, v{o+3}')
        s.append(f'buffer_store_dwordx4 v[{o}:{o+3}], v{c.vFrag}, {srd(S_WS)}, s{T0 + t} offen sc1')
        streams.append(s)
    a(f's_lshl_b32 s{T0}, s{S_L}, 22')
    a(f's_lshl_b32 s{T4}, s{S_RBA}, 18'); a(f's_add_u32 s{T0}, s{T0}, s{T4}')
    a(f's_lshl_b32 s{T4}, s{S_GA}, 11'); a(f's_add_u32 s{T0}, s{T0}, s{T4}')
    a(f's_lshl_b32 s{T4}, s{S_H}, 10'); a(f's_add_u32 s{T0}, s{T0}, s{T4}')
    a(f's_add_u32 s{T0}, s{T0}, {O_OFF + par * 4 * 32768}')
    for t in range(1, 4): a(f's_add_u32 s{T0+t}, s{T0}, {32768*t}')
    for x in interleave(streams): a(x)
    ST.put(a, 3)
    if not OPT.get('so'):
        a(f's_lshl_b32 s{T5}, s{S_RBA}, 9')
        a(f's_lshl_b32 s{T4}, s{S_WAVE}, 7'); a(f's_add_u32 s{T5}, s{T5}, s{T4}')
        a(f's_lshl_b32 s{T4}, s{S_GA}, 2'); a(f's_add_u32 s{T5}, s{T5}, s{T4}')
        a(f's_add_u32 s{T5}, s{T5}, {FO_OFF}')
        a('s_waitcnt vmcnt(0)')
        flag_store(a, T5, S_TAG, c.tmp)
        ST.put(a, 4)
    a('s_branch b_cons')

DEPTH = 16
S_LINK, S_ANY, S_NFIX = 12, 14, 15
SLOT_S = [28, 29, 30, 31, 32, 33, 34, 35, 8, 9, 10, 11]
def b_consumer(a, c):
    so = OPT.get('so'); sx = OPT.get('sx')
    NR = OPT.get('nr', 9) if so else DEPTH
    R = Regs(10, 204)
    acc = {(f, t): R.get(4, 4) for f in range(4) for t in range(2)}
    wb = [[R.get(4, 4) for f in range(4)] for b in range(2)]
    ring = [[R.get(4, 4) for t in range(2)] for d in range(NR)]
    vW = c.vWB; vWh = c.vWBh
    order = order_b()
    heads = [2 * g + j for g in order for j in range(2)]
    a.label('b_cons')
    for tt in range(2):
        for f in range(4):
            x = c.xr[tt, f >> 1] + 2 * (f & 1); r = acc[f, tt]
            for j in range(2):
                a(f'v_lshlrev_b32 v{r+2*j}, 16, v{x+j}')
                a(f'v_and_b32 v{r+2*j+1}, s{S_C0+1}, v{x+j}')
    a(f's_lshl_b32 s{S_KA}, s{S_L}, 22')
    a(f's_lshl_b32 s{T4}, s{S_RBB}, 18'); a(f's_add_u32 s{S_KA}, s{S_KA}, s{T4}')
    a(f's_lshl_b32 s{T4}, s{S_WAVE}, 16'); a(f's_add_u32 s{S_KA}, s{S_KA}, s{T4}')
    a(f's_add_u32 s{S_KA}, s{S_KA}, {O_OFF}')
    a(f's_add_u32 s{S_KW}, s{S_KA}, 32768')
    if so:
        vAb2 = R.get(); vM = R.get(); vM2 = R.get()
        a(f'v_add_u32 v{vAb2}, 32768, v{c.vAb}')
    def slot_loads(d):
        return [f'buffer_load_dwordx4 v[{ring[d][t]}:{ring[d][t]+3}], v{(c.vAb, vAb2)[t]}, {srd(S_WS)}, s{SLOT_S[d]} offen sc1' for t in range(2)]
    def tok_load(n):
        o = []; hd = heads[n]
        if so:
            return [f's_add_u32 s{SLOT_S[n % NR]}, s{S_KA}, {hd * 1024}'] + slot_loads(n % NR)
        if n % 2 == 0:
            o += [f's_add_u32 s{T0}, s{S_KA}, {(hd >> 2) * 4096}', f's_add_u32 s{T1}, s{S_KW}, {(hd >> 2) * 4096}']
        for t in range(2):
            r = ring[n % NR][t]
            o.append(f'buffer_load_dwordx4 v[{r}:{r+3}], v{c.vAb}, {srd(S_WS)}, s{T0 + t} offen offset:{1024*(hd & 3)} sc1')
        return o
    def mark_test(d, vm_):
        p, q = ring[d]
        if OPT.get('sochk', 'full') == 'one':
            return [f'v_max_u32 v{vm_}, v{p}, v{q}', f'v_cmp_eq_u32 vcc, -1, v{vm_}']
        return [f'v_max3_u32 v{vm_}, v{p}, v{p+1}, v{p+2}', f'v_max3_u32 v{vm_+0}, v{vm_}, v{p+3}, v{q}',
                f'v_max3_u32 v{vm_}, v{vm_}, v{q+1}, v{q+2}', f'v_max_u32 v{vm_}, v{vm_}, v{q+3}',
                f'v_cmp_eq_u32 vcc, -1, v{vm_}']
    stubs = []
    def fix_branch(n):
        stubs.append(n)
        return f's_cbranch_vccnz so_stub_{n}\nso_back_{n}:'
    def wreads(n):
        b = n & 1; out = []; hd = heads[n]
        for f in range(4):
            if OPT.get('wb128', 0) & 2:
                r = wb[b][f]
                out.append(f'ds_read_b128 v[{r}:{r+3}], v{(vW if hd < 16 else vWh)[f]} offset:{(hd % 16)*4096}')
                continue
            for j in range(2):
                r = wb[b][f] + 2*j
                out.append(f'ds_read_b64_tr_b16 v[{r}:{r+1}], v{(vW if hd < 16 else vWh)[f]} offset:{(hd % 16)*4096 + j*512}')
        return out
    if so:
        w_ = OPT.get('so_wait', 0)
        if w_ is not None: a(f's_waitcnt vmcnt({w_})')
        ST.put(a, 4)
    else:
        finish_poll(a, c, 'o', lane_mask(order[:DEPTH // 2]), 0x200)
    a('s_barrier')
    ST.put(a, 5)
    D0 = min(NR, OPT.get('d0', 8))
    for n in range(D0):
        for x in tok_load(n): a(x)
    if so:
        for n in range(D0, NR): a(tok_load(n)[0])
    ptr = D0
    for x in wreads(0): a(x)
    nlate = len(OPT.get('late', [3, 11]))
    if so:
        a(f's_waitcnt vmcnt({2 * (D0 - 1)})')
        for x in mark_test(0, vM): a(x)
        a(fix_branch(0))
    for n in range(32):
        b = n & 1
        nxt = wreads(n + 1) if n + 1 < 32 else []
        later = ptr - n - 1
        a(f's_waitcnt lgkmcnt(0)' if so else f's_waitcnt vmcnt({2*later}) lgkmcnt(0)')
        if n == 0: ST.put(a, 6)
        ms = []
        for f in range(4):
            for t in range(2):
                cc = acc[f, t]; w = wb[b][f]; x = ring[n % NR][t]
                ms.append(mfma(cc, w, x, cc))
        new = min(32, n + NR, ptr + OPT.get('brate', 1))
        gaps = [[] for _ in range(8)]
        br = OPT.get('br', (0, 1, 2, 3) if OPT.get('wb128', 0) & 2 else (0, 0, 1, 1, 2, 2, 3, 3))
        bl = OPT.get('bl', (3, 4) if so else (4, 6))
        items = []
        for m in range(ptr, new):
            pre = ['s_barrier'] if (not so and (m == DEPTH or m == 32 - 2 * nlate)) else []
            tl = tok_load(m)
            items.append(pre + tl[:-1]); items.append(tl[-1:])
        if len(items) > len(bl): bl = (4, 5, 6, 7, 7, 7, 7, 7)
        for i, x in enumerate(nxt): gaps[br[i]].append(x)
        for k, it in enumerate(items): gaps[bl[k]] += it
        if so and n + 1 < 32:
            mt = mark_test((n + 1) % NR, vM)
            g0 = OPT.get('cg', 5)
            gaps[g0].append(f's_waitcnt vmcnt({2 * (new - n - 2)})')
            if len(mt) == 2:
                gaps[g0].append(mt[0]); gaps[g0 + 1].append(mt[1])
            else:
                gaps[g0] += mt[0:2]; gaps[g0 + 1] += mt[2:5]
            gaps[7].append(fix_branch(n + 1))
        if n == 31 and sx:
            pass
        for i, m in enumerate(ms):
            a(m)
            for x in gaps[i]: a(x)
        ptr = new
    if not sx: a('s_barrier')
    ST.put(a, 7)
    x_dst_offsets(a, 1)
    for tt in range(2):
        for f in range(4):
            x = c.xr[tt, f >> 1] + 2 * (f & 1); r = acc[f, tt]
            a(cvt(x, r, r + 1)); a(cvt(x + 1, r + 2, r + 3))
    swap_xr(a, c)
    a(f's_cmp_eq_u32 s{S_L}, 3')
    a('s_cbranch_scc1 b_final')
    stats_and_store(a, c, b3=sx)
    swap_xr(a, c)
    xflag_off(a, T5)
    a(f's_add_u32 s{S_L}, s{S_L}, 1')
    a(f's_add_u32 s{S_TAG}, s{S_TAG}, 1')
    set_ga(a)
    ST.put(a, 8 - 12)
    a(f's_mov_b32 s{S_FLAGAT}, -1')
    a(f'v_mov_b32 v{c.vA0b}, v{c.vAb}')
    a(f'v_add_u32 v{c.vA1b}, 1024, v{c.vAb}')
    if sx:
        a(f's_waitcnt vmcnt({OPT.get("sx_wait", 2)})')
        a('s_barrier')
    a('s_waitcnt vmcnt(0)')
    flag_store(a, T5, S_TAG, c.tmp)
    ST.put(a, 9 - 12)
    a(f's_bitcmp1_b32 s{S_WAVE}, 0')
    a('s_cbranch_scc1 a_cons_p1')
    a('s_branch a_cons_p0')
    if so:
        for n in stubs:
            a.label(f'so_stub_{n}')
            a(f's_call_b64 s[{S_LINK}:{S_LINK+1}], so_fix')
            a(f's_branch so_back_{n}')
        a.label('so_fix')
        a(f's_mov_b32 s{S_SPIN}, 0')
        if OPT.get('stamps'): a(f's_add_u32 s{S_NFIX}, s{S_NFIX}, 1')
        a.label('so_fix_loop')
        a('s_waitcnt vmcnt(0)')
        a(f's_mov_b32 s{S_ANY}, 0')
        for d in range(NR):
            sk = f'so_fix_ok_{d}'
            for x in mark_test(d, vM2): a(x)
            a(f's_cbranch_vccz {sk}')
            for x in slot_loads(d): a(x)
            a(f's_mov_b32 s{S_ANY}, 1')
            a.label(sk)
        a(f's_cmp_eq_u32 s{S_ANY}, 0')
        a('s_cbranch_scc1 so_fix_done')
        if OPT.get('stamps'): a(f's_add_u32 s{S_NFIX}, s{S_NFIX}, 65536')
        a(f's_add_u32 s{S_SPIN}, s{S_SPIN}, 1')
        a(f's_cmp_lt_u32 s{S_SPIN}, {SPIN_MAX}')
        a('s_cbranch_scc1 so_fix_loop')
        a(f'v_mov_b32 v{vM2}, 0x210')
        a(f's_mov_b32 s{S_SPIN}, 16')
        a(f'buffer_store_dword v{vM2}, off, {srd(S_DBG)}, s{S_SPIN}')
        a('s_waitcnt vmcnt(0)')
        a.label('so_fix_done')
        a('s_nop 4')
        a(f's_setpc_b64 s[{S_LINK}:{S_LINK+1}]')
    a.label('b_final')
    a(f's_or_b32 s{T4}, s2, s{S_WAVE}')
    a(f's_cmp_lg_u32 s{T4}, 0')
    a('s_cbranch_scc1 b_final_rows')
    a(f's_mov_b32 s{T5}, {E_OFF}')
    flag_store(a, T5, S_NONCE, c.tmp)
    a.label('b_final_rows')
    row_offsets(a)
    for tt in range(2):
        for P in range(2):
            r = c.xr[tt, P]
            a(f'buffer_store_dwordx4 v[{r}:{r+3}], v{c.vXrow}, {srd(S_OUT)}, s{T0 if tt == 0 else T1} offen offset:{64*P} {OPT.get("omod", "")}')
    ST.put(a, 8)
    if OPT.get('stamps'): a('s_waitcnt vmcnt(0)')
    ST.put(a, 9)
    ST.cyc(a, 61)
    if OPT.get('stamps') and OPT.get('so'): a(f'v_writelane_b32 v{V_ST}, s{S_NFIX}, 59')
    ST.flush(a)
    a('s_endpgm')

class VM:
    def __init__(self): self.q = []; self.nt = 0; self.nw = 0
    def add(self, name, n): self.q.append([name, n])
    def wait(self, a, name):
        if not any(nm == name for nm, n in self.q): return
        idx = max(i for i, (nm, n) in enumerate(self.q) if nm == name)
        later = sum(n for nm, n in self.q[idx+1:])
        assert later <= 63
        a(f's_waitcnt vmcnt({later})')
        self.q = self.q[idx+1:]
    def wait_any(self, a, names):
        idxs = [i for i, (nm, n) in enumerate(self.q) if nm in names]
        if not idxs: return
        idx = max(idxs)
        later = sum(n for nm, n in self.q[idx+1:])
        assert later <= 63
        a(f's_waitcnt vmcnt({later})')
        self.q = self.q[idx+1:]
    def clear(self): self.q = []

def lane_consts(a):
    a('v_and_b32 v9, 63, v0')
    a('v_lshrrev_b32 v10, 3, v9')
    a('v_and_b32 v11, 7, v9')
    a('v_lshrrev_b32 v12, 4, v9')
    a('v_and_b32 v13, 15, v9')
    a('v_lshlrev_b32 v1, 4, v9')
def swz_regs(a, dst, row):
    for par in range(2):
        a('v_and_b32 v14, 1, v12')
        a(f'v_or_b32 v14, {2*par}, v14')
        a('v_lshlrev_b32 v14, 1, v14')
        a('v_xor_b32 v14, v14, v11')
        a('v_lshlrev_b32 v14, 4, v14')
        if row == 6144:
            a('v_mul_u32_u24 v15, 6144, v10')
            a(f'v_add_u32 v{dst[par]}, v14, v15')
        else:
            a(f'v_lshl_add_u32 v{dst[par]}, v10, {row.bit_length() - 1}, v14')

WO_AVAIL = {13: list(range(54, 78)), 14: list(range(18, 36)) + list(range(78, 102)),
            15: list(range(36, 54)) + list(range(102, 126)), 16: list(range(0, 18)) + [126, 127]}
S_WOB = 75
def wo_base(a):
    a(f's_and_b32 s{S_WOB}, s{S_L}, 1'); a(f's_lshl_b32 s{S_WOB}, s{S_WOB}, 21')
    a(f's_lshl_b32 s{T4}, s{S_GB}, 17'); a(f's_add_u32 s{S_WOB}, s{S_WOB}, s{T4}')
    a(f's_add_u32 s{S_WOB}, s{S_WOB}, {WOP_OFF}')
def wo_pieces(a, p, k, vT):
    lst = WO_AVAIL[k]; n = len(lst)
    mine = lst[p * n // 3:(p + 1) * n // 3]
    i = 0
    while i < len(mine):
        j = i
        while j + 1 < len(mine) and mine[j + 1] == mine[j] + 1 and j + 1 - i < 4: j += 1
        a(f's_mov_b32 m0, {mine[i] * 1024}')
        a(f's_add_u32 s{S_TMP}, s{S_WOB}, {mine[i] * 1024}')
        for q in range(j + 1 - i):
            a(f'buffer_load_dwordx4 v{vT}, {srd(S_WS)}, s{S_TMP} offen offset:{1024 * q} lds')
        i = j + 1
    return len(mine)

def l0st(a, first, s, vm, static=False):
    Lw = OPT.get('l0st')
    if Lw is None: return
    if static:
        if not first: return
    elif first != (Lw == 0): return
    def st2(idx):
        sk = a.uniq('st2_skip')
        a(f's_cmp_lg_u32 s{S_L}, {Lw}'); a(f's_cbranch_scc1 {sk}')
        a(f's_memrealtime s[{S_ST}:{S_ST+1}]'); a('s_waitcnt lgkmcnt(0)'); a(f'v_writelane_b32 v24, s{S_ST}, {idx}')
        a.label(sk)
    st2(s)
    vm.wait_any(a, (f'W{s+1}',)); st2(16 + s)
    vm.wait_any(a, (f'T{s+1}',)); st2(32 + s)
def l0st_flush(a):
    if OPT.get('l0st') is not None:
        a(f's_add_u32 s{T0}, s{T0}, {1 << 20}')
        a(f'buffer_store_dword v24, v1, {srd(S_WS)}, s{T0} offen')
        a('s_waitcnt vmcnt(0)')

def loader(a, p):
    vT, vHalo, vPoll = 1, 2, 5
    vW = [3, 4]
    vTL = [6, 7]
    NW0 = OPT.get('nw0', NW)
    tagn = f'w{p}'
    a.label(f'prod_{tagn}')
    if OPT.get('lprio'): a(f's_setprio {OPT["lprio"]}')
    lane_consts(a)
    if OPT.get('stamps'): a('s_mov_b32 s76, 0')
    swz_regs(a, vW, 6144)
    for half in range(2):
        a(f'v_or_b32 v14, {4*half}, v12')
        a('v_xor_b32 v14, v14, v11')
        a('v_lshlrev_b32 v14, 4, v14')
        a(f'v_lshl_add_u32 v{vTL[half]}, v10, 12, v14')
    order = order_a()
    vm = VM()
    def adv_w():
        a(f's_add_u32 s{S_SLOTW}, s{S_SLOTW}, {W_SLOT}')
        a(f's_cmp_eq_u32 s{S_SLOTW}, {W0 + NW * W_SLOT}')
        a(f's_cselect_b32 s{S_SLOTW}, {W0}, s{S_SLOTW}')
    def adv_t():
        a(f's_add_u32 s{S_SLOTA}, s{S_SLOTA}, {A_SLOT}')
        a(f's_cmp_eq_u32 s{S_SLOTA}, {3 * A_SLOT}')
        a(f's_cselect_b32 s{S_SLOTA}, 0, s{S_SLOTA}')
    def reset_w():
        vm.nw = 0
        a(f's_mov_b32 s{S_SLOTW}, {W0}')
    def issue_W(name, first):
        kw = order[vm.nw]; vm.nw += 1
        if first:
            for pp in range(8):
                a(f's_add_u32 m0, s{S_SLOTW}, {p * 8192 + pp * 1024}')
                a(f's_add_u32 s{S_TMP}, s{S_PB}, {kw * 64 * 6144 + pp * 8 * 6144}')
                a(f'buffer_load_dwordx4 v{vW[pp & 1]}, {srd(S_WQ)}, s{S_TMP} offen {OPT.get("wmod", "")} lds')
        else:
            for base in (0, 4096):
                a(f's_add_u32 m0, s{S_SLOTW}, {p * 8192 + base}')
                a(f's_add_u32 s{S_TMP}, s{S_PB}, {kw * W_SLOT + base}')
                for j in range(4):
                    a(f'buffer_load_dwordx4 v{vT}, {srd(S_WS)}, s{S_TMP} offen offset:{1024*j} {OPT.get("wmod", "")} lds')
        adv_w()
        vm.add(name, 8)
    def T_loads(k, first, slot):
        def m0(off):
            a(f's_add_u32 m0, s{S_SLOTA}, {off}' if slot is None else f's_mov_b32 m0, {slot + off}')
        if first:
            for tau in range(3 * p, 3 * p + 3):
                for half in range(2):
                    m0(tau * 2048 + half * 1024)
                    if tau < 8:
                        row = (tau & 3) * 32 + (tau >> 2) + 16 * half
                        a(f's_add_u32 s{S_TMP}, s{S_TB}, {row * 2048 + k * 128}')
                    else:
                        a(f's_add_u32 s{S_TMP}, s{S_HB}, {(112 + half) * 2048 + k * 128}')
                    a(f'buffer_load_dwordx4 v{vTL[half]}, {srd(S_AX)}, s{S_TMP} offen lds')
        else:
            groups = ((0, 4), (4096, 2)) if p < 2 else ((0, 4),)
            for base, cnt in groups:
                m0(p * 6144 + base)
                a(f's_add_u32 s{S_TMP}, s{S_TB}, {k * 16384 + p * 6144 + base}')
                for j in range(cnt):
                    a(f'buffer_load_dwordx4 v{vT}, {srd(S_WS)}, s{S_TMP} offen offset:{1024*j} sc1 lds')
            if p == 2:
                m0(16384)
                a(f's_add_u32 s{S_TMP}, s{S_HB}, {k * 16384}')
                for ks in range(2):
                    a(f'buffer_load_dwordx4 v{vHalo}, {srd(S_WS)}, s{S_TMP} offen offset:{1024*ks} sc1 lds')
    def issue_T(name, first):
        k = order[vm.nt]; vm.nt += 1
        T_loads(k, first, None)
        adv_t()
        vm.add(name, 6)
    S_NRT = 76
    def check_T(n):
        slot = (n % 3) * A_SLOT; RD = 32; vM = 30
        lp = a.uniq('tchk'); ok = a.uniq('tchk_ok')
        a(f's_mov_b32 s{S_SPIN}, 0')
        a.label(lp)
        for j in range(6):
            a(f'ds_read_b128 v[{RD+4*j}:{RD+4*j+3}], v{vT} offset:{slot + p * 6144 + j * 1024}')
        regs = list(range(RD, RD + 24))
        if OPT.get('sxchk', 'full') == 'one': regs = regs[0::4]
        a('s_waitcnt lgkmcnt(0)')
        h = len(regs) // 2
        ch = []
        for c_, part in enumerate((regs[:h], regs[h:])):
            v = vM + c_; q = [f'v_max3_u32 v{v}, v{part[0]}, v{part[1]}, v{part[2]}']
            rest = part[3:]
            while len(rest) >= 2:
                q.append(f'v_max3_u32 v{v}, v{v}, v{rest[0]}, v{rest[1]}'); rest = rest[2:]
            if rest: q.append(f'v_max_u32 v{v}, v{v}, v{rest[0]}')
            ch.append(q)
        for x in interleave(ch): a(x)
        a(f'v_max_u32 v{vM}, v{vM}, v{vM+1}')
        a(f'v_cmp_eq_u32 vcc, -1, v{vM}')
        a(f's_cbranch_vccz {ok}')
        if OPT.get('stamps'): a(f's_add_u32 s{S_NRT}, s{S_NRT}, {1 << (8 * n)}')
        T_loads(order[n], False, slot)
        a('s_waitcnt vmcnt(0)')
        a(f's_add_u32 s{S_SPIN}, s{S_SPIN}, 1')
        a(f's_cmp_lt_u32 s{S_SPIN}, {SPIN_MAX}')
        a(f's_cbranch_scc1 {lp}')
        a(f'v_mov_b32 v{vM}, 0x110')
        a(f's_mov_b32 s{S_SPIN}, 16')
        a(f'buffer_store_dword v{vM}, off, {srd(S_DBG)}, s{S_SPIN}')
        a('s_waitcnt vmcnt(0)')
        a.label(ok)
    sx = OPT.get('sx'); so = OPT.get('so'); NS = OPT.get('xg1', 4)
    def stages(first):
        wo_base(a)
        for s in range(15):
            l0st(a, first, s, vm)
            vm.wait_any(a, (f'T{s+1}', f'W{s+1}'))
            if sx and not first and s + 1 < NS: check_T(s + 1)
            a('s_barrier')
            if s + 3 <= 15: issue_T(f'T{s+3}', first)
            if s + NW <= 15: issue_W(f'W{s+NW}', first)
            if s + 1 >= 13: vm.add(f'O{s+1}', wo_pieces(a, p, s + 1, vT))
        a('s_barrier')
        wo_pieces(a, p, 16, vT)
    a(f's_lshl_b32 s{S_PB}, s{S_GA}, 7')
    if p: a(f's_add_u32 s{S_PB}, s{S_PB}, {p * 2048}')
    a(f's_lshl_b32 s{S_TB}, s{S_RBA}, 18')
    a(f's_sub_u32 s{T3}, s{S_RBA}, 1'); a(f's_max_i32 s{T3}, s{T3}, 0')
    a(f's_lshl_b32 s{S_HB}, s{T3}, 18')
    reset_w()
    a(f's_mov_b32 s{S_SLOTA}, 0'); vm.nt = 0
    issue_W('W0', True); issue_T('T0', True); issue_W('W1', True); issue_T('T1', True); issue_T('T2', True)
    for n in range(2, NW): issue_W(f'W{n}', True)
    a('v_lshlrev_b32 v14, 8, v12')
    a('v_or_b32 v15, 8, v13')
    a('v_lshl_add_u32 v14, v15, 4, v14')
    a('v_lshrrev_b32 v15, 3, v13')
    a('v_lshlrev_b32 v15, 13, v15')
    a('v_add_u32 v14, v14, v15')
    a(f'v_add_u32 v{vHalo}, {3 * 2048}, v14')
    if p == 0:
        a('v_lshlrev_b32 v14, 7, v12')
        a(f'v_lshl_add_u32 v{vPoll}, v13, 2, v14')
        a('s_waitcnt lgkmcnt(0)')
        a(f's_add_u32 s{S_NONCE}, s{S_NONCE}, 256')
        a(f's_add_u32 s{S_TAG}, s{S_NONCE}, 1')
    vm.wait_any(a, ('T0', 'W0'))
    ST.put(a, 1)
    a('s_barrier')
    stages(True)
    a(f's_branch prod_tail_{tagn}')
    a.label(f'prod_layer_{tagn}')
    vm.clear()
    a(f's_lshl_b32 s{T0}, s{S_L}, 22')
    a(f's_lshl_b32 s{T4}, s{S_RBA}, 18')
    a(f's_add_u32 s{S_TB}, s{T0}, s{T4}')
    a(f's_sub_u32 s{T3}, s{S_RBA}, 1'); a(f's_max_i32 s{T3}, s{T3}, 0')
    a(f's_lshl_b32 s{T4}, s{T3}, 18')
    a(f's_add_u32 s{S_HB}, s{T0}, s{T4}')
    if X_OFF:
        a(f's_add_u32 s{S_TB}, s{S_TB}, {X_OFF}'); a(f's_add_u32 s{S_HB}, s{S_HB}, {X_OFF}')
    a(f's_mov_b32 s{S_SLOTA}, 0'); vm.nt = 0; vm.nw = NW0
    for n in range(NW0): vm.add(f'W{n}', 8)
    ST.put(a, 0)
    a('s_barrier')
    issue_T('T0', False); issue_T('T1', False)
    for n in range(NW0, NW): issue_W(f'W{n}', False)
    issue_T('T2', False)
    vm.wait(a, 'T0')
    if sx: check_T(0)
    ST.put(a, 1)
    a('s_barrier')
    stages(False)
    a.label(f'prod_tail_{tagn}')
    ST.put(a, 2)
    a('s_barrier')
    a('s_waitcnt vmcnt(0)')
    ST.put(a, 5)
    a('s_barrier')
    if not so:
        order2 = order_b(); nlate = len(OPT.get('late', [3, 11]))
        if p == 0:
            a(f's_lshl_b32 s{T0}, s{S_RBB}, 9'); a(f's_add_u32 s{T0}, s{T0}, {FO_OFF}')
            poll(a, S_TAG, [(vPoll, T0)], 20, 0x201, lane_mask(order2[:16 - nlate]))
        a('s_barrier')
        if p == 0:
            poll(a, S_TAG, [(vPoll, T0)], 20, 0x202, lane_mask(order2))
        a('s_barrier')
    a(f's_cmp_eq_u32 s{S_L}, 3')
    a(f's_cbranch_scc1 prod_end_{tagn}')
    a(f's_add_u32 s{S_L}, s{S_L}, 1')
    if p == 0: a(f's_add_u32 s{S_TAG}, s{S_TAG}, 1')
    a(f's_and_b32 s{T0}, s{S_L}, 1'); a(f's_mul_i32 s{T0}, s{T0}, {6 * MB}')
    a(f's_mul_i32 s{T4}, s{S_GA}, {16 * W_SLOT}'); a(f's_add_u32 s{T0}, s{T0}, s{T4}')
    a(f's_add_u32 s{S_PB}, s{T0}, {WP_OFF + p * 8192}')
    a('s_barrier')
    reset_w()
    for n in range(NW0): issue_W(f'W{n}', False)
    a(f's_branch prod_layer_{tagn}')
    a.label(f'prod_end_{tagn}')
    if not sx: a('s_barrier')
    ST.cyc(a, 61)
    if OPT.get('stamps'): a(f'v_writelane_b32 v{V_ST}, s{S_NRT}, 59')
    ST.flush(a)
    l0st_flush(a)
    a('s_endpgm')

def service(a):
    vT, vPoll, vSt, vStH = 1, 5, 2, 3
    vWS = [6, 7]
    vLD = 18
    vX = 25
    S_CSF = 74
    S_BSET = S_OUT
    a.label('prod_w3')
    if OPT.get('sprio'): a(f's_setprio {OPT["sprio"]}')
    lane_consts(a)
    a('v_mul_u32_u24 v15, 6144, v10')
    a(f'v_lshl_add_u32 v{vLD}, v11, 4, v15')
    vm = VM()
    order = order_a()
    RQ = 128
    def rp_issue(st, u):
        a(f's_mul_i32 s{T0}, s{S_RBA}, {64 * 6144}')
        a(f's_lshl_b32 s{T4}, s{S_GA}, 7'); a(f's_add_u32 s{T0}, s{T0}, s{T4}')
        for j in range(8):
            r = RQ + 32 * u + 4 * j
            a(f's_add_u32 s{S_TMP}, s{T0}, {j * 8 * 6144 + u * 2048}')
            a(f'buffer_load_dwordx4 v[{r}:{r+3}], v{vLD}, {srd(S_WQ if st == 0 else S_BSET)}, s{S_TMP} offen')
        vm.add(f'C{u}', 8)
    for u in range(3): rp_issue(0, u)
    a(f's_mov_b32 s{S_BSET}, s{P_BWQ}'); a(f's_mov_b32 s{S_BSET+1}, s{P_BWQ+1}')
    a(f's_mov_b32 s{S_BSET+2}, {1024 * 6144}')
    swz_regs(a, vWS, 128)
    a('v_lshlrev_b32 v14, 7, v12')
    a(f'v_lshl_add_u32 v{vPoll}, v13, 2, v14')
    a('v_lshlrev_b32 v14, 10, v12')
    a(f'v_lshl_add_u32 v{vSt}, v13, 4, v14')
    a('v_and_b32 v14, 3, v11'); a('v_lshlrev_b32 v14, 4, v14')
    a('v_lshrrev_b32 v15, 2, v11'); a('v_lshlrev_b32 v15, 9, v15')
    a('v_add_u32 v14, v14, v15')
    a('v_lshl_add_u32 v14, v10, 10, v14')
    a(f'v_add_u32 v{vStH}, {3 * 128 + 64}, v14')
    a(f's_lshl_b32 s{S_CSF}, s{S_GA}, 9')
    a(f's_lshl_b32 s{T4}, s{S_RBA}, 2'); a(f's_add_u32 s{S_CSF}, s{S_CSF}, s{T4}')
    a(f's_add_u32 s{S_CSF}, s{S_CSF}, {FC_OFF}')
    a('s_waitcnt lgkmcnt(0)')
    a(f's_add_u32 s{S_NONCE}, s{S_NONCE}, 256')
    a(f's_add_u32 s{S_TAG}, s{S_NONCE}, 1')
    a(f'v_lshlrev_b32 v15, 11, v10')
    a(f'v_lshl_add_u32 v19, v11, 4, v15')
    for j in range(4): a(f'v_mov_b32 v{240+j}, -1')
    a(f's_lshl_b32 s79, s{S_RBA}, 7')
    a(f's_sub_u32 s{T3}, s{S_RBA}, 1'); a(f's_max_i32 s{T3}, s{T3}, 0')
    a(f's_sub_u32 s{T3}, s{S_RBA}, s{T3}'); a(f's_lshl_b32 s{T3}, s{T3}, 7')
    a('v_and_b32 v14, 1, v12')
    a(f'v_mul_u32_u24 v14, s{T3}, v14')
    a('v_lshlrev_b32 v15, 2, v13')
    a('v_add_u32 v15, s79, v15')
    a('v_sub_u32 v29, v15, v14')
    a(f's_lshl_b32 s{T4}, s{S_GA}, 2'); a(f's_add_u32 s79, s79, s{T4}')
    a(f's_add_u32 s79, s79, {FL_OFF}')
    A, TT = 224, 232
    so = OPT.get('so'); sx = OPT.get('sx')
    SEL, vNM, vNMH, vCS = 244, 26, 27, 28
    a('v_and_b32 v14, 1, v11'); a('v_lshlrev_b32 v14, 4, v14')
    a('v_mov_b32 v15, 0x3f80'); a('v_lshlrev_b32 v14, v14, v15')
    a('v_lshrrev_b32 v15, 1, v11')
    for q in range(4):
        a(f'v_cmp_eq_u32 vcc, {q}, v15'); a(f'v_cndmask_b32 v{SEL+q}, 0, v14, vcc')
    a('v_and_b32 v14, 1, v12'); a('v_lshlrev_b32 v14, 4, v14')
    a(f'v_lshl_add_u32 v{vCS}, v11, 5, v14')
    a(f'v_lshlrev_b32 v{vNM}, 3, v9'); a(f'v_add_u32 v{vNM}, {NM0}, v{vNM}')
    a('v_lshrrev_b32 v14, 5, v9'); a('v_lshlrev_b32 v14, 2, v14')
    a('v_lshl_add_u32 v14, v11, 3, v14'); a(f'v_add_u32 v{vNMH}, {NM0 + 512}, v14')
    WOR = 32
    vLD2 = 19
    def wo_issue(st):
        a(f's_lshl_b32 s{T0}, s{S_RBB}, 17')
        a(f's_lshl_b32 s{T4}, s{S_GB}, 7'); a(f's_add_u32 s{T0}, s{T0}, s{T4}')
        P = P_AWO if st == 0 else P_BWO
        a(f's_mov_b32 s{S_WO}, s{P}'); a(f's_mov_b32 s{S_WO+1}, s{P+1}')
        for j in range(8):
            r = WOR + 4 * j
            a(f's_add_u32 s{S_TMP}, s{T0}, {j * 8 * 2048}')
            a(f'buffer_load_dwordx4 v[{r}:{r+3}], v{vLD2}, {srd(S_WO)}, s{S_TMP} offen')
        vm.add('WO', 8)
    def wo_store(st):
        vm.wait(a, 'WO')
        a(f's_lshl_b32 s{T0}, s{S_GB}, 17')
        a(f's_lshl_b32 s{T4}, s{S_RBB}, 13'); a(f's_add_u32 s{T0}, s{T0}, s{T4}')
        a(f's_add_u32 s{T0}, s{T0}, {WOP_OFF + st * 2 * MB}')
        for j in range(8):
            r = WOR + 4 * j
            if j == 4: a(f's_add_u32 s{T0}, s{T0}, 4096')
            a(f'buffer_store_dwordx4 v[{r}:{r+3}], v{vWS[j & 1]}, {srd(S_WS)}, s{T0} offen offset:{(j % 4) * 1024} sc1')
        vm.add('WOS', 8)
    vNEG, vPollC = 240, 29
    S_CO, S_CX, S_CLF = 77, 78, 79
    def clear_list(L):
        o = [(S_CO, t * 32768, [0, 1024]) for t in range(8)] if so else []
        x = [(S_CX, q * 4096, [0, 1024, 2048, 3072]) for q in range(4)] if (sx and L < 3) else []
        out = []
        for b, c_, offs in o + x:
            for of in offs: out.append((b, c_, of))
        return out
    def clear_bases(L):
        a(f's_lshl_b32 s{T0}, s{S_RBA}, 18')
        a(f's_lshl_b32 s{T4}, s{S_GA}, 11'); a(f's_add_u32 s{S_CO}, s{T0}, s{T4}')
        a(f's_add_u32 s{S_CO}, s{S_CO}, {O_OFF + L * LSTRIDE}')
        a(f's_lshl_b32 s{T4}, s{S_GA}, 14'); a(f's_add_u32 s{S_CX}, s{T0}, s{T4}')
        a(f's_add_u32 s{S_CX}, s{S_CX}, {X_OFF + (L + 1) * LSTRIDE}')
    def clear_some(lst):
        last = None
        for b, c_, of in lst:
            if last != (b, c_):
                a(f's_add_u32 s{S_TMP}, s{b}, {c_}'); last = (b, c_)
            a(f'buffer_store_dwordx4 v[{vNEG}:{vNEG+3}], v{vT}, {srd(S_WS)}, s{S_TMP} offen offset:{of} sc1')
        if lst: vm.add('CL', len(lst))
    def clear_flag():
        vm.wait(a, 'CL')
        flag_store(a, S_CLF, S_TAG, 20); vm.add('F', 1)
    def clear_poll_issue():
        a(f's_mov_b32 s{T0}, {FL_OFF}')
        a(f'buffer_load_dword v30, v{vPollC}, {srd(S_WS)}, s{T0} offen sc1')
        vm.add('Q', 1)
    def clear_check():
        vm.wait(a, 'Q')
        ok = a.uniq('cl_ok')
        poll_test(a, S_TAG, 1, 30, False)
        a(f's_cbranch_scc1 {ok}')
        a(f's_mov_b32 s{T0}, {FL_OFF}')
        poll(a, S_TAG, [(vPollC, T0)], 30, 0x310)
        a.label(ok)
    def rp_dot(u):
        vm.wait(a, f'C{u}')
        R0 = RQ + 32 * u
        a('v_mov_b32 v20, 0x3f80'); a('v_mov_b32 v21, 0x3f800000')
        for e in range(8): a(f'v_mov_b32 v{A+e}, 0')
        for j in range(8):
            r = R0 + 4 * j
            for q in range(4):
                a(f'v_dot2c_f32_bf16 v{A+2*q}, v20, v{r+q}')
                a(f'v_dot2c_f32_bf16 v{A+2*q+1}, v21, v{r+q}')
    def rp_red(st, u):
        streams = []
        for e in range(8):
            v = A + e; t = TT + e; sq = []
            sq.append(f'v_add_f32_dpp v{v}, v{v}, v{v} row_ror:8 row_mask:0xf bank_mask:0xf')
            for sw in ('16', '32'):
                sq.append(f'v_mov_b32 v{t}, v{v}')
                sq.append(f'v_permlane{sw}_swap_b32 v{v}, v{t}')
                sq.append(f'v_add_f32 v{v}, v{v}, v{t}')
            streams.append(sq)
        for x in interleave(streams): a(x)
        a(f's_lshl_b32 s{T0}, s{S_GA}, 14')
        a(f's_lshl_b32 s{T4}, s{S_RBA}, 10'); a(f's_add_u32 s{T0}, s{T0}, s{T4}')
        a(f's_add_u32 s{T0}, s{T0}, {CSP_OFF + u * 256 + st * 262144}')
        a('v_lshlrev_b32 v20, 5, v11')
        a('s_mov_b64 exec, 0xff')
        for q in range(2):
            a(f'buffer_store_dwordx4 v[{A+4*q}:{A+4*q+3}], v20, {srd(S_WS)}, s{T0} offen offset:{16*q} sc1')
        a('s_mov_b64 exec, -1')
        vm.add(f'CS{u}', 2)
    def rp_cs(st, u):
        if st in OPT.get('csdot', ()) or (st, u) in OPT.get('csdot', ()):
            rp_dot(u); rp_red(st, u); return
        vm.wait(a, f'C{u}')
        R0 = RQ + 32 * u
        for j in range(8): a(mfma(A, SEL, R0 + 4 * j, None if j == 0 else A))
        a(f's_lshl_b32 s{T0}, s{S_GA}, 14')
        a(f's_lshl_b32 s{T4}, s{S_RBA}, 10'); a(f's_add_u32 s{T0}, s{T0}, s{T4}')
        a(f's_add_u32 s{T0}, s{T0}, {CSP_OFF + u * 256 + st * 262144}')
        for r in range(4): a(f'v_add_f32_dpp v{A+r}, v{A+r}, v{A+r} row_ror:8 row_mask:0xf bank_mask:0xf')
        m = OPT.get('csmask', 0)
        if m: a('s_mov_b64 exec, 0x00ff00ff')
        a(f'buffer_store_dwordx4 v[{A}:{A+3}], v{vCS}, {srd(S_WS)}, s{T0} offen sc1')
        if m: a('s_mov_b64 exec, -1')
        if m == 2: a('s_nop 7')
        vm.add(f'CS{u}', 1)
    def rp_store(st, u):
        vm.wait(a, f'C{u}')
        R0 = RQ + 32 * u
        a(f's_mul_i32 s{T0}, s{S_GA}, {16 * W_SLOT}')
        a(f's_mul_i32 s{T4}, s{S_RBA}, {W_SLOT}'); a(f's_add_u32 s{T0}, s{T0}, s{T4}')
        a(f's_add_u32 s{T0}, s{T0}, {WP_OFF + st * 6 * MB + u * 8192}')
        for j in range(8):
            r = R0 + 4 * j
            if j == 4: a(f's_add_u32 s{T0}, s{T0}, 4096')
            a(f'buffer_store_dwordx4 v[{r}:{r+3}], v{vWS[j & 1]}, {srd(S_WS)}, s{T0} offen offset:{(j % 4) * 1024} sc1')
        vm.add(f'RP{u}', 8)
    csmask = lane_mask(range(16), (0,))
    def cs_poll_off():
        a(f's_lshl_b32 s{T0}, s{S_GA}, 9'); a(f's_add_u32 s{T0}, s{T0}, {FC_OFF}')
    def cs_poll_issue():
        cs_poll_off()
        a(f'buffer_load_dword v{vX}, v{vPoll}, {srd(S_WS)}, s{T0} offen sc1')
        vm.add('X', 1)
    def cs_check(plus, code):
        vm.wait(a, 'X')
        ok = a.uniq('cs_ok')
        a(f's_add_u32 s{T1}, s{S_NONCE}, {plus}')
        set_mask(a, csmask)
        poll_test(a, T1, 1, vX, True)
        a(f's_cbranch_scc1 {ok}')
        cs_poll_off()
        poll(a, T1, [(vPoll, T0)], vX, code, csmask)
        a.label(ok)
    def cs_flag(plus):
        a(f's_add_u32 s{T1}, s{S_NONCE}, {plus}')
        flag_store(a, S_CSF, T1, 20); vm.add('F', 1)
    def cs_loads(lo, hi, SC=32):
        a(f's_and_b32 s{T0}, s{S_L}, 1'); a(f's_lshl_b32 s{T0}, s{T0}, 18')
        a(f's_lshl_b32 s{T4}, s{S_GA}, 14'); a(f's_add_u32 s{T0}, s{T0}, s{T4}')
        a(f's_add_u32 s{T0}, s{T0}, {CSP_OFF}')
        for rb in range(lo, hi):
            if rb % 4 == 0: a(f's_add_u32 s{S_TMP}, s{T0}, {rb * 1024}')
            a(f'buffer_load_dwordx4 v[{SC+4*rb}:{SC+4*rb+3}], v{vT}, {srd(S_WS)}, s{S_TMP} offen offset:{(rb % 4) * 1024} sc1')
        vm.add('Y', hi - lo)
    def cs_process(SC=32, part=None):
        vm.wait(a, 'Y')
        if part is None: rbs = range(1, 16)
        elif part == 0: rbs = range(8, 16)
        else: rbs = range(0)
        if part == 0:
            for rb in rbs:
                for q in range(4): a(f'v_add_f32 v{SC+4*(rb-8)+q}, v{SC+4*(rb-8)+q}, v{SC+4*rb+q}')
            return
        if part == 1: rbs = range(1, 8)
        for rb in rbs:
            for q in range(4): a(f'v_add_f32 v{SC+q}, v{SC+q}, v{SC+4*rb+q}')
        a(f's_and_b32 s{T0}, s{S_L}, 1'); a(f's_lshl_b32 s{T0}, s{T0}, 10'); a(f's_add_u32 s{T0}, s{T0}, {CS0}')
        a(f'v_add_u32 v20, s{T0}, v{vT}')
        a(f'ds_write_b128 v20, v[{SC}:{SC+3}]')
        a('s_waitcnt lgkmcnt(0)')
    SV = 32
    def stats_issue(part):
        a(f's_lshl_b32 s{T0}, s{S_L}, 18')
        a(f's_lshl_b32 s{T4}, s{S_RBA}, 14'); a(f's_add_u32 s{T1}, s{T0}, s{T4}')
        a(f's_add_u32 s{T1}, s{T1}, {S_OFF}')
        n = 0
        for j in range(4):
            a(f's_add_u32 s{S_TMP}, s{T1}, {j * 4096}')
            for q in (2 * part, 2 * part + 1):
                r = SV + 16 * q + 4 * j
                a(f'buffer_load_dwordx4 v[{r}:{r+3}], v{vSt}, {srd(S_WS)}, s{S_TMP} offen offset:{q * 256} sc1'); n += 1
        if part == 1:
            a(f's_sub_u32 s{T3}, s{S_RBA}, 1'); a(f's_max_i32 s{T3}, s{T3}, 0')
            a(f's_lshl_b32 s{T4}, s{T3}, 14'); a(f's_add_u32 s{T1}, s{T0}, s{T4}')
            for j in range(2):
                a(f's_add_u32 s{S_TMP}, s{T1}, {S_OFF + j * 8192}')
                r = SV + 64 + 4 * j
                a(f'buffer_load_dwordx4 v[{r}:{r+3}], v{vStH}, {srd(S_WS)}, s{S_TMP} offen sc1'); n += 1
        vm.add(f'S{part}', n)
    def stats_process(part):
        vm.wait(a, f'S{part}')
        groups = [(SV + 16 * q, 4, q) for q in (2 * part, 2 * part + 1)]
        if part == 1: groups.append((SV + 64, 2, 4))
        streams = []
        for R0, cnt, q in groups:
            for e in range(4):
                v = R0 + e; t = 104 + 4 * (q % 3) + e; sq = []
                for j in range(1, cnt): sq.append(f'v_add_f32 v{v}, v{v}, v{R0+4*j+e}')
                if q == 4: sq.append(f'v_add_f32_dpp v{v}, v{v}, v{v} row_ror:8 row_mask:0xf bank_mask:0xf')
                for sw in ('16', '32'):
                    sq.append(f'v_mov_b32 v{t}, v{v}')
                    sq.append(f'v_permlane{sw}_swap_b32 v{v}, v{t}')
                    sq.append(f'v_add_f32 v{v}, v{v}, v{t}')
                streams.append(sq)
        for x in interleave(streams): a(x)
        a(f's_mov_b32 s{T0}, 0x3a800000')
        streams = []
        for R0, cnt, q in groups:
            for rr in range(2):
                m, e2 = R0 + 2 * rr, R0 + 2 * rr + 1
                streams.append([f'v_mul_f32 v{m}, s{T0}, v{m}',
                                f'v_mul_f32 v{e2}, s{T0}, v{e2}',
                                f'v_fma_f32 v{e2}, -v{m}, v{m}, v{e2}',
                                f'v_max_f32 v{e2}, 0, v{e2}',
                                f'v_add_f32 v{e2}, 0x3727c5ac, v{e2}',
                                f'v_rsq_f32 v{e2}, v{e2}',
                                f'v_sub_f32 v{m}, 0, v{m}'])
        for x in interleave(streams): a(x)
        for R0, cnt, q in groups:
            a(f'v_mov_b32 v20, v{R0+1}'); a(f'v_mov_b32 v{R0+1}, v{R0+2}'); a(f'v_mov_b32 v{R0+2}, v20')
        a(f'v_lshlrev_b32 v20, 3, v13')
        a(f'v_add_u32 v20, {NM0}, v20')
        a(f'v_lshlrev_b32 v21, 3, v11')
        a(f'v_add_u32 v21, {NM0 + 512}, v21')
        for R0, cnt, q in groups:
            va = 20 if q < 4 else 21; off = 128 * q if q < 4 else 0
            a(f'ds_write_b64 v{va}, v[{R0}:{R0+1}] offset:{off}')
            a(f'ds_write_b64 v{va}, v[{R0+2}:{R0+3}] offset:{off + 1024}')
        a('s_waitcnt lgkmcnt(0)')
    def st_add(qs):
        vm.wait(a, f'S{qs[0] >> 1}')
        for j in range(1, 4):
            for q in qs:
                for e in range(4): a(f'v_add_f32 v{SV+16*q+e}, v{SV+16*q+e}, v{SV+16*q+4*j+e}')
    def st_tr(es):
        streams = []
        for e in es:
            r = [SV + 16 * q + e for q in range(4)]
            streams.append([f'v_permlane32_swap_b32 v{r[0]}, v{r[2]}', f'v_permlane32_swap_b32 v{r[1]}, v{r[3]}',
                            f'v_add_f32 v{r[0]}, v{r[0]}, v{r[2]}', f'v_add_f32 v{r[1]}, v{r[1]}, v{r[3]}',
                            f'v_permlane16_swap_b32 v{r[0]}, v{r[1]}', f'v_add_f32 v{r[0]}, v{r[0]}, v{r[1]}'])
        for x in interleave(streams): a(x)
    def ln_terms(m, e2, nm, rs):
        return [f'v_mul_f32 v{m}, s{T0}, v{m}',
                f'v_mul_f32 v{e2}, s{T0}, v{e2}',
                f'v_fma_f32 v{e2}, -v{m}, v{m}, v{e2}',
                f'v_max_f32 v{e2}, 0, v{e2}',
                f'v_add_f32 v{e2}, 0x3727c5ac, v{e2}',
                f'v_rsq_f32 v{rs}, v{e2}',
                f'v_sub_f32 v{nm}, 0, v{m}']
    def st_post():
        a(f's_mov_b32 s{T0}, 0x3a800000')
        for x in interleave([ln_terms(SV, SV + 1, SV + 6, SV + 4), ln_terms(SV + 2, SV + 3, SV + 7, SV + 5)]): a(x)
        a(f'ds_write_b64 v{vNM}, v[{SV+6}:{SV+7}]')
        a(f'ds_write_b64 v{vNM}, v[{SV+4}:{SV+5}] offset:1024')
        a('s_waitcnt lgkmcnt(0)')
    HV = SV + 64
    def st_halo(part):
        if part == 0:
            vm.wait(a, 'S1')
            for e in range(4): a(f'v_add_f32 v{HV+e}, v{HV+e}, v{HV+4+e}')
            return
        if part == 1:
            a(f'v_permlane32_swap_b32 v{HV}, v{HV+2}'); a(f'v_permlane32_swap_b32 v{HV+1}, v{HV+3}')
            a(f'v_add_f32 v{HV}, v{HV}, v{HV+2}'); a(f'v_add_f32 v{HV+1}, v{HV+1}, v{HV+3}')
            a(f'v_mov_b32 v{HV+2}, v{HV}'); a(f'v_mov_b32 v{HV+3}, v{HV+1}')
            a(f'v_permlane16_swap_b32 v{HV}, v{HV+2}'); a(f'v_permlane16_swap_b32 v{HV+1}, v{HV+3}')
            a(f'v_add_f32 v{HV}, v{HV}, v{HV+2}'); a(f'v_add_f32 v{HV+1}, v{HV+1}, v{HV+3}')
            for e in range(2): a(f'v_add_f32_dpp v{HV+e}, v{HV+e}, v{HV+e} row_ror:8 row_mask:0xf bank_mask:0xf')
            return
        a(f's_mov_b32 s{T0}, 0x3a800000')
        for x in ln_terms(HV, HV + 1, HV + 2, HV + 3): a(x)
        a('s_mov_b32 exec_lo, 0xff'); a('s_mov_b32 exec_hi, 0xff')
        a(f'ds_write_b32 v{vNMH}, v{HV+2}')
        a(f'ds_write_b32 v{vNMH}, v{HV+3} offset:1024')
        a('s_mov_b64 exec, -1')
        a('s_waitcnt lgkmcnt(0)')
    def stats_sched(work, ss):
        work[ss].append(lambda: stats_issue(0)); work[ss + 1].append(lambda: stats_issue(1))
        k0 = OPT.get('s_proc', 11)
        work[k0].append(lambda: st_add((0, 1)))
        work[k0 + 1].append(lambda: st_add((2, 3))); work[k0 + 1].append(lambda: st_halo(0))
        work[k0 + 2].append(lambda: st_tr((0, 1, 2, 3)))
        work[k0 + 3].append(st_post); work[k0 + 3].append(lambda: st_halo(1))
        work[k0 + 4].append(lambda: st_halo(2))
    xg1 = OPT.get('xg1', 4); xg2 = OPT.get('xg2', 10)
    def xpoll_addr():
        a(f's_lshl_b32 s{T0}, s{S_RBA}, 9'); a(f's_add_u32 s{T0}, s{T0}, {FX_OFF}')
        a(f's_sub_u32 s{T3}, s{S_RBA}, 1'); a(f's_max_i32 s{T3}, s{T3}, 0')
        a(f's_lshl_b32 s{T1}, s{T3}, 9'); a(f's_add_u32 s{T1}, s{T1}, {FX_OFF}')
    PV = 22
    def xpoll_issue():
        xpoll_addr(); poll_issue(a, [(vPoll, T0), (vPoll, T1)], PV); vm.add('P', 2)
    def xcheck(gs):
        vm.wait(a, 'P')
        ok = a.uniq('x_ok')
        set_mask(a, lane_mask(gs))
        poll_test(a, S_TAG, 2, PV, True)
        a(f's_cbranch_scc1 {ok}')
        xpoll_addr()
        poll(a, S_TAG, [(vPoll, T0), (vPoll, T1)], PV, 0x102, lane_mask(gs))
        a.label(ok)
    def split(lst, counts):
        out = []; i = 0
        for n in counts:
            out.append(lst[i:i+n]); i += n
        assert i >= len(lst), (i, len(lst))
        return out
    marks = so or sx
    def stages(L):
        work = {k: [] for k in range(17)}; pre = {k: [] for k in range(17)}
        cl = clear_list(L)
        if L == 0:
            sch = OPT.get('l0sch', {})
            for u in range(3): work[sch.get('csa', (0, 1, 2))[u]].append(lambda u=u: rp_cs(0, u))
            work[sch.get('woa', 0)].append(lambda: wo_issue(0))
            work[sch.get('woas', 3)].append(lambda: wo_store(0))
            ks = sch.get('clk', (1, 2, 4, 5, 6)); cn = sch.get('cln', (4, 4, 8, 8, 8))
            for k, part in zip(ks, split(cl, cn)): work[k].append(lambda part=part: clear_some(part))
            def flag1():
                vm.wait_any(a, ('CS2', 'WOS')); cs_flag(1)
            f1 = sch.get('f1', 4)
            work[f1].insert(0, flag1)
            work[f1 + 1].append(cs_poll_issue)
            work[f1 + 2].insert(0, lambda: cs_check(1, 0x300))
            work[f1 + 2].insert(1, lambda: cs_loads(0, 16, RQ))
            work[6].append(xpoll_issue)
            work[f1 + 3].append(lambda: cs_process(RQ, 0))
            work[f1 + 4].append(lambda: cs_process(RQ, 1))
            pre[8].append(lambda: xcheck(order))
            if marks: work[8].insert(0, clear_flag)
            stats_sched(work, 8)
            kb = sch.get('cb', (12, 13, 14))
            for u in range(3): work[kb[u]].append(lambda u=u: rp_issue(1, u))
            work[15].append(lambda: wo_issue(1))
            if marks: work[14].append(clear_poll_issue)
        else:
            dist = OPT.get('pidist', 1 if sx else 2)
            work[xg1 - 2 - dist].append(xpoll_issue); pre[xg1 - 2].append(lambda: xcheck(order[:xg2]))
            work[xg2 - 2 - 2].append(xpoll_issue); pre[xg2 - 2].append(lambda: xcheck(order))
            parts = split(cl, (4, 4, 6, 5, 5, 4, 4))
            for k in range(7): work[k].append(lambda part=parts[k]: clear_some(part))
            if marks: work[8].append(clear_flag)
            stats_sched(work, OPT.get('s_stats', 9))
            if L == 1:
                work[0].insert(0, lambda: cs_loads(0, 16)); work[2].insert(0, lambda: cs_process(32, 0)); work[7].insert(0, lambda: cs_process(32, 1))
                for u in range(3):
                    work[3 + u].append(lambda u=u: rp_issue(0, u))
                    work[6 + u].append(lambda u=u: rp_store(0, u))
                def flag3():
                    vm.wait(a, 'RP2'); cs_flag(3)
                work[11].append(flag3)
            if marks: work[14].append(clear_poll_issue)
        if marks: work[0].insert(0, lambda: clear_bases(L))
        for k in range(17):
            for f in pre[k]: f()
            if k and k < 16: l0st(a, L == OPT.get('l0st'), k - 1, vm, static=True)
            a('s_barrier')
            for f in work[k]: f()
    def tail(L):
        ST.put(a, 2)
        nb = OPT.get('tailnb', 2)
        if L == 0:
            for u in range(nb): rp_cs(1, u)
        a('s_barrier')
        if L == 0:
            for u in range(nb, 3): rp_cs(1, u)
            rp_store(1, 0); rp_store(1, 1)
        if marks: clear_check()
        ST.put(a, 5)
        a('s_barrier')
        if L == 0:
            rp_store(1, 2)
            wo_store(1)
        if L == 1: cs_poll_issue()
        if not so: a('s_barrier')
        if L == 0:
            a('s_waitcnt vmcnt(0)'); vm.clear()
            cs_flag(2)
        if not so: a('s_barrier')
        if L == 3:
            if not sx: a('s_barrier')
            return
        a(f's_add_u32 s{S_L}, s{S_L}, 1')
        if L == 0:
            a(f's_add_u32 s{T1}, s{S_NONCE}, 2')
            cs_poll_off()
            poll(a, T1, [(vPoll, T0)], vX, 0x301, csmask)
        if L == 1: cs_check(3, 0x302)
        a(f's_add_u32 s{S_TAG}, s{S_TAG}, 1')
        a('s_barrier')
        ST.put(a, 0)
        a('s_barrier')
    for L in range(4):
        stages(L)
        tail(L)
    ST.cyc(a, 61)
    ST.flush(a)
    l0st_flush(a)
    a('s_endpgm')

def build(opts):
    OPT.clear(); OPT.update(opts)
    set_lds_map(OPT.get('nw', 4))
    a = Asm()
    kname = NAME + '_kernel'
    a.raw(f'.globl {kname}')
    a.raw('.p2align 8')
    a.raw(f'.type {kname},@function')
    a.label(kname)
    a('s_cmp_ge_u32 s2, 256')
    a('s_cbranch_scc1 k_done')
    a(f's_load_dwordx2 s[{S_AX}:{S_AX+1}], s[0:1], {K_AX}')
    a(f's_load_dwordx2 s[{P_AWQ}:{P_AWQ+1}], s[0:1], {K_AWQKV}')
    a(f's_load_dwordx2 s[{P_AWO}:{P_AWO+1}], s[0:1], {K_AWO}')
    a(f's_load_dwordx2 s[{P_BWQ}:{P_BWQ+1}], s[0:1], {K_BWQKV}')
    a(f's_load_dwordx2 s[{P_BWO}:{P_BWO+1}], s[0:1], {K_BWO}')
    a(f's_load_dwordx2 s[{S_OUT}:{S_OUT+1}], s[0:1], {K_OUT}')
    a(f's_load_dwordx2 s[{S_DBG}:{S_DBG+1}], s[0:1], {K_DBG}')
    a(f's_load_dwordx2 s[{S_WS}:{S_WS+1}], s[0:1], {K_WS}')
    if OPT.get('stamps'):
        a(f'v_mov_b32 v{V_ST}, 0')
    a(f's_and_b32 s{T0}, s2, 7')
    a(f's_lshr_b32 s{T1}, s2, 3')
    if OPT.get('map', 'same') == 'old':
        a(f's_and_b32 s{S_RBA}, s{T0}, 1'); a(f's_lshl_b32 s{S_RBA}, s{S_RBA}, 3')
        a(f's_and_b32 s{T2}, s{T1}, 7'); a(f's_add_u32 s{S_RBA}, s{S_RBA}, s{T2}')
        a(f's_lshr_b32 s{S_GA}, s{T0}, 1'); a(f's_lshl_b32 s{S_GA}, s{S_GA}, 2')
        a(f's_lshr_b32 s{T2}, s{T1}, 3'); a(f's_add_u32 s{S_GA}, s{S_GA}, s{T2}')
    else:
        a(f's_and_b32 s{S_RBA}, s{T0}, 3'); a(f's_lshl_b32 s{S_RBA}, s{S_RBA}, 2')
        a(f's_and_b32 s{T2}, s{T1}, 3'); a(f's_add_u32 s{S_RBA}, s{S_RBA}, s{T2}')
        a(f's_lshr_b32 s{S_GA}, s{T0}, 2'); a(f's_lshl_b32 s{S_GA}, s{S_GA}, 3')
        a(f's_lshr_b32 s{T2}, s{T1}, 2'); a(f's_add_u32 s{S_GA}, s{S_GA}, s{T2}')
    a(f's_and_b32 s{S_RBB}, s{T0}, 3'); a(f's_lshl_b32 s{S_RBB}, s{S_RBB}, 2')
    a(f's_and_b32 s{T2}, s{T1}, 3'); a(f's_add_u32 s{S_RBB}, s{S_RBB}, s{T2}')
    a(f's_lshr_b32 s{S_GB}, s{T0}, 2'); a(f's_lshl_b32 s{S_GB}, s{S_GB}, 3')
    a(f's_lshr_b32 s{T2}, s{T1}, 2'); a(f's_add_u32 s{S_GB}, s{S_GB}, s{T2}')
    a('v_lshrrev_b32 v1, 6, v0')
    a(f'v_readfirstlane_b32 s{S_WAVE}, v1')
    a(f's_lshr_b32 s{S_H}, s{S_WAVE}, 1')
    a(f's_and_b32 s{S_H}, s{S_H}, 1')
    a(f's_mov_b32 s{S_L}, 0')
    a('s_waitcnt lgkmcnt(0)')
    make_srd(a, S_WS, 256 * MB if (OPT.get('stamps') or OPT.get('dump')) else WS_USED)
    make_srd(a, S_AX, 4 * MB); make_srd(a, S_OUT, 4 * MB); make_srd(a, S_DBG, 256)
    for p in (P_AWQ, P_BWQ, P_AWO, P_BWO): a(f's_and_b32 s{p+1}, s{p+1}, 0xffff')
    a(f's_mov_b32 s{S_WQ+2}, {1024 * 6144}'); a(f's_mov_b32 s{S_WQ+3}, {SRD3}')
    a(f's_mov_b32 s{S_WO+2}, {1024 * 2048}'); a(f's_mov_b32 s{S_WO+3}, {SRD3}')
    set_layer_srds(a)
    ST.put(a, 0, False); ST.cyc(a, 60)
    a(f's_mov_b32 s{T0}, {E_OFF}')
    a(f's_load_dword s{S_NONCE}, s[{S_WS}:{S_WS+1}], s{T0}')
    for w in range(4, 8):
        a(f's_cmp_eq_u32 s{S_WAVE}, {w}'); a(f's_cbranch_scc1 prod_w{w-4}')
    c = consumer_regs()
    if OPT.get('prio'): a(f's_setprio {OPT["prio"]}')
    if OPT.get('stamps'): a(f's_mov_b32 s{S_NFIX}, 0')
    consumer_prologue(a, c)
    a(f's_bitcmp1_b32 s{S_WAVE}, 0')
    a('s_cbranch_scc1 a_cons_p1')
    a_consumer(a, c, 0)
    a_consumer(a, c, 1)
    b_consumer(a, c)
    for p in range(3): loader(a, p)
    service(a)
    a.label('k_done')
    a('s_endpgm')
    n = a.pad_hazards()
    hdr = open(f'cdna_kernels/{NAME}.s.ref').read().split('\n')
    lines = [l for l in hdr if l.startswith(';') and '@launch' not in l and 'Override launch' not in l and 'grid=ceil' not in l]
    lines = lines[:11]
    lines.append(f'; @launch grid=(256,1,1) block=(512,1,1) lds={LDS_SIZE}')
    out = '\n'.join(lines) + '\n.amdgcn_target "amdgcn-amd-amdhsa--gfx950"\n.text\n' + a.text()
    out += f'''.section .rodata,"a"
.p2align 6
.amdhsa_kernel {kname}
  .amdhsa_next_free_vgpr 256
  .amdhsa_next_free_sgpr 102
  .amdhsa_accum_offset 256
  .amdhsa_group_segment_fixed_size 0
  .amdhsa_kernarg_size 72
  .amdhsa_float_denorm_mode_32 3
  .amdhsa_user_sgpr_count 2
  .amdhsa_user_sgpr_kernarg_segment_ptr 1
  .amdhsa_system_sgpr_workgroup_id_x 1
.end_amdhsa_kernel
'''
    return out, n, c.top

if __name__ == '__main__':
    opts = {}
    for kv in sys.argv[2:]:
        k, v = kv.split('='); opts[k] = eval(v)
    out, n, top = build(opts)
    open(sys.argv[1], 'w').write(out)
    print('written', sys.argv[1], 'nops inserted:', n, 'bytes', len(out), 'consumer vgpr top', top)
```

```python
import sys
sys.path.insert(0, 'work')
from asmlib import Asm

NAME = 'interleave_layers__sliding_local_dilated__sliding_local_dilated__prompt'
MB = 1 << 20
K_AX, K_AWQKV, K_AWO, K_BX, K_BWQKV, K_BWO, K_OUT, K_DBG, K_WS = 0, 8, 16, 24, 32, 40, 48, 56, 64
SRD3 = 0x00020000
X_OFF, O_OFF, LSTRIDE = 0, 16 * MB, 4 * MB
S_OFF, S_LSTRIDE = 32 * MB, 256 * 1024
CSP_OFF = 33 * MB
FX_OFF = 34 * MB
FO_OFF = FX_OFF + 8192
FC_OFF = FX_OFF + 16384
E_OFF = FX_OFF + 32768
WP_OFF = 40 * MB
WOP_OFF = 52 * MB
FL_OFF = FX_OFF + 24576
WS_USED = 56 * MB
ST_OFF = 200 * MB
A_SLOT, W_SLOT = 18432, 24576
W0 = 3 * A_SLOT
NW = 3
def set_lds_map(nw):
    global NW, HALO0, NM0, RS0, CS0, NONCE0, LDS_SIZE
    NW = nw
    HALO0 = max(131072, W0 + nw * W_SLOT)
    NM0 = HALO0 + 4096
    RS0 = NM0 + 1024
    CS0 = RS0 + 1024
    NONCE0 = CS0 + 2048
    LDS_SIZE = NONCE0 + 256
set_lds_map(3)
S_WS, S_WQ, S_WO, S_AX, S_OUT, S_DBG = 4, 8, 12, 16, 20, 24
P_AWQ, P_BWQ, P_AWO, P_BWO = 28, 30, 32, 34
S_RBA, S_GA, S_RBB, S_GB, S_WAVE, S_H, S_L, S_NONCE, S_TAG = 36, 37, 38, 39, 40, 41, 42, 43, 44
T0, T1, T2, T3, T4, T5 = 45, 46, 47, 48, 49, 50
S_TMP = 51
S_C0 = 52
S_SLOTA, S_SLOTW, S_CNT, S_KA, S_KW, S_SPIN = 58, 59, 60, 61, 62, 63
S_SEL, S_VAL, S_VAL0 = 64, 72, 80
S_M1, S_M2, S_M3, S_DIAG = 88, 90, 92, 94
S_PB = 64
S_TB, S_HB, S_SB, S_SH = 70, 71, 72, 73
S_FLAGAT = 53 + 2
S_ST = 96
SPIN_MAX = 20000

OPT = {}

class Regs:
    def __init__(self, start, limit): self.n = start; self.limit = limit
    def get(self, k=1, align=1):
        self.n = (self.n + align - 1) // align * align
        r = self.n; self.n += k
        assert self.n <= self.limit, 'out of registers'
        return r

def cvt(dst, s0, s1): return f'v_cvt_pk_bf16_f32 v{dst}, v{s0}, v{s1}'
def mfma(d, A, B, c=None):
    cs = '0' if c is None else f'v[{c}:{c+3}]'
    return f'v_mfma_f32_16x16x32_bf16 v[{d}:{d+3}], v[{A}:{A+3}], v[{B}:{B+3}], {cs}'
def srd(r): return f's[{r}:{r+3}]'

def interleave(lists):
    out = []
    n = max(len(x) for x in lists)
    for i in range(n):
        for x in lists:
            if i < len(x): out.append(x[i])
    return out

def make_srd(a, r, size):
    a(f's_and_b32 s{r+1}, s{r+1}, 0xffff')
    a(f's_mov_b32 s{r+2}, {size}')
    a(f's_mov_b32 s{r+3}, {SRD3}')

V_ST = 8
class Stamps:
    n_per_layer = 12
    def put(self, a, idx, per_layer=True):
        if not OPT.get('stamps'): return
        a(f's_memrealtime s[{S_ST}:{S_ST+1}]')
        a('s_waitcnt lgkmcnt(0)')
        if per_layer:
            a(f's_mul_i32 s{S_ST+1}, s{S_L}, {self.n_per_layer}')
            a(f's_add_u32 s{S_ST+1}, s{S_ST+1}, {idx + 4}')
            a(f's_mov_b32 m0, s{S_ST+1}')
            a(f'v_writelane_b32 v{V_ST}, s{S_ST}, m0')
        else:
            a(f'v_writelane_b32 v{V_ST}, s{S_ST}, {idx}')
    def cycl(self, a, idx):
        if not OPT.get('stamps'): return
        a(f's_memtime s[{S_ST}:{S_ST+1}]')
        a('s_waitcnt lgkmcnt(0)')
        a(f's_mul_i32 s{S_ST+1}, s{S_L}, {self.n_per_layer}')
        a(f's_add_u32 s{S_ST+1}, s{S_ST+1}, {idx + 4}')
        a(f's_mov_b32 m0, s{S_ST+1}')
        a(f'v_writelane_b32 v{V_ST}, s{S_ST}, m0')
    def cyc(self, a, idx):
        if not OPT.get('stamps'): return
        a(f's_memtime s[{S_ST}:{S_ST+1}]')
        a('s_waitcnt lgkmcnt(0)')
        a(f'v_writelane_b32 v{V_ST}, s{S_ST}, {idx}')
    def flush(self, a):
        if not OPT.get('stamps'): return
        a(f's_lshl_b32 s{T0}, s2, 3')
        a(f's_add_u32 s{T0}, s{T0}, s{S_WAVE}')
        a(f's_lshl_b32 s{T0}, s{T0}, 8')
        a(f's_add_u32 s{T0}, s{T0}, {ST_OFF}')
        a('v_and_b32 v1, 63, v0')
        a('v_lshlrev_b32 v1, 2, v1')
        a(f'buffer_store_dword v{V_ST}, v1, {srd(S_WS)}, s{T0} offen')
        a('s_waitcnt vmcnt(0)')
ST = Stamps()

S_MK = 98
def lane_mask(gs, lines=(0, 1, 2, 3)):
    return sum(1 << (16 * w + g) for w in lines for g in gs)
def set_mask(a, m):
    a(f's_mov_b32 s{S_MK}, {m & 0xffffffff}'); a(f's_mov_b32 s{S_MK+1}, {m >> 32}')
def poll_issue(a, loads, vt):
    for n, (va, so) in enumerate(loads):
        a(f'buffer_load_dword v{vt+n}, v{va}, {srd(S_WS)}, s{so} offen sc1')
def poll_test(a, tag, nloads, vt, masked):
    for n in range(nloads):
        a(f'v_subrev_u32 v{vt+n}, s{tag}, v{vt+n}')
    if nloads == 2:
        a(f'v_max_u32 v{vt}, v{vt}, v{vt+1}')
    a(f'v_cmp_gt_u32 vcc, 8, v{vt}')
    if masked:
        a(f's_and_b64 s[{S_MK+2}:{S_MK+3}], vcc, s[{S_MK}:{S_MK+1}]')
        a(f's_cmp_eq_u64 s[{S_MK+2}:{S_MK+3}], s[{S_MK}:{S_MK+1}]')
    else:
        a('s_cmp_eq_u64 vcc, -1')
def poll(a, tag, loads, vt, code, mask=None):
    lp = a.uniq('poll'); dn = a.uniq('polled')
    if mask is not None: set_mask(a, mask)
    a(f's_mov_b32 s{S_SPIN}, 0')
    a.label(lp)
    poll_issue(a, loads, vt)
    a('s_waitcnt vmcnt(0)')
    poll_test(a, tag, len(loads), vt, mask is not None)
    a(f's_cbranch_scc1 {dn}')
    a(f's_add_u32 s{S_SPIN}, s{S_SPIN}, 1')
    a(f's_cmp_lt_u32 s{S_SPIN}, {SPIN_MAX}')
    a(f's_cbranch_scc1 {lp}')
    a(f'v_mov_b32 v{vt}, {code}')
    a(f's_mov_b32 s{S_SPIN}, 16')
    a(f'buffer_store_dword v{vt}, off, {srd(S_DBG)}, s{S_SPIN}')
    a.label(dn)

def order_b():
    late = OPT.get('late', [3, 11])
    o = [(4 + n) % 16 for n in range(16)]
    return [g for g in o if g not in late] + list(late)
def order_a():
    return OPT.get('order_a', [4, 5, 6, 7, 12, 13, 14, 15, 0, 8, 1, 9, 2, 10, 3, 11])
def set_ga(a):
    if OPT.get('rot', False):
        a(f's_add_u32 s{S_GA}, s{S_GB}, s{S_L}'); a(f's_and_b32 s{S_GA}, s{S_GA}, 7')
        a(f's_and_b32 s{T4}, s{S_GB}, 8'); a(f's_or_b32 s{S_GA}, s{S_GA}, s{T4}')

def flag_store(a, soff, tag, vt):
    a(f'v_mov_b32 v{vt}, s{tag}')
    a('s_mov_b64 exec, 1')
    a(f'buffer_store_dword v{vt}, off, {srd(S_WS)}, s{soff} sc1')
    a('s_mov_b64 exec, -1')

def set_layer_srds(a):
    a(f's_bitcmp1_b32 s{S_L}, 0')
    a(f's_cselect_b32 s{S_WQ}, s{P_BWQ}, s{P_AWQ}')
    a(f's_cselect_b32 s{S_WQ+1}, s{P_BWQ+1}, s{P_AWQ+1}')
    a(f's_cselect_b32 s{S_WO}, s{P_BWO}, s{P_AWO}')
    a(f's_cselect_b32 s{S_WO+1}, s{P_BWO+1}, s{P_AWO+1}')

class C: pass
def consumer_regs():
    c = C()
    R = Regs(10, 256)
    c.acc = {}
    for u in range(3):
        for f in range(2):
            for t in range(4): c.acc[u, f, t] = R.get(4, 4)
    c.accH = [R.get(4, 4), R.get(4, 4)]
    c.buf = []
    for b in range(2):
        d = {}
        for u in range(3):
            for f in range(2): d['w', u, f] = R.get(4, 4)
        for t in range(5): d['t', t] = R.get(4, 4)
        c.buf.append(d)
    c.buf0 = c.buf[0]['w', 0, 0]; c.buf1 = c.buf[1]['w', 0, 0]
    c.xr = {(tt, P): R.get(4, 4) for tt in range(2) for P in range(2)}
    c.M1 = [R.get(), R.get()]
    c.vXrow = R.get(); c.vFrag = R.get(); c.vStat = R.get()
    c.vWB = [R.get() for _ in range(4)]
    c.vWBh = [R.get() for _ in range(4)]
    c.vI = R.get()
    c.Vp = [R.get(10, 2), R.get(10, 2)]
    c.vA, c.vW0, c.vW1, c.vAb, c.vW0b, c.vW1b, c.tmp, c.lane = 1, 2, 3, 4, 5, 6, 7, 9
    c.vA0b, c.vA1b, c.vA1 = 10, 11, 254
    assert R.n <= 254
    c.top = R.n
    return c

def stats_and_store(a, c, store_x=True, b3=False):
    tb = c.buf0
    ones = tb; D = [tb + 4, tb + 8, tb + 12, tb + 16]
    for j in range(4): a(f'v_mov_b32 v{ones+j}, 0x3f803f80')
    if store_x:
        for tt in range(2):
            for P in range(2):
                r = c.xr[tt, P]
                a(f'buffer_store_dwordx4 v[{r}:{r+3}], v{c.vFrag}, {srd(S_WS)}, s{T0} offen offset:{2048*tt + 1024*P} sc1')
    if b3: a('s_barrier')
    for P in range(2):
        for tt in range(2):
            r = c.xr[tt, P]
            a(mfma(D[2*tt], ones, r, None if P == 0 else D[2*tt]))
            a(mfma(D[2*tt+1], r, r, None if P == 0 else D[2*tt+1]))
    for tt in range(2):
        s, g = D[2*tt], D[2*tt+1]
        a(f'v_cndmask_b32 v{s+1}, v{g}, v{g+1}, s[{S_M1}:{S_M1+1}]')
        a(f'v_cndmask_b32 v{s+1}, v{s+1}, v{g+2}, s[{S_M2}:{S_M2+1}]')
        a(f'v_cndmask_b32 v{s+1}, v{s+1}, v{g+3}, s[{S_M3}:{S_M3+1}]')
    a(f's_mov_b64 exec, s[{S_DIAG}:{S_DIAG+1}]')
    for tt in range(2):
        s = D[2*tt]
        a(f'buffer_store_dwordx2 v[{s}:{s+1}], v{c.vStat}, {srd(S_WS)}, s{T2} offen offset:{128*tt} sc1')
    a('s_mov_b64 exec, -1')

def swap_xr(a, c):
    for tt in range(2):
        for P in range(2):
            r = c.xr[tt, P]
            a(f'v_permlane16_swap_b32 v{r}, v{r+2}')
            a(f'v_permlane16_swap_b32 v{r+1}, v{r+3}')

def x_dst_offsets(a, Lreg_plus):
    a(f's_add_u32 s{T3}, s{S_L}, {Lreg_plus}')
    a(f's_lshl_b32 s{T0}, s{T3}, 22')
    a(f's_lshl_b32 s{T4}, s{S_RBB}, 18'); a(f's_add_u32 s{T0}, s{T0}, s{T4}')
    a(f's_lshl_b32 s{T4}, s{S_GB}, 14'); a(f's_add_u32 s{T0}, s{T0}, s{T4}')
    a(f's_lshl_b32 s{T4}, s{S_WAVE}, 12'); a(f's_add_u32 s{T0}, s{T0}, s{T4}')
    if X_OFF: a(f's_add_u32 s{T0}, s{T0}, {X_OFF}')
    a(f's_lshl_b32 s{T2}, s{T3}, 18')
    a(f's_lshl_b32 s{T4}, s{S_RBB}, 14'); a(f's_add_u32 s{T2}, s{T2}, s{T4}')
    a(f's_lshl_b32 s{T4}, s{S_GB}, 10'); a(f's_add_u32 s{T2}, s{T2}, s{T4}')
    a(f's_lshl_b32 s{T4}, s{S_WAVE}, 8'); a(f's_add_u32 s{T2}, s{T2}, s{T4}')
    a(f's_add_u32 s{T2}, s{T2}, {S_OFF}')

def xflag_off(a, dst):
    a(f's_lshl_b32 s{dst}, s{S_RBB}, 9')
    a(f's_lshl_b32 s{T4}, s{S_WAVE}, 7'); a(f's_add_u32 s{dst}, s{dst}, s{T4}')
    a(f's_lshl_b32 s{T4}, s{S_GB}, 2'); a(f's_add_u32 s{dst}, s{dst}, s{T4}')
    a(f's_add_u32 s{dst}, s{dst}, {FX_OFF}')

def row_offsets(a):
    a(f's_lshl_b32 s{T0}, s{S_RBB}, 7')
    a(f's_and_b32 s{T4}, s{S_WAVE}, 1'); a(f's_lshl_b32 s{T4}, s{T4}, 6'); a(f's_add_u32 s{T0}, s{T0}, s{T4}')
    a(f's_lshr_b32 s{T4}, s{S_WAVE}, 1'); a(f's_add_u32 s{T0}, s{T0}, s{T4}')
    a(f's_lshl_b32 s{T0}, s{T0}, 11')
    a(f's_lshl_b32 s{T4}, s{S_GB}, 7'); a(f's_add_u32 s{T0}, s{T0}, s{T4}')
    a(f's_add_u32 s{T1}, s{T0}, 65536')

def consumer_prologue(a, c):
    L = c.lane; tA, tB, tC, tD = c.buf0, c.buf0 + 1, c.buf0 + 2, c.buf0 + 3
    a(f'v_and_b32 v{L}, 63, v0')
    a(f'v_and_b32 v{c.vI}, 15, v{L}')
    a(f'v_lshrrev_b32 v{tB}, 4, v{L}')
    a(f'v_and_b32 v{tC}, 1, v{tB}'); a(f'v_lshlrev_b32 v{tC}, 1, v{tC}')
    a(f'v_lshrrev_b32 v{tD}, 1, v{tB}'); a(f'v_add_u32 v{tC}, v{tC}, v{tD}')
    a(f'v_lshlrev_b32 v{c.vXrow}, 4, v{tC}')
    a(f'v_lshl_add_u32 v{c.vXrow}, v{c.vI}, 12, v{c.vXrow}')
    a(f'v_lshlrev_b32 v{c.vFrag}, 8, v{tC}')
    a(f'v_lshl_add_u32 v{c.vFrag}, v{c.vI}, 4, v{c.vFrag}')
    a(f'v_lshlrev_b32 v{c.vStat}, 3, v{c.vI}')
    a(f'v_lshlrev_b32 v{c.vAb}, 4, v{L}')
    row_offsets(a)
    for tt in range(2):
        for P in range(2):
            r = c.xr[tt, P]
            a(f'buffer_load_dwordx4 v[{r}:{r+3}], v{c.vXrow}, {srd(S_AX)}, s{T0 if tt == 0 else T1} offen offset:{64*P}')
    a(f'v_lshrrev_b32 v{tC}, 2, v{c.vI}')
    a(f'v_lshl_add_u32 v{tD}, v{tB}, 3, v{tC}')
    a(f'v_lshlrev_b32 v{c.vW0b}, 7, v{tD}')
    a(f'v_and_b32 v{tD}, 3, v{c.vI}')
    a(f'v_lshl_add_u32 v{c.vW0b}, v{tD}, 3, v{c.vW0b}')
    a(f'v_lshrrev_b32 v{tC}, 1, v{tC}')
    a(f'v_and_b32 v{tD}, 1, v{tB}')
    a(f'v_lshl_add_u32 v{tC}, v{tD}, 1, v{tC}')
    for f in range(4):
        a(f'v_xor_b32 v{tD}, {f}, v{tC}')
        a(f'v_lshl_add_u32 v{c.vWB[f]}, v{tD}, 5, v{c.vW0b}')
        a(f'v_add_u32 v{c.vWBh[f]}, 0x10000, v{c.vWB[f]}')
    a(f's_lshl_b32 s{T0}, s{S_H}, 1')
    a(f'v_xor_b32 v{tC}, s{T0}, v{tC}')
    a(f'v_xor_b32 v{tD}, 1, v{tC}')
    a(f'v_lshl_add_u32 v{c.vW1b}, v{tD}, 5, v{c.vW0b}')
    a(f'v_lshl_add_u32 v{c.vW0b}, v{tC}, 5, v{c.vW0b}')
    if OPT.get('wb128', 0) & 1:
        a(f's_lshl_b32 s{T0}, s{S_H}, 11'); a(f'v_add_u32 v{c.vW0b}, s{T0}, v{c.vAb}')
    if OPT.get('wb128', 0) & 2:
        for f in range(4):
            a(f'v_add_u32 v{c.vWB[f]}, {1024 * f}, v{c.vAb}'); a(f'v_add_u32 v{c.vWBh[f]}, 0x10000, v{c.vWB[f]}')
    vK, tmpv = tA, tD
    a(f'v_lshlrev_b32 v{vK}, 2, v{tB}')
    for r in range(4):
        sel = S_SEL + 2*r; val = S_VAL + 2*r; val0 = S_VAL0 + 2*r
        a(f'v_add_u32 v{tmpv}, {r}, v{vK}')
        a(f'v_cmp_le_u32 s[{sel}:{sel+1}], v{tmpv}, v{c.vI}')
        a(f'v_sub_u32 v{tmpv}, v{c.vI}, v{tmpv}')
        a(f'v_and_b32 v{tmpv}, 15, v{tmpv}')
        a(f'v_cmp_gt_u32 s[{val}:{val+1}], 8, v{tmpv}')
        a(f's_and_b64 s[{val0}:{val0+1}], s[{val}:{val+1}], s[{sel}:{sel+1}]')
        a(f's_cmp_eq_u32 s{S_RBA}, 0')
        a(f's_cselect_b64 s[{val0}:{val0+1}], s[{val0}:{val0+1}], s[{val}:{val+1}]')
    a(f'v_mov_b32 v{tC}, 0xffff'); a(f'v_mov_b32 v{tA}, 0xffff0000')
    for j in range(2):
        s0 = S_SEL + 4*j; s1 = s0 + 2
        a(f'v_cndmask_b32 v{c.M1[j]}, 0, v{tC}, s[{s0}:{s0+1}]')
        a(f'v_cndmask_b32 v{tmpv}, 0, v{tA}, s[{s1}:{s1+1}]')
        a(f'v_or_b32 v{c.M1[j]}, v{c.M1[j]}, v{tmpv}')
    a(f'v_and_b32 v{tC}, 3, v{c.vI}')
    a(f'v_cmp_eq_u32 s[{S_M1}:{S_M1+1}], 1, v{tC}')
    a(f'v_cmp_eq_u32 s[{S_M2}:{S_M2+1}], 2, v{tC}')
    a(f'v_cmp_eq_u32 s[{S_M3}:{S_M3+1}], 3, v{tC}')
    a(f'v_lshrrev_b32 v{tC}, 2, v{c.vI}')
    a(f'v_cmp_eq_u32 s[{S_DIAG}:{S_DIAG+1}], v{tC}, v{tB}')
    a(f's_mov_b32 s{S_C0+2}, 0x3e8293ee')
    a(f's_mov_b32 s{S_C0+1}, 0xffff0000')
    a(f'v_lshrrev_b32 v{tC}, 1, v{c.vI}')
    a(f'v_xor_b32 v{tC}, v{tC}, v{tB}')
    a(f'v_lshlrev_b32 v{tC}, 4, v{tC}')
    a(f'v_lshl_add_u32 v{c.vA0b}, v{c.vI}, 7, v{tC}')
    a(f'v_xor_b32 v{c.vA1b}, 64, v{c.vA0b}')
    x_dst_offsets(a, 0)
    xflag_off(a, T5)
    a(f's_mov_b32 s{S_FLAGAT}, 2')
    a('s_waitcnt vmcnt(0)')
    ST.put(a, 1, False)
    stats_and_store(a, c, store_x=False)
    swap_xr(a, c)
    a('s_waitcnt lgkmcnt(0)')
    a(f's_add_u32 s{S_NONCE}, s{S_NONCE}, 256')
    a(f's_add_u32 s{S_TAG}, s{S_NONCE}, 1')
    ST.put(a, 2, False)

def x_poll_offs(a):
    a(f's_lshl_b32 s{T0}, s{S_RBA}, 9'); a(f's_add_u32 s{T0}, s{T0}, {FX_OFF}')
    a(f's_sub_u32 s{T3}, s{S_RBA}, 1'); a(f's_max_i32 s{T3}, s{T3}, 0')
    a(f's_lshl_b32 s{T1}, s{T3}, 9'); a(f's_add_u32 s{T1}, s{T1}, {FX_OFF}')
def o_poll_offs(a):
    a(f's_lshl_b32 s{T0}, s{S_RBB}, 9'); a(f's_add_u32 s{T0}, s{T0}, {FO_OFF}')
def pre_poll(a, c, kind):
    sk = a.uniq('prepoll_skip'); pv = c.buf1
    a(f's_cmp_lg_u32 s{S_WAVE}, 0')
    a(f's_cbranch_scc1 {sk}')
    a(f'v_lshrrev_b32 v{pv}, 4, v{c.lane}')
    a(f'v_lshlrev_b32 v{pv}, 7, v{pv}')
    a(f'v_lshl_add_u32 v{pv}, v{c.vI}, 2, v{pv}')
    if kind == 'x':
        x_poll_offs(a); poll_issue(a, [(pv, T0), (pv, T1)], pv + 1)
    else:
        o_poll_offs(a); poll_issue(a, [(pv, T0)], pv + 1)
    a.label(sk)
def finish_poll(a, c, kind, mask, code):
    sk = a.uniq('poll_skip'); pv = c.buf1
    a(f's_cmp_lg_u32 s{S_WAVE}, 0')
    a(f's_cbranch_scc1 {sk}')
    n = 2 if kind == 'x' else 1
    if OPT.get('prepoll'):
        set_mask(a, mask)
        poll_test(a, S_TAG, n, pv + 1, True)
        a(f's_cbranch_scc1 {sk}')
    a(f'v_lshrrev_b32 v{pv}, 4, v{c.lane}')
    a(f'v_lshlrev_b32 v{pv}, 7, v{pv}')
    a(f'v_lshl_add_u32 v{pv}, v{c.vI}, 2, v{pv}')
    if kind == 'x':
        x_poll_offs(a); poll(a, S_TAG, [(pv, T0), (pv, T1)], pv + 1, code, mask)
    else:
        o_poll_offs(a); poll(a, S_TAG, [(pv, T0)], pv + 1, code, mask)
    a.label(sk)

def poll_addr(a, c):
    a(f'v_lshrrev_b32 v{c.buf0}, 4, v{c.lane}')
    a(f'v_lshlrev_b32 v{c.buf0}, 7, v{c.buf0}')
    a(f'v_lshl_add_u32 v{c.buf0}, v{c.vI}, 2, v{c.buf0}')

def a_consumer(a, c, par):
    acc, accH, buf = c.acc, c.accH, c.buf
    vA, vW0, vW1, vA1 = c.vA, c.vW0, c.vW1, c.vA1
    tag = f'p{par}'
    a.label(f'a_cons_{tag}')
    for k, r in list(acc.items()) + [(0, accH[0]), (1, accH[1])]:
        for j in range(0, 4): a(f'v_mov_b32 v{r+j}, 0')
    a(f's_mov_b32 s{S_SLOTA}, 0'); a(f's_mov_b32 s{S_SLOTW}, {W0}')
    a(f'v_mov_b32 v{vA}, v{c.vA0b}')
    a(f'v_mov_b32 v{vA1}, v{c.vA1b}')
    a(f'v_add_u32 v{vW0}, s{S_SLOTW}, v{c.vW0b}')
    a(f'v_add_u32 v{vW1}, s{S_SLOTW}, v{c.vW1b}')
    def reads(b, ks):
        d = buf[b]; out = []
        for u in range(3):
            for f in range(2):
                vW = vW0 if f == 0 else vW1
                if OPT.get('wb128', 0) & 1:
                    r = d['w', u, f]
                    out.append(f'ds_read_b128 v[{r}:{r+3}], v{vW0} offset:{u*8192 + ks*4096 + f*1024}')
                    continue
                for j in range(2):
                    r = d['w', u, f] + 2 * j
                    out.append(f'ds_read_b64_tr_b16 v[{r}:{r+1}], v{vW} offset:{u*8192 + ks*4096 + j*512}')
        for t in range(5):
            tau = par * 4 + t if t < 4 else 8
            r = d['t', t]
            out.append(f'ds_read_b128 v[{r}:{r+3}], v{vA if ks == 0 else vA1} offset:{tau*2048}')
        if OPT.get('wb128', 0) & 1:
            wq = out[0:2]; wk = out[2:4]; wv = out[4:6]; tt = out[6:11]
            return wq[0:1] + tt[0:4] + wq[1:2] + wk + wv + tt[4:5]
        wq = out[0:4]; wk = out[4:8]; wv = out[8:12]; tt = out[12:17]
        return wq[0:2] + tt[0:4] + wq[2:4] + wk + wv + tt[4:5]
    def mfmas(b, halo_first=False):
        d = buf[b]; out = []; h = []
        for u in range(3):
            for f in range(2):
                for t in range(4):
                    cc = acc[u, f, t]; w = d['w', u, f]; x = d['t', t]
                    A, B = (w, x) if u < 2 else (x, w)
                    out.append(mfma(cc, A, B, cc))
        for f in range(2):
            cc = accH[f]; x = d['t', 4]
            A, B = (d['w', 1, f], x) if par == 0 else (x, d['w', 2, f])
            h.append(mfma(cc, A, B, cc))
        return h + out if halo_first else out + h
    def step(ms, fill, late=()):
        fl = list(fill) + list(late)
        for i, x in enumerate(ms):
            a(x)
            if i < len(fl): a(fl[i])
        for x in fl[len(ms):]: a(x)
    adv = [f's_add_u32 s{S_SLOTA}, s{S_SLOTA}, {A_SLOT}',
           f's_add_u32 s{S_SLOTW}, s{S_SLOTW}, {W_SLOT}',
           f's_cmp_eq_u32 s{S_SLOTA}, {3 * A_SLOT}',
           f's_cselect_b32 s{S_SLOTA}, 0, s{S_SLOTA}'] + ([
           f's_cmp_eq_u32 s{S_SLOTW}, {W0 + NW * W_SLOT}'] if NW != 3 else []) + [
           f's_cselect_b32 s{S_SLOTW}, {W0}, s{S_SLOTW}',
           f'v_add_u32 v{vA}, s{S_SLOTA}, v{c.vA0b}',
           f'v_add_u32 v{vA1}, s{S_SLOTA}, v{c.vA1b}',
           f'v_add_u32 v{vW0}, s{S_SLOTW}, v{c.vW0b}',
           f'v_add_u32 v{vW1}, s{S_SLOTW}, v{c.vW1b}']
    a(f's_mov_b32 s{S_CNT}, 0')
    a(f's_cmp_eq_u32 s{S_L}, 0')
    a(f's_cbranch_scc1 a_first_{tag}')
    if not OPT.get('sx'):
        finish_poll(a, c, 'x', lane_mask(order_a()[:OPT.get('xg1', 4)]), 0x101)
        a('s_barrier')
    a.label(f'a_first_{tag}')
    ST.put(a, 0)
    a('s_barrier')
    ST.put(a, 1); ST.cycl(a, 10)
    for x in reads(0, 0): a(x)
    a('s_waitcnt lgkmcnt(0)')
    lp = f'ac_loop_{tag}'
    a.label(lp)
    step(mfmas(0), reads(1, 1), adv)
    a('s_waitcnt lgkmcnt(0)')
    a('s_barrier')
    step(mfmas(1), reads(0, 0), [f's_cmp_eq_u32 s{S_CNT}, s{S_FLAGAT}', f's_cbranch_scc1 a_flag_{tag}\na_flag_back_{tag}:',
                                 f's_add_u32 s{S_CNT}, s{S_CNT}, 1', f's_cmp_lt_u32 s{S_CNT}, 15'])
    a('s_waitcnt lgkmcnt(0)')
    a(f's_cbranch_scc1 {lp}')
    a(f's_branch a_last_{tag}')
    a.label(f'a_flag_{tag}')
    a('s_waitcnt vmcnt(0)')
    flag_store(a, T5, S_TAG, c.tmp)
    a(f's_branch a_flag_back_{tag}')
    a.label(f'a_last_{tag}')
    step(mfmas(0), reads(1, 1))
    b0 = c.buf0
    colst = [b0 + 2*t for t in range(5)]
    csq = [b0 + 12, b0 + 16]; csk = [b0 + 20, b0 + 24]; csv = b0 + 10
    v4 = {0: (b0 + 28, b0 + 32), 1: (b0 + 36, b0 + 40)}
    b1 = c.buf1
    v4.update({2: (b1, b1 + 4), 3: (b1 + 8, b1 + 12), 4: (b1 + 16, b1 + 20)})
    vS, vS4, vC4, vC = vA, vW0, vW1, c.tmp
    pre = [f's_and_b32 s{T0}, s{S_L}, 1',
           f's_lshl_b32 s{T0}, s{T0}, 10',
           f's_lshl_b32 s{T1}, s{S_H}, 7',
           f's_add_u32 s{T0}, s{T0}, s{T1}',
           f's_add_u32 s{T0}, s{T0}, {CS0}',
           f'v_lshlrev_b32 v{vS}, 2, v{c.vI}',
           f'v_and_b32 v{vS4}, 0x30, v{c.lane}',
           f'v_add_u32 v{vC4}, s{T0}, v{vS4}',
           f'v_add_u32 v{vC}, s{T0}, v{vS}',
           f'v_add_u32 v{vS}, {NM0}, v{vS}',
           f'v_add_u32 v{vS4}, {NM0}, v{vS4}']
    for x in pre: a(x)
    a('s_waitcnt lgkmcnt(0)')
    a('s_barrier')
    def tile_of(t): return par * 4 + t if t < 4 else 8
    rd = []
    htile = 4
    if par == 0:
        rd += [f'ds_read_b32 v{colst[4]}, v{vS} offset:{8*64}', f'ds_read_b32 v{colst[4]+1}, v{vS} offset:{8*64 + 1024}']
    for f in range(2): rd.append(f'ds_read_b128 v[{csk[f]}:{csk[f]+3}], v{vC4} offset:{256 + 64*f}')
    for f in range(2): rd.append(f'ds_read_b32 v{csv+f}, v{vC} offset:{512 + 64*f}')
    v4order = [4, 0, 1, 2, 3] if par == 1 else [0, 1, 2, 3]
    slots = [v4[0], v4[1], v4[2], v4[3], v4[4]]
    v4m = {t: slots[n] for n, t in enumerate(v4order)}
    def v4read(t):
        return [f'ds_read_b128 v[{v4m[t][0]}:{v4m[t][0]+3}], v{vS4} offset:{tile_of(t)*64}',
                f'ds_read_b128 v[{v4m[t][1]}:{v4m[t][1]+3}], v{vS4} offset:{tile_of(t)*64 + 1024}']
    for t in v4order[:2]: rd += v4read(t)
    for t in range(4):
        rd += [f'ds_read_b32 v{colst[t]}, v{vS} offset:{tile_of(t)*64}', f'ds_read_b32 v{colst[t]+1}, v{vS} offset:{tile_of(t)*64 + 1024}']
    for f in range(2): rd.append(f'ds_read_b128 v[{csq[f]}:{csq[f]+3}], v{vC4} offset:{64*f}')
    step(mfmas(1, True), rd)
    for t in v4order[2:4]:
        for x in v4read(t): a(x)
    ST.put(a, 2); ST.cycl(a, 11)
    def fix_col(r, cs, pair, scale):
        o = []
        for j in (0, 2):
            o.append(f'v_pk_fma_f32 v[{r+j}:{r+j+1}], v[{cs+j}:{cs+j+1}], v[{pair}:{pair+1}], v[{r+j}:{r+j+1}] op_sel_hi:[1,0,1]')
        if scale:
            if OPT.get('nopk'):
                for j in range(4): o.append(f'v_mul_f32 v{r+j}, v{r+j}, v{pair+1}')
            else:
                for j in (0, 2):
                    o.append(f'v_pk_mul_f32 v[{r+j}:{r+j+1}], v[{pair}:{pair+1}], v[{r+j}:{r+j+1}] op_sel:[1,0] op_sel_hi:[1,1]')
        return o
    def fix_row(r, f, t):
        nm, rs = v4m[t]; o = []
        for j in (0, 2):
            if f == 1 and OPT.get('nopk'):
                for e in range(2): o.append(f'v_fma_f32 v{r+j+e}, v{nm+j+e}, v{csv+1}, v{r+j+e}')
                continue
            if f == 0: o.append(f'v_pk_fma_f32 v[{r+j}:{r+j+1}], v[{nm+j}:{nm+j+1}], v[{csv}:{csv+1}], v[{r+j}:{r+j+1}] op_sel_hi:[1,0,1]')
            else: o.append(f'v_pk_fma_f32 v[{r+j}:{r+j+1}], v[{csv}:{csv+1}], v[{nm+j}:{nm+j+1}], v[{r+j}:{r+j+1}] op_sel:[1,0,0] op_sel_hi:[1,1,1]')
        for j in (0, 2):
            o.append(f'v_pk_mul_f32 v[{r+j}:{r+j+1}], v[{r+j}:{r+j+1}], v[{rs+j}:{rs+j+1}]')
        return o
    a('s_waitcnt lgkmcnt(0)')
    H = accH[0]
    hs = []
    for f in range(2):
        s = fix_col(accH[f], csk[f], colst[4], True) if par == 0 else fix_row(accH[f], f, 4)
        hs.append(s)
    for x in interleave(hs): a(x)
    a(cvt(H, accH[0], accH[0] + 1)); a(cvt(H + 1, accH[0] + 2, accH[0] + 3))
    a(cvt(H + 2, accH[1], accH[1] + 1)); a(cvt(H + 3, accH[1] + 2, accH[1] + 3))
    vH = vA
    a(f'v_lshlrev_b32 v{vH}, 4, v{c.lane}')
    a(f's_lshl_b32 s{T0}, s{S_H}, 11')
    a(f's_add_u32 s{T0}, s{T0}, {HALO0}')
    a(f'v_add_u32 v{vH}, s{T0}, v{vH}')
    a(f'ds_write_b128 v{vH}, v[{H}:{H+3}] offset:{0 if par == 0 else 1024}')
    for t in v4order[4:]:
        for x in v4read(t): a(x)
    Qp = [acc[0, 0, t] for t in range(4)]
    Kp = [accH[1]] + [acc[1, 0, t] for t in range(4)]
    Vp = c.Vp
    streams = []
    for t in range(4):
        s = []
        for f in range(2): s += fix_col(acc[1, f, t], csk[f], colst[t], True)
        q = acc[1, 0, t]; q1 = acc[1, 1, t]
        s += [cvt(q, q, q + 1), cvt(q + 1, q + 2, q + 3), cvt(q + 2, q1, q1 + 1), cvt(q + 3, q1 + 2, q1 + 3)]
        for f in range(2): s += fix_col(acc[0, f, t], csq[f], colst[t], False)
        q = acc[0, 0, t]; q1 = acc[0, 1, t]
        s += [cvt(q, q, q + 1), cvt(q + 1, q + 2, q + 3), cvt(q + 2, q1, q1 + 1), cvt(q + 3, q1 + 2, q1 + 3)]
        s.append(f'v_mul_f32 v{colst[t]+1}, s{S_C0+2}, v{colst[t]+1}')
        streams.append(s)
    for x in interleave(streams): a(x)
    if OPT.get('dump'):
        dk = a.uniq('dump_skip')
        a(f's_cmp_lg_u32 s{S_L}, 0'); a(f's_cbranch_scc1 {dk}')
        a(f's_lshl_b32 s{T0}, s2, 2'); a(f's_add_u32 s{T0}, s{T0}, s{S_WAVE}'); a(f's_mul_i32 s{T0}, s{T0}, 16384'); a(f's_add_u32 s{T0}, s{T0}, {64 * MB}')
        a(f'v_lshlrev_b32 v{vW0}, 2, v{c.lane}')
        regs = [acc[1, 0, t] + j for t in range(4) for j in range(4)] + [acc[0, 0, t] + j for t in range(4) for j in range(4)] + [colst[t] + j for t in range(4) for j in range(2)]
        regs += [acc[2, f, t] + j for f in range(2) for t in range(4) for j in range(4)][:24]
        for n, r in enumerate(regs):
            if n % 16 == 0 and n: a(f's_add_u32 s{T0}, s{T0}, 4096')
            a(f'buffer_store_dword v{r}, v{vW0}, {srd(S_WS)}, s{T0} offen offset:{(n % 16) * 256}')
        a('s_waitcnt vmcnt(0)')
        a.label(dk)
    a('s_waitcnt lgkmcnt(0)')
    a('s_barrier')
    if par == 0:
        a(f'v_xor_b32 v{vW0}, {8*16}, v{vH}')
        a(f'v_xor_b32 v{vW1}, {32*16}, v{vH}')
        vKH, vVH = vW0, vW1
    else:
        vKH = vVH = vH
    a(f'ds_read_b128 v[{Kp[0]}:{Kp[0]+3}], v{vKH}')
    a(f'ds_read_b64 v[{Vp[0]}:{Vp[0]+1}], v{vVH} offset:1024')
    a(f'ds_read_b64 v[{Vp[1]}:{Vp[1]+1}], v{vVH} offset:1032')
    S0 = [acc[0, 1, t] for t in range(4)]; S1 = [acc[1, 1, t] for t in range(4)]
    smm = []
    for t in range(4): smm.append(mfma(S1[t], Kp[t+1], Qp[t]))
    for t in range(1, 4): smm.append(mfma(S0[t], Kp[t], Qp[t]))
    vfix = []
    for t in range(4):
        for f in range(2):
            r = acc[2, f, t]
            vfix.append(fix_row(r, f, t) + [cvt(Vp[f] + 2 + 2*t, r, r + 1), cvt(Vp[f] + 3 + 2*t, r + 2, r + 3)])
    vf = interleave(vfix[0:4]) + interleave(vfix[4:8])
    n = 0
    for x in smm:
        a(x)
        for y in vf[n:n+2]: a(y)
        n += 2
    for y in vf[n:]: a(y)
    a('s_waitcnt lgkmcnt(0)')
    a(mfma(S0[0], Kp[0], Qp[0]))
    vNEG = c.tmp
    a(f'v_mov_b32 v{vNEG}, 0xf149f2ca')
    streams = []
    for t in range(4):
        s = []
        m = S0[t]; tp = acc[1, 0, t]; Pop = acc[2, 0, t]; cq = colst[t] + 1
        Ob = [acc[0, 0, t], S1[t]]
        val = (S_VAL0 if t == 0 else S_VAL)
        for r in range(4):
            s.append(f'v_cndmask_b32 v{m+r}, v{S0[t]+r}, v{S1[t]+r}, s[{S_SEL+2*r}:{S_SEL+2*r+1}]')
        for r in range(4):
            s.append(f'v_cndmask_b32 v{m+r}, v{vNEG}, v{m+r}, s[{val+2*r}:{val+2*r+1}]')
        mx, t2 = tp, tp + 1
        s.append(f'v_max3_f32 v{mx}, v{m}, v{m+1}, v{m+2}')
        s.append(f'v_max_f32 v{mx}, v{mx}, v{m+3}')
        for sw in ('16', '32'):
            s.append(f'v_mov_b32 v{t2}, v{mx}')
            s.append(f'v_permlane{sw}_swap_b32 v{mx}, v{t2}')
            s.append(f'v_max_f32 v{mx}, v{mx}, v{t2}')
        s.append(f'v_mul_f32 v{mx}, v{mx}, v{cq}')
        for r in range(4): s.append(f'v_fma_f32 v{m+r}, v{m+r}, v{cq}, -v{mx}')
        for r in range(4): s.append(f'v_exp_f32 v{m+r}, v{m+r}')
        sm = tp
        s.append(f'v_add_f32 v{sm}, v{m}, v{m+1}')
        s.append(f'v_add_f32 v{t2}, v{m+2}, v{m+3}')
        s.append(f'v_add_f32 v{sm}, v{sm}, v{t2}')
        for sw in ('16', '32'):
            s.append(f'v_mov_b32 v{t2}, v{sm}')
            s.append(f'v_permlane{sw}_swap_b32 v{sm}, v{t2}')
            s.append(f'v_add_f32 v{sm}, v{sm}, v{t2}')
        s.append(f'v_rcp_f32 v{sm}, v{sm}')
        for r in range(4): s.append(f'v_mul_f32 v{m+r}, v{m+r}, v{sm}')
        s.append(cvt(tp + 2, m, m + 1)); s.append(cvt(tp + 3, m + 2, m + 3))
        for j in range(2):
            s.append(f'v_bfi_b32 v{Pop+j}, v{c.M1[j]}, 0, v{tp+2+j}')
            s.append(f'v_and_b32 v{Pop+2+j}, v{c.M1[j]}, v{tp+2+j}')
        for f in range(2):
            s.append(mfma(Ob[f], Vp[f] + 2*t, Pop))
        o = tp
        s.append(cvt(o, Ob[0], Ob[0] + 1)); s.append(cvt(o + 1, Ob[0] + 2, Ob[0] + 3))
        s.append(cvt(o + 2, Ob[1], Ob[1] + 1)); s.append(cvt(o + 3, Ob[1] + 2, Ob[1] + 3))
        s.append(f'v_permlane16_swap_b32 v{o}, v{o+2}')
        s.append(f'v_permlane16_swap_b32 v{o+1}, v{o+3}')
        s.append(f'buffer_store_dwordx4 v[{o}:{o+3}], v{c.vFrag}, {srd(S_WS)}, s{T0 + t} offen sc1')
        streams.append(s)
    a(f's_lshl_b32 s{T0}, s{S_L}, 22')
    a(f's_lshl_b32 s{T4}, s{S_RBA}, 18'); a(f's_add_u32 s{T0}, s{T0}, s{T4}')
    a(f's_lshl_b32 s{T4}, s{S_GA}, 11'); a(f's_add_u32 s{T0}, s{T0}, s{T4}')
    a(f's_lshl_b32 s{T4}, s{S_H}, 10'); a(f's_add_u32 s{T0}, s{T0}, s{T4}')
    a(f's_add_u32 s{T0}, s{T0}, {O_OFF + par * 4 * 32768}')
    for t in range(1, 4): a(f's_add_u32 s{T0+t}, s{T0}, {32768*t}')
    for x in interleave(streams): a(x)
    ST.put(a, 3)
    if not OPT.get('so'):
        a(f's_lshl_b32 s{T5}, s{S_RBA}, 9')
        a(f's_lshl_b32 s{T4}, s{S_WAVE}, 7'); a(f's_add_u32 s{T5}, s{T5}, s{T4}')
        a(f's_lshl_b32 s{T4}, s{S_GA}, 2'); a(f's_add_u32 s{T5}, s{T5}, s{T4}')
        a(f's_add_u32 s{T5}, s{T5}, {FO_OFF}')
        a('s_waitcnt vmcnt(0)')
        flag_store(a, T5, S_TAG, c.tmp)
        ST.put(a, 4)
    a('s_branch b_cons')

DEPTH = 16
S_LINK, S_ANY, S_NFIX = 12, 14, 15
SLOT_S = [28, 29, 30, 31, 32, 33, 34, 35, 8, 9, 10, 11]
def b_consumer(a, c):
    so = OPT.get('so'); sx = OPT.get('sx')
    NR = OPT.get('nr', 9) if so else DEPTH
    R = Regs(10, 204)
    acc = {(f, t): R.get(4, 4) for f in range(4) for t in range(2)}
    wb = [[R.get(4, 4) for f in range(4)] for b in range(2)]
    ring = [[R.get(4, 4) for t in range(2)] for d in range(NR)]
    vW = c.vWB; vWh = c.vWBh
    order = order_b()
    heads = [2 * g + j for g in order for j in range(2)]
    a.label('b_cons')
    for tt in range(2):
        for f in range(4):
            x = c.xr[tt, f >> 1] + 2 * (f & 1); r = acc[f, tt]
            for j in range(2):
                a(f'v_lshlrev_b32 v{r+2*j}, 16, v{x+j}')
                a(f'v_and_b32 v{r+2*j+1}, s{S_C0+1}, v{x+j}')
    a(f's_lshl_b32 s{S_KA}, s{S_L}, 22')
    a(f's_lshl_b32 s{T4}, s{S_RBB}, 18'); a(f's_add_u32 s{S_KA}, s{S_KA}, s{T4}')
    a(f's_lshl_b32 s{T4}, s{S_WAVE}, 16'); a(f's_add_u32 s{S_KA}, s{S_KA}, s{T4}')
    a(f's_add_u32 s{S_KA}, s{S_KA}, {O_OFF}')
    a(f's_add_u32 s{S_KW}, s{S_KA}, 32768')
    if so:
        vAb2 = R.get(); vM = R.get(); vM2 = R.get()
        a(f'v_add_u32 v{vAb2}, 32768, v{c.vAb}')
    def slot_loads(d):
        return [f'buffer_load_dwordx4 v[{ring[d][t]}:{ring[d][t]+3}], v{(c.vAb, vAb2)[t]}, {srd(S_WS)}, s{SLOT_S[d]} offen sc1' for t in range(2)]
    def tok_load(n):
        o = []; hd = heads[n]
        if so:
            return [f's_add_u32 s{SLOT_S[n % NR]}, s{S_KA}, {hd * 1024}'] + slot_loads(n % NR)
        if n % 2 == 0:
            o += [f's_add_u32 s{T0}, s{S_KA}, {(hd >> 2) * 4096}', f's_add_u32 s{T1}, s{S_KW}, {(hd >> 2) * 4096}']
        for t in range(2):
            r = ring[n % NR][t]
            o.append(f'buffer_load_dwordx4 v[{r}:{r+3}], v{c.vAb}, {srd(S_WS)}, s{T0 + t} offen offset:{1024*(hd & 3)} sc1')
        return o
    def mark_test(d, vm_):
        p, q = ring[d]
        if OPT.get('sochk', 'full') == 'one':
            return [f'v_max_u32 v{vm_}, v{p}, v{q}', f'v_cmp_eq_u32 vcc, -1, v{vm_}']
        return [f'v_max3_u32 v{vm_}, v{p}, v{p+1}, v{p+2}', f'v_max3_u32 v{vm_+0}, v{vm_}, v{p+3}, v{q}',
                f'v_max3_u32 v{vm_}, v{vm_}, v{q+1}, v{q+2}', f'v_max_u32 v{vm_}, v{vm_}, v{q+3}',
                f'v_cmp_eq_u32 vcc, -1, v{vm_}']
    stubs = []
    def fix_branch(n):
        stubs.append(n)
        return f's_cbranch_vccnz so_stub_{n}\nso_back_{n}:'
    def wreads(n):
        b = n & 1; out = []; hd = heads[n]
        for f in range(4):
            if OPT.get('wb128', 0) & 2:
                r = wb[b][f]
                out.append(f'ds_read_b128 v[{r}:{r+3}], v{(vW if hd < 16 else vWh)[f]} offset:{(hd % 16)*4096}')
                continue
            for j in range(2):
                r = wb[b][f] + 2*j
                out.append(f'ds_read_b64_tr_b16 v[{r}:{r+1}], v{(vW if hd < 16 else vWh)[f]} offset:{(hd % 16)*4096 + j*512}')
        return out
    if so:
        w_ = OPT.get('so_wait', 0)
        if w_ is not None: a(f's_waitcnt vmcnt({w_})')
        ST.put(a, 4)
    else:
        finish_poll(a, c, 'o', lane_mask(order[:DEPTH // 2]), 0x200)
    a('s_barrier')
    ST.put(a, 5)
    D0 = min(NR, OPT.get('d0', 8))
    for n in range(D0):
        for x in tok_load(n): a(x)
    if so:
        for n in range(D0, NR): a(tok_load(n)[0])
    ptr = D0
    for x in wreads(0): a(x)
    nlate = len(OPT.get('late', [3, 11]))
    if so:
        a(f's_waitcnt vmcnt({2 * (D0 - 1)})')
        for x in mark_test(0, vM): a(x)
        a(fix_branch(0))
    for n in range(32):
        b = n & 1
        nxt = wreads(n + 1) if n + 1 < 32 else []
        later = ptr - n - 1
        a(f's_waitcnt lgkmcnt(0)' if so else f's_waitcnt vmcnt({2*later}) lgkmcnt(0)')
        if n == 0: ST.put(a, 6)
        ms = []
        for f in range(4):
            for t in range(2):
                cc = acc[f, t]; w = wb[b][f]; x = ring[n % NR][t]
                ms.append(mfma(cc, w, x, cc))
        new = min(32, n + NR, ptr + OPT.get('brate', 1))
        gaps = [[] for _ in range(8)]
        br = OPT.get('br', (0, 1, 2, 3) if OPT.get('wb128', 0) & 2 else (0, 0, 1, 1, 2, 2, 3, 3))
        bl = OPT.get('bl', (3, 4) if so else (4, 6))
        items = []
        for m in range(ptr, new):
            pre = ['s_barrier'] if (not so and (m == DEPTH or m == 32 - 2 * nlate)) else []
            tl = tok_load(m)
            items.append(pre + tl[:-1]); items.append(tl[-1:])
        if len(items) > len(bl): bl = (4, 5, 6, 7, 7, 7, 7, 7)
        for i, x in enumerate(nxt): gaps[br[i]].append(x)
        for k, it in enumerate(items): gaps[bl[k]] += it
        if so and n + 1 < 32:
            mt = mark_test((n + 1) % NR, vM)
            g0 = OPT.get('cg', 5)
            gaps[g0].append(f's_waitcnt vmcnt({2 * (new - n - 2)})')
            if len(mt) == 2:
                gaps[g0].append(mt[0]); gaps[g0 + 1].append(mt[1])
            else:
                gaps[g0] += mt[0:2]; gaps[g0 + 1] += mt[2:5]
            gaps[7].append(fix_branch(n + 1))
        if n == 31 and sx:
            pass
        for i, m in enumerate(ms):
            a(m)
            for x in gaps[i]: a(x)
        ptr = new
    if not sx: a('s_barrier')
    ST.put(a, 7)
    x_dst_offsets(a, 1)
    for tt in range(2):
        for f in range(4):
            x = c.xr[tt, f >> 1] + 2 * (f & 1); r = acc[f, tt]
            a(cvt(x, r, r + 1)); a(cvt(x + 1, r + 2, r + 3))
    swap_xr(a, c)
    a(f's_cmp_eq_u32 s{S_L}, 3')
    a('s_cbranch_scc1 b_final')
    stats_and_store(a, c, b3=sx)
    swap_xr(a, c)
    xflag_off(a, T5)
    a(f's_add_u32 s{S_L}, s{S_L}, 1')
    a(f's_add_u32 s{S_TAG}, s{S_TAG}, 1')
    set_ga(a)
    ST.put(a, 8 - 12)
    a(f's_mov_b32 s{S_FLAGAT}, -1')
    a(f'v_mov_b32 v{c.vA0b}, v{c.vAb}')
    a(f'v_add_u32 v{c.vA1b}, 1024, v{c.vAb}')
    if sx:
        a(f's_waitcnt vmcnt({OPT.get("sx_wait", 2)})')
        a('s_barrier')
    a('s_waitcnt vmcnt(0)')
    flag_store(a, T5, S_TAG, c.tmp)
    ST.put(a, 9 - 12)
    a(f's_bitcmp1_b32 s{S_WAVE}, 0')
    a('s_cbranch_scc1 a_cons_p1')
    a('s_branch a_cons_p0')
    if so:
        for n in stubs:
            a.label(f'so_stub_{n}')
            a(f's_call_b64 s[{S_LINK}:{S_LINK+1}], so_fix')
            a(f's_branch so_back_{n}')
        a.label('so_fix')
        a(f's_mov_b32 s{S_SPIN}, 0')
        if OPT.get('stamps'): a(f's_add_u32 s{S_NFIX}, s{S_NFIX}, 1')
        a.label('so_fix_loop')
        a('s_waitcnt vmcnt(0)')
        a(f's_mov_b32 s{S_ANY}, 0')
        for d in range(NR):
            sk = f'so_fix_ok_{d}'
            for x in mark_test(d, vM2): a(x)
            a(f's_cbranch_vccz {sk}')
            for x in slot_loads(d): a(x)
            a(f's_mov_b32 s{S_ANY}, 1')
            a.label(sk)
        a(f's_cmp_eq_u32 s{S_ANY}, 0')
        a('s_cbranch_scc1 so_fix_done')
        if OPT.get('stamps'): a(f's_add_u32 s{S_NFIX}, s{S_NFIX}, 65536')
        a(f's_add_u32 s{S_SPIN}, s{S_SPIN}, 1')
        a(f's_cmp_lt_u32 s{S_SPIN}, {SPIN_MAX}')
        a('s_cbranch_scc1 so_fix_loop')
        a(f'v_mov_b32 v{vM2}, 0x210')
        a(f's_mov_b32 s{S_SPIN}, 16')
        a(f'buffer_store_dword v{vM2}, off, {srd(S_DBG)}, s{S_SPIN}')
        a('s_waitcnt vmcnt(0)')
        a.label('so_fix_done')
        a('s_nop 4')
        a(f's_setpc_b64 s[{S_LINK}:{S_LINK+1}]')
    a.label('b_final')
    a(f's_or_b32 s{T4}, s2, s{S_WAVE}')
    a(f's_cmp_lg_u32 s{T4}, 0')
    a('s_cbranch_scc1 b_final_rows')
    a(f's_mov_b32 s{T5}, {E_OFF}')
    flag_store(a, T5, S_NONCE, c.tmp)
    a.label('b_final_rows')
    row_offsets(a)
    for tt in range(2):
        for P in range(2):
            r = c.xr[tt, P]
            a(f'buffer_store_dwordx4 v[{r}:{r+3}], v{c.vXrow}, {srd(S_OUT)}, s{T0 if tt == 0 else T1} offen offset:{64*P} {OPT.get("omod", "")}')
    ST.put(a, 8)
    if OPT.get('stamps'): a('s_waitcnt vmcnt(0)')
    ST.put(a, 9)
    ST.cyc(a, 61)
    if OPT.get('stamps') and OPT.get('so'): a(f'v_writelane_b32 v{V_ST}, s{S_NFIX}, 59')
    ST.flush(a)
    a('s_endpgm')

class VM:
    def __init__(self): self.q = []; self.nt = 0; self.nw = 0
    def add(self, name, n): self.q.append([name, n])
    def wait(self, a, name):
        if not any(nm == name for nm, n in self.q): return
        idx = max(i for i, (nm, n) in enumerate(self.q) if nm == name)
        later = sum(n for nm, n in self.q[idx+1:])
        assert later <= 63
        a(f's_waitcnt vmcnt({later})')
        self.q = self.q[idx+1:]
    def wait_any(self, a, names):
        idxs = [i for i, (nm, n) in enumerate(self.q) if nm in names]
        if not idxs: return
        idx = max(idxs)
        later = sum(n for nm, n in self.q[idx+1:])
        assert later <= 63
        a(f's_waitcnt vmcnt({later})')
        self.q = self.q[idx+1:]
    def clear(self): self.q = []

def lane_consts(a):
    a('v_and_b32 v9, 63, v0')
    a('v_lshrrev_b32 v10, 3, v9')
    a('v_and_b32 v11, 7, v9')
    a('v_lshrrev_b32 v12, 4, v9')
    a('v_and_b32 v13, 15, v9')
    a('v_lshlrev_b32 v1, 4, v9')
def swz_regs(a, dst, row):
    for par in range(2):
        a('v_and_b32 v14, 1, v12')
        a(f'v_or_b32 v14, {2*par}, v14')
        a('v_lshlrev_b32 v14, 1, v14')
        a('v_xor_b32 v14, v14, v11')
        a('v_lshlrev_b32 v14, 4, v14')
        if row == 6144:
            a('v_mul_u32_u24 v15, 6144, v10')
            a(f'v_add_u32 v{dst[par]}, v14, v15')
        else:
            a(f'v_lshl_add_u32 v{dst[par]}, v10, {row.bit_length() - 1}, v14')

WO_AVAIL = {13: list(range(54, 78)), 14: list(range(18, 36)) + list(range(78, 102)),
            15: list(range(36, 54)) + list(range(102, 126)), 16: list(range(0, 18)) + [126, 127]}
S_WKS, S_WPS, S_SLOW = 65, 66, 67
def slow_test(a):
    a(f's_and_b32 s{S_SLOW}, s{S_GA}, 7'); a(f's_cmp_eq_u32 s{S_SLOW}, 3'); a(f's_cselect_b32 s{S_SLOW}, 1, 0')
    if OPT.get('noslow'): a(f's_mov_b32 s{S_SLOW}, 0')
    if OPT.get('allslow'): a(f's_mov_b32 s{S_SLOW}, 1')
S_WOB = 75
def wo_base(a):
    a(f's_and_b32 s{S_WOB}, s{S_L}, 1'); a(f's_lshl_b32 s{S_WOB}, s{S_WOB}, 21')
    a(f's_lshl_b32 s{T4}, s{S_GB}, 17'); a(f's_add_u32 s{S_WOB}, s{S_WOB}, s{T4}')
    a(f's_add_u32 s{S_WOB}, s{S_WOB}, {WOP_OFF}')
def wo_pieces(a, p, k, vT):
    lst = WO_AVAIL[k]; n = len(lst)
    mine = lst[p * n // 3:(p + 1) * n // 3]
    i = 0
    while i < len(mine):
        j = i
        while j + 1 < len(mine) and mine[j + 1] == mine[j] + 1 and j + 1 - i < 4: j += 1
        a(f's_mov_b32 m0, {mine[i] * 1024}')
        a(f's_add_u32 s{S_TMP}, s{S_WOB}, {mine[i] * 1024}')
        for q in range(j + 1 - i):
            a(f'buffer_load_dwordx4 v{vT}, {srd(S_WS)}, s{S_TMP} offen offset:{1024 * q} lds')
        i = j + 1
    return len(mine)

def l0st(a, first, s, vm, static=False):
    Lw = OPT.get('l0st')
    if Lw is None: return
    if static:
        if not first: return
    elif first != (Lw == 0): return
    def st2(idx):
        sk = a.uniq('st2_skip')
        a(f's_cmp_lg_u32 s{S_L}, {Lw}'); a(f's_cbranch_scc1 {sk}')
        a(f's_memrealtime s[{S_ST}:{S_ST+1}]'); a('s_waitcnt lgkmcnt(0)'); a(f'v_writelane_b32 v24, s{S_ST}, {idx}')
        a.label(sk)
    st2(s)
    vm.wait_any(a, (f'W{s+1}',)); st2(16 + s)
    vm.wait_any(a, (f'T{s+1}',)); st2(32 + s)
def l0st_flush(a):
    if OPT.get('l0st') is not None:
        a(f's_add_u32 s{T0}, s{T0}, {1 << 20}')
        a(f'buffer_store_dword v24, v1, {srd(S_WS)}, s{T0} offen')
        a('s_waitcnt vmcnt(0)')

def loader(a, p):
    vT, vHalo, vPoll = 1, 2, 5
    vW = [3, 4]
    vTL = [6, 7]
    NW0 = OPT.get('nw0', NW)
    tagn = f'w{p}'
    a.label(f'prod_{tagn}')
    if OPT.get('lprio'): a(f's_setprio {OPT["lprio"]}')
    lane_consts(a)
    if OPT.get('stamps'): a('s_mov_b32 s76, 0')
    swz_regs(a, vW, 6144)
    for half in range(2):
        a(f'v_or_b32 v14, {4*half}, v12')
        a('v_xor_b32 v14, v14, v11')
        a('v_lshlrev_b32 v14, 4, v14')
        a(f'v_lshl_add_u32 v{vTL[half]}, v10, 12, v14')
    order = order_a()
    vm = VM()
    def adv_w():
        a(f's_add_u32 s{S_SLOTW}, s{S_SLOTW}, {W_SLOT}')
        a(f's_cmp_eq_u32 s{S_SLOTW}, {W0 + NW * W_SLOT}')
        a(f's_cselect_b32 s{S_SLOTW}, {W0}, s{S_SLOTW}')
    def adv_t():
        a(f's_add_u32 s{S_SLOTA}, s{S_SLOTA}, {A_SLOT}')
        a(f's_cmp_eq_u32 s{S_SLOTA}, {3 * A_SLOT}')
        a(f's_cselect_b32 s{S_SLOTA}, 0, s{S_SLOTA}')
    def reset_w():
        vm.nw = 0
        a(f's_mov_b32 s{S_SLOTW}, {W0}')
    def issue_W(name, first):
        kw = order[vm.nw]; vm.nw += 1
        a(f's_mul_i32 s{S_TMP}, s{S_WKS}, {kw}')
        for pp in range(8):
            a(f's_add_u32 m0, s{S_SLOTW}, {p * 8192 + pp * 1024}')
            a(f's_add_u32 s{S_TMP}, s{S_TMP}, s{S_WPS if pp else S_PB}')
            a(f'buffer_load_dwordx4 v{vW[pp & 1]}, {srd(S_WQ)}, s{S_TMP} offen {OPT.get("wmod", "")} lds')
        adv_w()
        vm.add(name, 8)
    def w_repacked():
        a(f's_mov_b32 s{S_WQ}, s{S_WS}'); a(f's_mov_b32 s{S_WQ+1}, s{S_WS+1}'); a(f's_mov_b32 s{S_WQ+2}, s{S_WS+2}')
        a(f's_mov_b32 s{S_WKS}, {W_SLOT}'); a(f's_mov_b32 s{S_WPS}, 1024')
        a(f'v_mov_b32 v{vW[0]}, v{vT}'); a(f'v_mov_b32 v{vW[1]}, v{vT}')
        a(f's_and_b32 s{S_PB}, s{S_L}, 1'); a(f's_mul_i32 s{S_PB}, s{S_PB}, {6 * MB}')
        a(f's_mul_i32 s{T4}, s{S_GA}, {16 * W_SLOT}'); a(f's_add_u32 s{S_PB}, s{S_PB}, s{T4}')
        a(f's_add_u32 s{S_PB}, s{S_PB}, {WP_OFF + p * 8192}')
    def if_slow(f):
        sk = a.uniq('notslow')
        a(f's_cmp_eq_u32 s{S_SLOW}, 0'); a(f's_cbranch_scc1 {sk}')
        f()
        a.label(sk)
    def T_loads(k, first, slot):
        def m0(off):
            a(f's_add_u32 m0, s{S_SLOTA}, {off}' if slot is None else f's_mov_b32 m0, {slot + off}')
        if first:
            for tau in range(3 * p, 3 * p + 3):
                for half in range(2):
                    m0(tau * 2048 + half * 1024)
                    if tau < 8:
                        row = (tau & 3) * 32 + (tau >> 2) + 16 * half
                        a(f's_add_u32 s{S_TMP}, s{S_TB}, {row * 2048 + k * 128}')
                    else:
                        a(f's_add_u32 s{S_TMP}, s{S_HB}, {(112 + half) * 2048 + k * 128}')
                    a(f'buffer_load_dwordx4 v{vTL[half]}, {srd(S_AX)}, s{S_TMP} offen lds')
        else:
            groups = ((0, 4), (4096, 2)) if p < 2 else ((0, 4),)
            for base, cnt in groups:
                m0(p * 6144 + base)
                a(f's_add_u32 s{S_TMP}, s{S_TB}, {k * 16384 + p * 6144 + base}')
                for j in range(cnt):
                    a(f'buffer_load_dwordx4 v{vT}, {srd(S_WS)}, s{S_TMP} offen offset:{1024*j} sc1 lds')
            if p == 2:
                m0(16384)
                a(f's_add_u32 s{S_TMP}, s{S_HB}, {k * 16384}')
                for ks in range(2):
                    a(f'buffer_load_dwordx4 v{vHalo}, {srd(S_WS)}, s{S_TMP} offen offset:{1024*ks} sc1 lds')
    def issue_T(name, first):
        k = order[vm.nt]; vm.nt += 1
        T_loads(k, first, None)
        adv_t()
        vm.add(name, 6)
    S_NRT = 76
    def check_T(n):
        slot = (n % 3) * A_SLOT; RD = 32; vM = 30
        lp = a.uniq('tchk'); ok = a.uniq('tchk_ok')
        a(f's_mov_b32 s{S_SPIN}, 0')
        a.label(lp)
        for j in range(6):
            a(f'ds_read_b128 v[{RD+4*j}:{RD+4*j+3}], v{vT} offset:{slot + p * 6144 + j * 1024}')
        regs = list(range(RD, RD + 24))
        if OPT.get('sxchk', 'full') == 'one': regs = regs[0::4]
        a('s_waitcnt lgkmcnt(0)')
        h = len(regs) // 2
        ch = []
        for c_, part in enumerate((regs[:h], regs[h:])):
            v = vM + c_; q = [f'v_max3_u32 v{v}, v{part[0]}, v{part[1]}, v{part[2]}']
            rest = part[3:]
            while len(rest) >= 2:
                q.append(f'v_max3_u32 v{v}, v{v}, v{rest[0]}, v{rest[1]}'); rest = rest[2:]
            if rest: q.append(f'v_max_u32 v{v}, v{v}, v{rest[0]}')
            ch.append(q)
        for x in interleave(ch): a(x)
        a(f'v_max_u32 v{vM}, v{vM}, v{vM+1}')
        a(f'v_cmp_eq_u32 vcc, -1, v{vM}')
        a(f's_cbranch_vccz {ok}')
        if OPT.get('stamps'): a(f's_add_u32 s{S_NRT}, s{S_NRT}, {1 << (8 * n)}')
        T_loads(order[n], False, slot)
        a('s_waitcnt vmcnt(0)')
        a(f's_add_u32 s{S_SPIN}, s{S_SPIN}, 1')
        a(f's_cmp_lt_u32 s{S_SPIN}, {SPIN_MAX}')
        a(f's_cbranch_scc1 {lp}')
        a(f'v_mov_b32 v{vM}, 0x110')
        a(f's_mov_b32 s{S_SPIN}, 16')
        a(f'buffer_store_dword v{vM}, off, {srd(S_DBG)}, s{S_SPIN}')
        a('s_waitcnt vmcnt(0)')
        a.label(ok)
    sx = OPT.get('sx'); so = OPT.get('so'); NS = OPT.get('xg1', 4)
    def stages(first):
        wo_base(a)
        for s in range(15):
            l0st(a, first, s, vm)
            vm.wait_any(a, (f'T{s+1}', f'W{s+1}'))
            if sx and not first and s + 1 < NS: check_T(s + 1)
            a('s_barrier')
            if s + 3 <= 15: issue_T(f'T{s+3}', first)
            if first and s + NW == OPT.get('wsw', 6): if_slow(w_repacked)
            if s + NW <= 15: issue_W(f'W{s+NW}', first)
            if s + 1 >= 13: vm.add(f'O{s+1}', wo_pieces(a, p, s + 1, vT))
        a('s_barrier')
        wo_pieces(a, p, 16, vT)
    a(f's_lshl_b32 s{S_PB}, s{S_GA}, 7')
    if p: a(f's_add_u32 s{S_PB}, s{S_PB}, {p * 2048}')
    a(f's_mov_b32 s{S_WKS}, {64 * 6144}'); a(f's_mov_b32 s{S_WPS}, {8 * 6144}')
    slow_test(a)
    a(f's_lshl_b32 s{S_TB}, s{S_RBA}, 18')
    a(f's_sub_u32 s{T3}, s{S_RBA}, 1'); a(f's_max_i32 s{T3}, s{T3}, 0')
    a(f's_lshl_b32 s{S_HB}, s{T3}, 18')
    reset_w()
    a(f's_mov_b32 s{S_SLOTA}, 0'); vm.nt = 0
    issue_W('W0', True); issue_T('T0', True); issue_W('W1', True); issue_T('T1', True); issue_T('T2', True)
    for n in range(2, NW): issue_W(f'W{n}', True)
    a('v_lshlrev_b32 v14, 8, v12')
    a('v_or_b32 v15, 8, v13')
    a('v_lshl_add_u32 v14, v15, 4, v14')
    a('v_lshrrev_b32 v15, 3, v13')
    a('v_lshlrev_b32 v15, 13, v15')
    a('v_add_u32 v14, v14, v15')
    a(f'v_add_u32 v{vHalo}, {3 * 2048}, v14')
    if p == 0:
        a('v_lshlrev_b32 v14, 7, v12')
        a(f'v_lshl_add_u32 v{vPoll}, v13, 2, v14')
        a('s_waitcnt lgkmcnt(0)')
        a(f's_add_u32 s{S_NONCE}, s{S_NONCE}, 256')
        a(f's_add_u32 s{S_TAG}, s{S_NONCE}, 1')
    vm.wait_any(a, ('T0', 'W0'))
    ST.put(a, 1)
    a('s_barrier')
    stages(True)
    a(f's_branch prod_tail_{tagn}')
    a.label(f'prod_layer_{tagn}')
    vm.clear()
    a(f's_lshl_b32 s{T0}, s{S_L}, 22')
    a(f's_lshl_b32 s{T4}, s{S_RBA}, 18')
    a(f's_add_u32 s{S_TB}, s{T0}, s{T4}')
    a(f's_sub_u32 s{T3}, s{S_RBA}, 1'); a(f's_max_i32 s{T3}, s{T3}, 0')
    a(f's_lshl_b32 s{T4}, s{T3}, 18')
    a(f's_add_u32 s{S_HB}, s{T0}, s{T4}')
    if X_OFF:
        a(f's_add_u32 s{S_TB}, s{S_TB}, {X_OFF}'); a(f's_add_u32 s{S_HB}, s{S_HB}, {X_OFF}')
    a(f's_mov_b32 s{S_SLOTA}, 0'); vm.nt = 0; vm.nw = NW0
    for n in range(NW0): vm.add(f'W{n}', 8)
    ST.put(a, 0)
    a('s_barrier')
    issue_T('T0', False); issue_T('T1', False)
    for n in range(NW0, NW): issue_W(f'W{n}', False)
    issue_T('T2', False)
    vm.wait(a, 'T0')
    if sx: check_T(0)
    ST.put(a, 1)
    a('s_barrier')
    stages(False)
    a.label(f'prod_tail_{tagn}')
    ST.put(a, 2)
    a('s_barrier')
    a('s_waitcnt vmcnt(0)')
    ST.put(a, 5)
    a('s_barrier')
    if not so:
        order2 = order_b(); nlate = len(OPT.get('late', [3, 11]))
        if p == 0:
            a(f's_lshl_b32 s{T0}, s{S_RBB}, 9'); a(f's_add_u32 s{T0}, s{T0}, {FO_OFF}')
            poll(a, S_TAG, [(vPoll, T0)], 20, 0x201, lane_mask(order2[:16 - nlate]))
        a('s_barrier')
        if p == 0:
            poll(a, S_TAG, [(vPoll, T0)], 20, 0x202, lane_mask(order2))
        a('s_barrier')
    a(f's_cmp_eq_u32 s{S_L}, 3')
    a(f's_cbranch_scc1 prod_end_{tagn}')
    a(f's_add_u32 s{S_L}, s{S_L}, 1')
    if p == 0: a(f's_add_u32 s{S_TAG}, s{S_TAG}, 1')
    a(f's_bitcmp1_b32 s{S_L}, 0')
    a(f's_cselect_b32 s{S_WQ}, s{P_BWQ}, s{P_AWQ}')
    a(f's_cselect_b32 s{S_WQ+1}, s{P_BWQ+1}, s{P_AWQ+1}')
    if_slow(w_repacked)
    a('s_barrier')
    reset_w()
    for n in range(NW0): issue_W(f'W{n}', False)
    a(f's_branch prod_layer_{tagn}')
    a.label(f'prod_end_{tagn}')
    if not sx: a('s_barrier')
    ST.cyc(a, 61)
    if OPT.get('stamps'): a(f'v_writelane_b32 v{V_ST}, s{S_NRT}, 59')
    ST.flush(a)
    l0st_flush(a)
    a('s_endpgm')

CA_DEF = [(0, 0, 0, 8), (1, 1, 0, 8), (2, 2, 0, 8)]
CB_DEF = [(3, 0, 0, 3), (4, 0, 3, 6), (5, 0, 6, 8), (5, 1, 0, 1), (6, 1, 1, 3), (7, 1, 3, 5), (9, 1, 5, 7), (11, 1, 7, 8), (11, 2, 0, 2), (12, 2, 2, 5), (13, 2, 5, 8)]
CSB_DEF = (8, 13, None)
def service(a):
    vT, vPoll, vSt, vStH = 1, 5, 2, 3
    vWS = [6, 7]
    vLD = 18
    vX = 25
    S_CSF = 74
    S_BSET = S_OUT
    a.label('prod_w3')
    if OPT.get('sprio'): a(f's_setprio {OPT["sprio"]}')
    lane_consts(a)
    a('v_mul_u32_u24 v15, 6144, v10')
    a(f'v_lshl_add_u32 v{vLD}, v11, 4, v15')
    vm = VM()
    order = order_a()
    RQ = 128
    def rp_issue(st, u, j0=0, j1=8):
        a(f's_mul_i32 s{T0}, s{S_RBA}, {64 * 6144}')
        a(f's_lshl_b32 s{T4}, s{S_GA}, 7'); a(f's_add_u32 s{T0}, s{T0}, s{T4}')
        for j in range(j0, j1):
            r = RQ + 32 * u + 4 * j
            a(f's_add_u32 s{S_TMP}, s{T0}, {j * 8 * 6144 + u * 2048}')
            a(f'buffer_load_dwordx4 v[{r}:{r+3}], v{vLD}, {srd(S_WQ if st == 0 else S_BSET)}, s{S_TMP} offen')
        vm.add(f'C{u}', j1 - j0)
    SPR, vSP, vWide = 104, 16, 17
    def sp_issue(st):
        a(f's_lshl_b32 s{T0}, s{S_RBA}, 3'); a(f's_and_b32 s{T4}, s{S_GA}, 7'); a(f's_add_u32 s{T0}, s{T0}, s{T4}')
        a(f's_mul_i32 s{T0}, s{T0}, {8 * 6144}')
        a(f's_and_b32 s{T4}, s{S_GA}, 8'); a(f's_lshl_b32 s{T4}, s{T4}, 7'); a(f's_add_u32 s{T0}, s{T0}, s{T4}')
        for u in range(3):
            a(f's_add_u32 s{S_TMP}, s{T0}, {3 * 128 + u * 2048}')
            a(f'buffer_load_dwordx4 v[{SPR+4*u}:{SPR+4*u+3}], v{vLD}, {srd(S_WQ if st == 0 else S_BSET)}, s{S_TMP} offen')
        vm.add('SP', 3)
    def sp_store(st):
        a(f's_and_b32 s{T0}, s{S_GA}, 8'); a(f's_mul_i32 s{T0}, s{T0}, {16 * W_SLOT}')
        a(f's_mul_i32 s{T4}, s{S_RBA}, {W_SLOT}'); a(f's_add_u32 s{T0}, s{T0}, s{T4}')
        a(f's_and_b32 s{T4}, s{S_GA}, 7'); a(f's_lshl_b32 s{T4}, s{T4}, 10'); a(f's_add_u32 s{T0}, s{T0}, s{T4}')
        vm.wait(a, 'SP')
        for u in range(3):
            a(f's_add_u32 s{S_TMP}, s{T0}, {WP_OFF + st * 6 * MB + 3 * 16 * W_SLOT + u * 8192}')
            a(f'buffer_store_dwordx4 v[{SPR+4*u}:{SPR+4*u+3}], v{vSP}, {srd(S_WS)}, s{S_TMP} offen sc1')
        vm.add('SPS', 3)
    sp_issue(0)
    for k_, u_, j0_, j1_ in OPT.get('l0sch', {}).get('ca', CA_DEF):
        if k_ < 0: rp_issue(0, u_, j0_, j1_)
    slow_test(a)
    a(f's_mov_b32 s{S_BSET}, s{P_BWQ}'); a(f's_mov_b32 s{S_BSET+1}, s{P_BWQ+1}')
    a(f's_mov_b32 s{S_BSET+2}, {1024 * 6144}')
    swz_regs(a, vWS, 128)
    a(f's_bitcmp1_b32 s{S_GA}, 0'); a('s_cselect_b64 vcc, -1, 0')
    a(f'v_cndmask_b32 v{vSP}, v{vWS[0]}, v{vWS[1]}, vcc')
    a(f'v_lshlrev_b32 v14, 9, v12'); a(f'v_lshl_add_u32 v{vWide}, v13, 2, v14')
    a('v_lshlrev_b32 v14, 7, v12')
    a(f'v_lshl_add_u32 v{vPoll}, v13, 2, v14')
    a('v_lshlrev_b32 v14, 10, v12')
    a(f'v_lshl_add_u32 v{vSt}, v13, 4, v14')
    a('v_and_b32 v14, 3, v11'); a('v_lshlrev_b32 v14, 4, v14')
    a('v_lshrrev_b32 v15, 2, v11'); a('v_lshlrev_b32 v15, 9, v15')
    a('v_add_u32 v14, v14, v15')
    a('v_lshl_add_u32 v14, v10, 10, v14')
    a(f'v_add_u32 v{vStH}, {3 * 128 + 64}, v14')
    a(f's_lshl_b32 s{S_CSF}, s{S_GA}, 9')
    a(f's_lshl_b32 s{T4}, s{S_RBA}, 2'); a(f's_add_u32 s{S_CSF}, s{S_CSF}, s{T4}')
    a(f's_add_u32 s{S_CSF}, s{S_CSF}, {FC_OFF}')
    a('s_waitcnt lgkmcnt(0)')
    a(f's_add_u32 s{S_NONCE}, s{S_NONCE}, 256')
    a(f's_add_u32 s{S_TAG}, s{S_NONCE}, 1')
    a(f'v_lshlrev_b32 v15, 11, v10')
    a(f'v_lshl_add_u32 v19, v11, 4, v15')
    for j in range(4): a(f'v_mov_b32 v{240+j}, -1')
    a(f's_lshl_b32 s79, s{S_RBA}, 7')
    a(f's_sub_u32 s{T3}, s{S_RBA}, 1'); a(f's_max_i32 s{T3}, s{T3}, 0')
    a(f's_sub_u32 s{T3}, s{S_RBA}, s{T3}'); a(f's_lshl_b32 s{T3}, s{T3}, 7')
    a('v_and_b32 v14, 1, v12')
    a(f'v_mul_u32_u24 v14, s{T3}, v14')
    a('v_lshlrev_b32 v15, 2, v13')
    a('v_add_u32 v15, s79, v15')
    a('v_sub_u32 v29, v15, v14')
    a(f's_lshl_b32 s{T4}, s{S_GA}, 2'); a(f's_add_u32 s79, s79, s{T4}')
    a(f's_add_u32 s79, s79, {FL_OFF}')
    A, TT = 224, 232
    PV = 22
    so = OPT.get('so'); sx = OPT.get('sx')
    SEL, vNM, vNMH, vCS = 244, 26, 27, 28
    a('v_and_b32 v14, 1, v11'); a('v_lshlrev_b32 v14, 4, v14')
    a('v_mov_b32 v15, 0x3f80'); a('v_lshlrev_b32 v14, v14, v15')
    a('v_lshrrev_b32 v15, 1, v11')
    for q in range(4):
        a(f'v_cmp_eq_u32 vcc, {q}, v15'); a(f'v_cndmask_b32 v{SEL+q}, 0, v14, vcc')
    a('v_and_b32 v14, 1, v12'); a('v_lshlrev_b32 v14, 4, v14')
    a(f'v_lshl_add_u32 v{vCS}, v11, 5, v14')
    a(f'v_lshlrev_b32 v{vNM}, 3, v9'); a(f'v_add_u32 v{vNM}, {NM0}, v{vNM}')
    a('v_lshrrev_b32 v14, 5, v9'); a('v_lshlrev_b32 v14, 2, v14')
    a('v_lshl_add_u32 v14, v11, 3, v14'); a(f'v_add_u32 v{vNMH}, {NM0 + 512}, v14')
    WOR = 32
    vLD2 = 19
    def wo_issue(st, h):
        a(f's_lshl_b32 s{T0}, s{S_RBB}, 17')
        a(f's_lshl_b32 s{T4}, s{S_GB}, 7'); a(f's_add_u32 s{T0}, s{T0}, s{T4}')
        P = P_AWO if st == 0 else P_BWO
        a(f's_mov_b32 s{S_WO}, s{P}'); a(f's_mov_b32 s{S_WO+1}, s{P+1}')
        for j in range(4 * h, 4 * h + 4):
            r = WOR + 4 * j
            a(f's_add_u32 s{S_TMP}, s{T0}, {j * 8 * 2048}')
            a(f'buffer_load_dwordx4 v[{r}:{r+3}], v{vLD2}, {srd(S_WO)}, s{S_TMP} offen')
        vm.add(f'WO{h}', 4)
    def wo_store(st, h):
        a(f's_lshl_b32 s{T0}, s{S_GB}, 17')
        a(f's_lshl_b32 s{T4}, s{S_RBB}, 13'); a(f's_add_u32 s{T0}, s{T0}, s{T4}')
        a(f's_add_u32 s{T0}, s{T0}, {WOP_OFF + st * 2 * MB + 4096 * h}')
        vm.wait(a, f'WO{h}')
        for j in range(4 * h, 4 * h + 4):
            r = WOR + 4 * j
            a(f'buffer_store_dwordx4 v[{r}:{r+3}], v{vWS[j & 1]}, {srd(S_WS)}, s{T0} offen offset:{(j % 4) * 1024} sc1')
        vm.add('WOS', 4)
    vNEG, vPollC = 240, 29
    S_CO, S_CX, S_CLF = 77, 78, 79
    def clear_list(L):
        o = [(S_CO, t * 32768, [0, 1024]) for t in range(8)] if so else []
        x = [(S_CX, 0, [0, 1024, 2048, 3072])] if (sx and L < 3) else []
        out = []
        for b, c_, offs in o + x:
            for of in offs: out.append((b, c_, of))
        return out
    def clear_bases(L):
        a(f's_lshl_b32 s{T0}, s{S_RBA}, 18')
        a(f's_lshl_b32 s{T4}, s{S_GA}, 11'); a(f's_add_u32 s{S_CO}, s{T0}, s{T4}')
        a(f's_add_u32 s{S_CO}, s{S_CO}, {O_OFF + L * LSTRIDE}')
        assert OPT.get('xg1', 4) == 4
        tab = sum(v << (4 * n) for n, v in enumerate(order[:4]))
        a(f's_and_b32 s{T4}, s{S_GA}, 12'); a(f's_lshr_b32 s{T4}, {tab}, s{T4}'); a(f's_and_b32 s{T4}, s{T4}, 15')
        a(f's_lshl_b32 s{T4}, s{T4}, 14'); a(f's_add_u32 s{S_CX}, s{T0}, s{T4}')
        a(f's_and_b32 s{T4}, s{S_GA}, 3'); a(f's_lshl_b32 s{T4}, s{T4}, 12'); a(f's_add_u32 s{S_CX}, s{S_CX}, s{T4}')
        a(f's_add_u32 s{S_CX}, s{S_CX}, {X_OFF + (L + 1) * LSTRIDE}')
    def clear_some(lst):
        last = None
        for b, c_, of in lst:
            if last != (b, c_):
                a(f's_add_u32 s{S_TMP}, s{b}, {c_}'); last = (b, c_)
            a(f'buffer_store_dwordx4 v[{vNEG}:{vNEG+3}], v{vT}, {srd(S_WS)}, s{S_TMP} offen offset:{of} sc1')
        if lst: vm.add('CL', len(lst))
    def clear_flag():
        vm.wait(a, 'CL')
        flag_store(a, S_CLF, S_TAG, 20); vm.add('F', 1)
    def clear_poll_issue():
        a(f's_mov_b32 s{T0}, {FL_OFF}')
        a(f'buffer_load_dword v30, v{vPollC}, {srd(S_WS)}, s{T0} offen sc1')
        vm.add('Q', 1)
    def clear_check():
        vm.wait(a, 'Q')
        ok = a.uniq('cl_ok')
        poll_test(a, S_TAG, 1, 30, False)
        a(f's_cbranch_scc1 {ok}')
        a(f's_mov_b32 s{T0}, {FL_OFF}')
        poll(a, S_TAG, [(vPollC, T0)], 30, 0x310)
        a.label(ok)
    def rp_dot(u):
        vm.wait(a, f'C{u}')
        R0 = RQ + 32 * u
        a('v_mov_b32 v20, 0x3f80'); a('v_mov_b32 v21, 0x3f800000')
        for e in range(8): a(f'v_mov_b32 v{A+e}, 0')
        for j in range(8):
            r = R0 + 4 * j
            for q in range(4):
                a(f'v_dot2c_f32_bf16 v{A+2*q}, v20, v{r+q}')
                a(f'v_dot2c_f32_bf16 v{A+2*q+1}, v21, v{r+q}')
    def rp_red(st, u):
        streams = []
        for e in range(8):
            v = A + e; t = TT + e; sq = []
            sq.append(f'v_add_f32_dpp v{v}, v{v}, v{v} row_ror:8 row_mask:0xf bank_mask:0xf')
            for sw in ('16', '32'):
                sq.append(f'v_mov_b32 v{t}, v{v}')
                sq.append(f'v_permlane{sw}_swap_b32 v{v}, v{t}')
                sq.append(f'v_add_f32 v{v}, v{v}, v{t}')
            streams.append(sq)
        for x in interleave(streams): a(x)
        a(f's_lshl_b32 s{T0}, s{S_GA}, 14')
        a(f's_lshl_b32 s{T4}, s{S_RBA}, 10'); a(f's_add_u32 s{T0}, s{T0}, s{T4}')
        a(f's_add_u32 s{T0}, s{T0}, {CSP_OFF + u * 256 + st * 262144}')
        a('v_lshlrev_b32 v20, 5, v11')
        a('s_mov_b64 exec, 0xff')
        for q in range(2):
            a(f'buffer_store_dwordx4 v[{A+4*q}:{A+4*q+3}], v20, {srd(S_WS)}, s{T0} offen offset:{16*q} sc1')
        a('s_mov_b64 exec, -1')
        vm.add(f'CS{u}', 2)
    def rp_cs(st, u):
        if st in OPT.get('csdot', ()) or (st, u) in OPT.get('csdot', ()):
            rp_dot(u); rp_red(st, u); return
        vm.wait(a, f'C{u}')
        R0 = RQ + 32 * u
        for j in range(8): a(mfma(A, SEL, R0 + 4 * j, None if j == 0 else A))
        a(f's_lshl_b32 s{T0}, s{S_GA}, 14')
        a(f's_lshl_b32 s{T4}, s{S_RBA}, 10'); a(f's_add_u32 s{T0}, s{T0}, s{T4}')
        a(f's_add_u32 s{T0}, s{T0}, {CSP_OFF + u * 256 + st * 262144}')
        for r in range(4): a(f'v_add_f32_dpp v{A+r}, v{A+r}, v{A+r} row_ror:8 row_mask:0xf bank_mask:0xf')
        m = OPT.get('csmask', 0)
        if m: a('s_mov_b64 exec, 0x00ff00ff')
        a(f'buffer_store_dwordx4 v[{A}:{A+3}], v{vCS}, {srd(S_WS)}, s{T0} offen sc1')
        if m: a('s_mov_b64 exec, -1')
        if m == 2: a('s_nop 7')
        vm.add(f'CS{u}', 1)
    def rp_store(st, u):
        if OPT.get('wdirect'): return
        vm.wait(a, f'C{u}')
        R0 = RQ + 32 * u
        a(f's_mul_i32 s{T0}, s{S_GA}, {16 * W_SLOT}')
        a(f's_mul_i32 s{T4}, s{S_RBA}, {W_SLOT}'); a(f's_add_u32 s{T0}, s{T0}, s{T4}')
        a(f's_add_u32 s{T0}, s{T0}, {WP_OFF + st * 6 * MB + u * 8192}')
        for j in range(8):
            r = R0 + 4 * j
            if j == 4: a(f's_add_u32 s{T0}, s{T0}, 4096')
            a(f'buffer_store_dwordx4 v[{r}:{r+3}], v{vWS[j & 1]}, {srd(S_WS)}, s{T0} offen offset:{(j % 4) * 1024} sc1')
        vm.add(f'RP{u}', 8)
    csmask = lane_mask(range(16), (0,))
    def cs_poll_off():
        a(f's_lshl_b32 s{T0}, s{S_GA}, 9'); a(f's_add_u32 s{T0}, s{T0}, {FC_OFF}')
    def cs_poll_issue():
        cs_poll_off()
        a(f'buffer_load_dword v{vX}, v{vPoll}, {srd(S_WS)}, s{T0} offen sc1')
        vm.add('X', 1)
    def cs_check(plus, code):
        vm.wait(a, 'X')
        ok = a.uniq('cs_ok')
        a(f's_add_u32 s{T1}, s{S_NONCE}, {plus}')
        set_mask(a, csmask)
        poll_test(a, T1, 1, vX, True)
        a(f's_cbranch_scc1 {ok}')
        cs_poll_off()
        poll(a, T1, [(vPoll, T0)], vX, code, csmask)
        a.label(ok)
    def wide_off():
        a(f's_and_b32 s{T0}, s{S_GA}, 8'); a(f's_lshl_b32 s{T0}, s{T0}, 9'); a(f's_add_u32 s{T0}, s{T0}, {FC_OFF}')
        a(f's_add_u32 s{T2}, s{T0}, 2048')
    def wide_check(plus, code):
        sk = a.uniq('wide_skip')
        a(f's_cmp_eq_u32 s{S_SLOW}, 0'); a(f's_cbranch_scc1 {sk}')
        a(f's_add_u32 s{T1}, s{S_NONCE}, {plus}')
        wide_off()
        poll(a, T1, [(vWide, T0), (vWide, T2)], PV, code)
        a.label(sk)
    def cs_flag(plus):
        a(f's_add_u32 s{T1}, s{S_NONCE}, {plus}')
        flag_store(a, S_CSF, T1, 20); vm.add('F', 1)
    def cs_loads(half, SC):
        a(f's_and_b32 s{T0}, s{S_L}, 1'); a(f's_lshl_b32 s{T0}, s{T0}, 18')
        a(f's_lshl_b32 s{T4}, s{S_GA}, 14'); a(f's_add_u32 s{T0}, s{T0}, s{T4}')
        a(f's_add_u32 s{T0}, s{T0}, {CSP_OFF}')
        for rb in range(8 * half, 8 * half + 8):
            if rb % 4 == 0: a(f's_add_u32 s{S_TMP}, s{T0}, {rb * 1024}')
            a(f'buffer_load_dwordx4 v[{SC+4*rb}:{SC+4*rb+3}], v{vT}, {srd(S_WS)}, s{S_TMP} offen offset:{(rb % 4) * 1024} sc1')
        vm.add(f'Y{half}', 8)
    def cs_process(SC, half):
        vm.wait(a, f'Y{half}')
        for rb in (range(1, 8) if half == 0 else range(8, 16)):
            for q in range(4): a(f'v_add_f32 v{SC+q}, v{SC+q}, v{SC+4*rb+q}')
        if half == 0: return
        a(f's_and_b32 s{T0}, s{S_L}, 1'); a(f's_lshl_b32 s{T0}, s{T0}, 10'); a(f's_add_u32 s{T0}, s{T0}, {CS0}')
        a(f'v_add_u32 v20, s{T0}, v{vT}')
        a(f'ds_write_b128 v20, v[{SC}:{SC+3}]')
        a('s_waitcnt lgkmcnt(0)')
    SV = 32
    def stats_issue(part):
        a(f's_lshl_b32 s{T0}, s{S_L}, 18')
        a(f's_lshl_b32 s{T4}, s{S_RBA}, 14'); a(f's_add_u32 s{T1}, s{T0}, s{T4}')
        a(f's_add_u32 s{T1}, s{T1}, {S_OFF}')
        n = 0
        for j in range(4):
            a(f's_add_u32 s{S_TMP}, s{T1}, {j * 4096}')
            for q in (2 * part, 2 * part + 1):
                r = SV + 16 * q + 4 * j
                a(f'buffer_load_dwordx4 v[{r}:{r+3}], v{vSt}, {srd(S_WS)}, s{S_TMP} offen offset:{q * 256} sc1'); n += 1
        if part == 1:
            a(f's_sub_u32 s{T3}, s{S_RBA}, 1'); a(f's_max_i32 s{T3}, s{T3}, 0')
            a(f's_lshl_b32 s{T4}, s{T3}, 14'); a(f's_add_u32 s{T1}, s{T0}, s{T4}')
            for j in range(2):
                a(f's_add_u32 s{S_TMP}, s{T1}, {S_OFF + j * 8192}')
                r = SV + 64 + 4 * j
                a(f'buffer_load_dwordx4 v[{r}:{r+3}], v{vStH}, {srd(S_WS)}, s{S_TMP} offen sc1'); n += 1
        vm.add(f'S{part}', n)
    def stats_process(part):
        vm.wait(a, f'S{part}')
        groups = [(SV + 16 * q, 4, q) for q in (2 * part, 2 * part + 1)]
        if part == 1: groups.append((SV + 64, 2, 4))
        streams = []
        for R0, cnt, q in groups:
            for e in range(4):
                v = R0 + e; t = 104 + 4 * (q % 3) + e; sq = []
                for j in range(1, cnt): sq.append(f'v_add_f32 v{v}, v{v}, v{R0+4*j+e}')
                if q == 4: sq.append(f'v_add_f32_dpp v{v}, v{v}, v{v} row_ror:8 row_mask:0xf bank_mask:0xf')
                for sw in ('16', '32'):
                    sq.append(f'v_mov_b32 v{t}, v{v}')
                    sq.append(f'v_permlane{sw}_swap_b32 v{v}, v{t}')
                    sq.append(f'v_add_f32 v{v}, v{v}, v{t}')
                streams.append(sq)
        for x in interleave(streams): a(x)
        a(f's_mov_b32 s{T0}, 0x3a800000')
        streams = []
        for R0, cnt, q in groups:
            for rr in range(2):
                m, e2 = R0 + 2 * rr, R0 + 2 * rr + 1
                streams.append([f'v_mul_f32 v{m}, s{T0}, v{m}',
                                f'v_mul_f32 v{e2}, s{T0}, v{e2}',
                                f'v_fma_f32 v{e2}, -v{m}, v{m}, v{e2}',
                                f'v_max_f32 v{e2}, 0, v{e2}',
                                f'v_add_f32 v{e2}, 0x3727c5ac, v{e2}',
                                f'v_rsq_f32 v{e2}, v{e2}',
                                f'v_sub_f32 v{m}, 0, v{m}'])
        for x in interleave(streams): a(x)
        for R0, cnt, q in groups:
            a(f'v_mov_b32 v20, v{R0+1}'); a(f'v_mov_b32 v{R0+1}, v{R0+2}'); a(f'v_mov_b32 v{R0+2}, v20')
        a(f'v_lshlrev_b32 v20, 3, v13')
        a(f'v_add_u32 v20, {NM0}, v20')
        a(f'v_lshlrev_b32 v21, 3, v11')
        a(f'v_add_u32 v21, {NM0 + 512}, v21')
        for R0, cnt, q in groups:
            va = 20 if q < 4 else 21; off = 128 * q if q < 4 else 0
            a(f'ds_write_b64 v{va}, v[{R0}:{R0+1}] offset:{off}')
            a(f'ds_write_b64 v{va}, v[{R0+2}:{R0+3}] offset:{off + 1024}')
        a('s_waitcnt lgkmcnt(0)')
    def st_add(qs):
        vm.wait(a, f'S{qs[0] >> 1}')
        for j in range(1, 4):
            for q in qs:
                for e in range(4): a(f'v_add_f32 v{SV+16*q+e}, v{SV+16*q+e}, v{SV+16*q+4*j+e}')
    def st_tr(es):
        streams = []
        for e in es:
            r = [SV + 16 * q + e for q in range(4)]
            streams.append([f'v_permlane32_swap_b32 v{r[0]}, v{r[2]}', f'v_permlane32_swap_b32 v{r[1]}, v{r[3]}',
                            f'v_add_f32 v{r[0]}, v{r[0]}, v{r[2]}', f'v_add_f32 v{r[1]}, v{r[1]}, v{r[3]}',
                            f'v_permlane16_swap_b32 v{r[0]}, v{r[1]}', f'v_add_f32 v{r[0]}, v{r[0]}, v{r[1]}'])
        for x in interleave(streams): a(x)
    def ln_terms(m, e2, nm, rs):
        return [f'v_mul_f32 v{m}, s{T0}, v{m}',
                f'v_mul_f32 v{e2}, s{T0}, v{e2}',
                f'v_fma_f32 v{e2}, -v{m}, v{m}, v{e2}',
                f'v_max_f32 v{e2}, 0, v{e2}',
                f'v_add_f32 v{e2}, 0x3727c5ac, v{e2}',
                f'v_rsq_f32 v{rs}, v{e2}',
                f'v_sub_f32 v{nm}, 0, v{m}']
    def st_post():
        a(f's_mov_b32 s{T0}, 0x3a800000')
        for x in interleave([ln_terms(SV, SV + 1, SV + 6, SV + 4), ln_terms(SV + 2, SV + 3, SV + 7, SV + 5)]): a(x)
        a(f'ds_write_b64 v{vNM}, v[{SV+6}:{SV+7}]')
        a(f'ds_write_b64 v{vNM}, v[{SV+4}:{SV+5}] offset:1024')
        a('s_waitcnt lgkmcnt(0)')
    HV = SV + 64
    def st_halo(part):
        if part == 0:
            vm.wait(a, 'S1')
            for e in range(4): a(f'v_add_f32 v{HV+e}, v{HV+e}, v{HV+4+e}')
            return
        if part == 1:
            a(f'v_permlane32_swap_b32 v{HV}, v{HV+2}'); a(f'v_permlane32_swap_b32 v{HV+1}, v{HV+3}')
            a(f'v_add_f32 v{HV}, v{HV}, v{HV+2}'); a(f'v_add_f32 v{HV+1}, v{HV+1}, v{HV+3}')
            a(f'v_mov_b32 v{HV+2}, v{HV}'); a(f'v_mov_b32 v{HV+3}, v{HV+1}')
            a(f'v_permlane16_swap_b32 v{HV}, v{HV+2}'); a(f'v_permlane16_swap_b32 v{HV+1}, v{HV+3}')
            a(f'v_add_f32 v{HV}, v{HV}, v{HV+2}'); a(f'v_add_f32 v{HV+1}, v{HV+1}, v{HV+3}')
            for e in range(2): a(f'v_add_f32_dpp v{HV+e}, v{HV+e}, v{HV+e} row_ror:8 row_mask:0xf bank_mask:0xf')
            return
        a(f's_mov_b32 s{T0}, 0x3a800000')
        for x in ln_terms(HV, HV + 1, HV + 2, HV + 3): a(x)
        a('s_mov_b32 exec_lo, 0xff'); a('s_mov_b32 exec_hi, 0xff')
        a(f'ds_write_b32 v{vNMH}, v{HV+2}')
        a(f'ds_write_b32 v{vNMH}, v{HV+3} offset:1024')
        a('s_mov_b64 exec, -1')
        a('s_waitcnt lgkmcnt(0)')
    def stats_sched(work, ss, k0):
        work[ss].append(lambda: stats_issue(0)); work[ss + 1].append(lambda: stats_issue(1))
        work[k0].append(lambda: st_add((0, 1)))
        work[k0 + 1].append(lambda: st_add((2, 3))); work[k0 + 1].append(lambda: st_halo(0))
        work[k0 + 2].append(lambda: st_tr((0, 1, 2, 3)))
        work[k0 + 3].append(st_post); work[k0 + 3].append(lambda: st_halo(1))
        work[k0 + 4].append(lambda: st_halo(2))
    xg1 = OPT.get('xg1', 4); xg2 = OPT.get('xg2', 10)
    def xpoll_addr():
        a(f's_lshl_b32 s{T0}, s{S_RBA}, 9'); a(f's_add_u32 s{T0}, s{T0}, {FX_OFF}')
        a(f's_sub_u32 s{T3}, s{S_RBA}, 1'); a(f's_max_i32 s{T3}, s{T3}, 0')
        a(f's_lshl_b32 s{T1}, s{T3}, 9'); a(f's_add_u32 s{T1}, s{T1}, {FX_OFF}')
    def xpoll_issue():
        xpoll_addr(); poll_issue(a, [(vPoll, T0), (vPoll, T1)], PV); vm.add('P', 2)
    def xcheck(gs):
        vm.wait(a, 'P')
        ok = a.uniq('x_ok')
        set_mask(a, lane_mask(gs))
        poll_test(a, S_TAG, 2, PV, True)
        a(f's_cbranch_scc1 {ok}')
        xpoll_addr()
        poll(a, S_TAG, [(vPoll, T0), (vPoll, T1)], PV, 0x102, lane_mask(gs))
        a.label(ok)
    def split(lst, counts):
        out = []; i = 0
        for n in counts:
            out.append(lst[i:i+n]); i += n
        assert i >= len(lst), (i, len(lst))
        return out
    marks = so or sx
    def stages(L):
        work = {k: [] for k in range(17)}; pre = {k: [] for k in range(17)}
        cl = clear_list(L)
        sch = OPT.get('l0sch', {}) if L == 0 else OPT.get('l1sch', {})
        def at(k, f, front=False):
            if front: work[k].insert(0, f)
            else: work[k].append(f)
        def flag_after(names, plus):
            def f():
                vm.wait_any(a, names); cs_flag(plus)
            return f
        if L == 0:
            pre[0].append(lambda: sp_store(0))
            at(0, flag_after(('SPS',), 1))
            pre[OPT.get('wsw', 6) - 3].append(lambda: wide_check(1, 0x303))
            for k, u, j0, j1 in sch.get('ca', CA_DEF):
                if k >= 0: at(k, lambda u=u, j0=j0, j1=j1: rp_issue(0, u, j0, j1))
            for u, k in enumerate(sch.get('csa', (2, 3, 4))): at(k, lambda u=u: rp_cs(0, u), True)
            f2 = sch.get('f2', 5)
            at(f2, flag_after(('CS0', 'CS1', 'CS2'), 2), True)
            at(f2 + 1, cs_poll_issue)
            SC0 = sch.get('sc', 64)
            at(f2 + 2, lambda: cs_check(2, 0x300), True)
            work[f2 + 2].insert(1, lambda: cs_loads(0, SC0))
            at(f2 + 3, lambda: cs_loads(1, SC0), True)
            cp = sch.get('csp', (f2 + 4, f2 + 5))
            at(cp[0], lambda: cs_process(SC0, 0), True); at(cp[1], lambda: cs_process(SC0, 1), True)
            for h, k in enumerate(sch.get('woa', (3, 4))): at(k, lambda h=h: wo_issue(0, h))
            for h, k in enumerate(sch.get('woas', (5, 6))): at(k, lambda h=h: wo_store(0, h))
            at(sch.get('f3', 8), flag_after(('WOS',), 3), True)
            at(sch.get('p3', 11), cs_poll_issue)
            pre[13].append(lambda: cs_check(3, 0x305))
            if cl and not so: at(sch.get('clk', 11), lambda: clear_some(cl))
            if so:
                parts = split(cl, (4, 4, 4, 4, 4))
                for k in range(5): at(sch.get('clk', 7) + k, lambda part=parts[k]: clear_some(part))
            if marks: at(sch.get('clf', 13), clear_flag, True); at(15, clear_poll_issue)
            at(6, xpoll_issue)
            pre[8].append(lambda: xcheck(order))
            stats_sched(work, sch.get('s_stats', 9), sch.get('s_proc', 11))
            for k, u, j0, j1 in sch.get('cb', CB_DEF):
                at(k, lambda u=u, j0=j0, j1=j1: rp_issue(1, u, j0, j1))
            for u, k in enumerate(sch.get('csb', CSB_DEF)):
                if k is not None: at(k, lambda u=u: rp_cs(1, u), True)
            at(sch.get('spb', 12), lambda: sp_issue(1))
            at(sch.get('spbs', 14), lambda: sp_store(1))
        else:
            dist = OPT.get('pidist', 1 if sx else 2)
            work[xg1 - 2 - dist].append(xpoll_issue); pre[xg1 - 2].append(lambda: xcheck(order[:xg2]))
            work[xg2 - 2 - 2].append(xpoll_issue); pre[xg2 - 2].append(lambda: xcheck(order))
            if so:
                parts = split(cl, (4, 4, 4, 4, 4))
                for k in range(5): work[k].append(lambda part=parts[k]: clear_some(part))
            elif cl: at(OPT.get('clk', 3), lambda: clear_some(cl))
            if marks: work[8].append(clear_flag)
            stats_sched(work, OPT.get('s_stats', 9), OPT.get('s_proc', 11))
            if L == 1:
                c0 = sch.get('csl', (0, 1, 2, 3))
                at(c0[0], lambda: cs_loads(0, RQ), True); at(c0[1], lambda: cs_loads(1, RQ), True)
                at(c0[2], lambda: cs_process(RQ, 0), True); at(c0[3], lambda: cs_process(RQ, 1), True)
                for h, k in enumerate(sch.get('wob', (2, 3))): at(k, lambda h=h: wo_issue(1, h))
                for h, k in enumerate(sch.get('wobs', (4, 5))): at(k, lambda h=h: wo_store(1, h))
                at(sch.get('f5', 7), flag_after(('WOS',), 5), True)
                at(sch.get('p5', 11), cs_poll_issue)
                pre[13].append(lambda: cs_check(5, 0x302))
            if marks: work[14].append(clear_poll_issue)
        if marks: work[0].insert(0, lambda: clear_bases(L))
        for k in range(17):
            for f in pre[k]: f()
            if k and k < 16: l0st(a, L == OPT.get('l0st'), k - 1, vm, static=True)
            a('s_barrier')
            for f in work[k]: f()
    def tail(L):
        ST.put(a, 2)
        nb = OPT.get('tailnb', 2)
        late = [u for u, k in enumerate(OPT.get('l0sch', {}).get('csb', CSB_DEF)) if k is None]
        if L == 0:
            for u in late[:nb]: rp_cs(1, u)
        a('s_barrier')
        if L == 0:
            for u in late[nb:]: rp_cs(1, u)
            vm.wait_any(a, ('CS0', 'CS1', 'CS2', 'SPS')); cs_flag(4)
        if marks: clear_check()
        ST.put(a, 5)
        a('s_barrier')
        if not so: a('s_barrier')
        if not so: a('s_barrier')
        if L == 3:
            if not sx: a('s_barrier')
            return
        a(f's_add_u32 s{S_L}, s{S_L}, 1')
        if L == 0:
            a('s_waitcnt vmcnt(0)'); vm.clear()
            a(f's_add_u32 s{T1}, s{S_NONCE}, 4')
            cs_poll_off()
            poll(a, T1, [(vPoll, T0)], vX, 0x301, csmask)
            wide_check(4, 0x304)
        a(f's_add_u32 s{S_TAG}, s{S_TAG}, 1')
        a('s_barrier')
        ST.put(a, 0)
        a('s_barrier')
    for L in range(4):
        stages(L)
        tail(L)
    ST.cyc(a, 61)
    ST.flush(a)
    l0st_flush(a)
    a('s_endpgm')

def build(opts):
    OPT.clear(); OPT.update(opts)
    set_lds_map(OPT.get('nw', 4))
    a = Asm()
    kname = NAME + '_kernel'
    a.raw(f'.globl {kname}')
    a.raw('.p2align 8')
    a.raw(f'.type {kname},@function')
    a.label(kname)
    a('s_cmp_ge_u32 s2, 256')
    a('s_cbranch_scc1 k_done')
    a(f's_load_dwordx2 s[{S_AX}:{S_AX+1}], s[0:1], {K_AX}')
    a(f's_load_dwordx2 s[{P_AWQ}:{P_AWQ+1}], s[0:1], {K_AWQKV}')
    a(f's_load_dwordx2 s[{P_AWO}:{P_AWO+1}], s[0:1], {K_AWO}')
    a(f's_load_dwordx2 s[{P_BWQ}:{P_BWQ+1}], s[0:1], {K_BWQKV}')
    a(f's_load_dwordx2 s[{P_BWO}:{P_BWO+1}], s[0:1], {K_BWO}')
    a(f's_load_dwordx2 s[{S_OUT}:{S_OUT+1}], s[0:1], {K_OUT}')
    a(f's_load_dwordx2 s[{S_DBG}:{S_DBG+1}], s[0:1], {K_DBG}')
    a(f's_load_dwordx2 s[{S_WS}:{S_WS+1}], s[0:1], {K_WS}')
    if OPT.get('stamps'):
        a(f'v_mov_b32 v{V_ST}, 0')
    a(f's_and_b32 s{T0}, s2, 7')
    a(f's_lshr_b32 s{T1}, s2, 3')
    if OPT.get('map', 'same') == 'old':
        a(f's_and_b32 s{S_RBA}, s{T0}, 1'); a(f's_lshl_b32 s{S_RBA}, s{S_RBA}, 3')
        a(f's_and_b32 s{T2}, s{T1}, 7'); a(f's_add_u32 s{S_RBA}, s{S_RBA}, s{T2}')
        a(f's_lshr_b32 s{S_GA}, s{T0}, 1'); a(f's_lshl_b32 s{S_GA}, s{S_GA}, 2')
        a(f's_lshr_b32 s{T2}, s{T1}, 3'); a(f's_add_u32 s{S_GA}, s{S_GA}, s{T2}')
    else:
        a(f's_and_b32 s{S_RBA}, s{T0}, 3'); a(f's_lshl_b32 s{S_RBA}, s{S_RBA}, 2')
        a(f's_and_b32 s{T2}, s{T1}, 3'); a(f's_add_u32 s{S_RBA}, s{S_RBA}, s{T2}')
        a(f's_lshr_b32 s{S_GA}, s{T0}, 2'); a(f's_lshl_b32 s{S_GA}, s{S_GA}, 3')
        a(f's_lshr_b32 s{T2}, s{T1}, 2'); a(f's_add_u32 s{S_GA}, s{S_GA}, s{T2}')
    a(f's_and_b32 s{S_RBB}, s{T0}, 3'); a(f's_lshl_b32 s{S_RBB}, s{S_RBB}, 2')
    a(f's_and_b32 s{T2}, s{T1}, 3'); a(f's_add_u32 s{S_RBB}, s{S_RBB}, s{T2}')
    a(f's_lshr_b32 s{S_GB}, s{T0}, 2'); a(f's_lshl_b32 s{S_GB}, s{S_GB}, 3')
    a(f's_lshr_b32 s{T2}, s{T1}, 2'); a(f's_add_u32 s{S_GB}, s{S_GB}, s{T2}')
    if OPT.get('gshift'):
        for r in (S_GA, S_GB):
            a(f's_add_u32 s{T2}, s{r}, {OPT["gshift"]}'); a(f's_and_b32 s{T2}, s{T2}, 7')
            a(f's_and_b32 s{r}, s{r}, 8'); a(f's_or_b32 s{r}, s{r}, s{T2}')
    a('v_lshrrev_b32 v1, 6, v0')
    a(f'v_readfirstlane_b32 s{S_WAVE}, v1')
    a(f's_lshr_b32 s{S_H}, s{S_WAVE}, 1')
    a(f's_and_b32 s{S_H}, s{S_H}, 1')
    a(f's_mov_b32 s{S_L}, 0')
    a('s_waitcnt lgkmcnt(0)')
    make_srd(a, S_WS, 256 * MB if (OPT.get('stamps') or OPT.get('dump')) else WS_USED)
    make_srd(a, S_AX, 4 * MB); make_srd(a, S_OUT, 4 * MB); make_srd(a, S_DBG, 256)
    for p in (P_AWQ, P_BWQ, P_AWO, P_BWO): a(f's_and_b32 s{p+1}, s{p+1}, 0xffff')
    a(f's_mov_b32 s{S_WQ+2}, {1024 * 6144}'); a(f's_mov_b32 s{S_WQ+3}, {SRD3}')
    a(f's_mov_b32 s{S_WO+2}, {1024 * 2048}'); a(f's_mov_b32 s{S_WO+3}, {SRD3}')
    set_layer_srds(a)
    ST.put(a, 0, False); ST.cyc(a, 60)
    a(f's_mov_b32 s{T0}, {E_OFF}')
    a(f's_load_dword s{S_NONCE}, s[{S_WS}:{S_WS+1}], s{T0}')
    for w in range(4, 8):
        a(f's_cmp_eq_u32 s{S_WAVE}, {w}'); a(f's_cbranch_scc1 prod_w{w-4}')
    c = consumer_regs()
    if OPT.get('prio'): a(f's_setprio {OPT["prio"]}')
    if OPT.get('stamps'): a(f's_mov_b32 s{S_NFIX}, 0')
    consumer_prologue(a, c)
    a(f's_bitcmp1_b32 s{S_WAVE}, 0')
    a('s_cbranch_scc1 a_cons_p1')
    a_consumer(a, c, 0)
    a_consumer(a, c, 1)
    b_consumer(a, c)
    for p in range(3): loader(a, p)
    service(a)
    a.label('k_done')
    a('s_endpgm')
    n = a.pad_hazards()
    hdr = open(f'cdna_kernels/{NAME}.s.ref').read().split('\n')
    lines = [l for l in hdr if l.startswith(';') and '@launch' not in l and 'Override launch' not in l and 'grid=ceil' not in l]
    lines = lines[:11]
    lines.append(f'; @launch grid=(256,1,1) block=(512,1,1) lds={LDS_SIZE}')
    out = '\n'.join(lines) + '\n.amdgcn_target "amdgcn-amd-amdhsa--gfx950"\n.text\n' + a.text()
    out += f'''.section .rodata,"a"
.p2align 6
.amdhsa_kernel {kname}
  .amdhsa_next_free_vgpr 256
  .amdhsa_next_free_sgpr 102
  .amdhsa_accum_offset 256
  .amdhsa_group_segment_fixed_size 0
  .amdhsa_kernarg_size 72
  .amdhsa_float_denorm_mode_32 3
  .amdhsa_user_sgpr_count 2
  .amdhsa_user_sgpr_kernarg_segment_ptr 1
  .amdhsa_system_sgpr_workgroup_id_x 1
.end_amdhsa_kernel
'''
    return out, n, c.top

if __name__ == '__main__':
    opts = {}
    for kv in sys.argv[2:]:
        k, v = kv.split('='); opts[k] = eval(v)
    out, n, top = build(opts)
    open(sys.argv[1], 'w').write(out)
    print('written', sys.argv[1], 'nops inserted:', n, 'bytes', len(out), 'consumer vgpr top', top)
```
